```python
import torch

def _softmax(x, axis=-1):
    return torch.softmax(x, dim=axis)

def _gelu(x):
    return torch.nn.functional.gelu(x, approximate='tanh')

def _silu(x):
    return torch.nn.functional.silu(x)

def _sigmoid(x):
    return torch.sigmoid(x)

def _layernorm(x, axis=-1, eps=1e-05):
    m = x.mean(dim=axis, keepdim=True)
    v = x.var(dim=axis, keepdim=True, unbiased=False)
    return (x - m) / torch.sqrt(v + eps)

def _scatter_add(tgt, idx, src, axis=0):
    return tgt.clone().index_add_(axis, idx, src)

def _segment_sum(src, seg, n):
    out = torch.zeros((n,) + src.shape[1:], dtype=src.dtype)
    return out.index_add_(0, seg, src)

def _pad(x, pw):
    flat = tuple((v for pair in reversed(pw) for v in pair))
    return torch.nn.functional.pad(x, flat)
kernel_name = 'adaLN_cond__gqa_block_cached__glu_gated_reglu__prompt'

def setup_inputs():

    _w = lambda a: (lambda t: t.to(torch.bfloat16) if t.is_floating_point() else t)(torch.as_tensor(a))

    def _A_setup():
        B, Sq, D = (1, 2048, 512)
        Hq, Hkv, Sk, Dh = (32, 8, 2048, 128)
        assert Hq % Hkv == 0, (Hq, Hkv)
        return {'x': _w((lambda *s: torch.randn(*s, dtype=torch.bfloat16) * 0.1)(B, Sq, D)), 'k_cache': _w((lambda *s: torch.randn(*s, dtype=torch.bfloat16) * 0.8)(B, Hkv, Sk, Dh)), 'v_cache': _w((lambda *s: torch.randn(*s, dtype=torch.bfloat16) * 3.2)(B, Hkv, Sk, Dh)), 'wq': _w((lambda *s: torch.randn(*s, dtype=torch.bfloat16) * 0.8)(D, Hq * Dh) * D ** (-0.5)), 'wo': _w((lambda *s: torch.randn(*s, dtype=torch.bfloat16) * 3.2)(Hq * Dh, D) * (Hq * Dh) ** (-0.5))}
    _A_in = _A_setup()

    def _B_setup():
        B, S, D, F = (1, 2048, 512, 1792)
        return {'x': _w((lambda *s: torch.randn(*s, dtype=torch.bfloat16) * 0.1)(B, S, D)), 'W_gate': _w((lambda *s: torch.randn(*s, dtype=torch.bfloat16) * 3.2)(D, F) * (2.0 / D) ** 0.5), 'W_up': _w((lambda *s: torch.randn(*s, dtype=torch.bfloat16) * 3.2)(D, F) * (2.0 / D) ** 0.5), 'W_down': _w((lambda *s: torch.randn(*s, dtype=torch.bfloat16) * 3.2)(F, D) * (1.0 / F) ** 0.5)}
    _B_in = _B_setup()
    return {'A_x': _A_in['x'], 'A_k_cache': _A_in['k_cache'], 'A_v_cache': _A_in['v_cache'], 'A_wq': _A_in['wq'], 'A_wo': _A_in['wo'], 'B_x': _B_in['x'], 'B_W_gate': _B_in['W_gate'], 'B_W_up': _B_in['W_up'], 'B_W_down': _B_in['W_down'], 'c': _w((lambda *s: torch.randn(*s, dtype=torch.bfloat16) * 0.2)(1, 512) * 8.0), 'w_mod': _w((lambda *s: torch.randn(*s, dtype=torch.bfloat16) * 0.2)(512, 6 * 512) * 512 ** (-0.5) * 8.0)}

def reference(A_x, A_k_cache, A_v_cache, A_wq, A_wo, B_x, B_W_gate, B_W_up, B_W_down, c, w_mod):

    def _A_ref(x, k_cache, v_cache, wq, wo):
        B, Sq, D = x.shape
        Hq, Dh = (32, 128)
        Hkv = k_cache.shape[1]
        rep = Hq // Hkv
        q = (lambda x, *d: x.permute(*d))((x @ wq).reshape(B, Sq, Hq, Dh), 0, 2, 1, 3)
        k = (lambda x, n, axis: torch.repeat_interleave(x, n, dim=axis))(k_cache, rep, axis=1)
        v = (lambda x, n, axis: torch.repeat_interleave(x, n, dim=axis))(v_cache, rep, axis=1)
        scores = torch.einsum('bhqd,bhkd->bhqk', q, k) * Dh ** (-0.5)
        p = _softmax(scores, axis=-1)
        o = torch.einsum('bhqk,bhkd->bhqd', p, v)
        return (lambda x, *d: x.permute(*d))(o, 0, 2, 1, 3).reshape(B, Sq, Hq * Dh) @ wo

    def _B_ref(x, W_gate, W_up, W_down):
        gate = torch.einsum('bsd,df->bsf', x, W_gate)
        up = torch.einsum('bsd,df->bsf', x, W_up)
        gate = gate * (lambda x, dt: x.to(dt))(gate > 0, gate.dtype)
        h = gate * up
        return torch.einsum('bsf,fd->bsd', h, W_down)
    x = A_x
    mod = (_silu(c) @ w_mod).reshape(c.shape[0], 6, 1, -1)
    sa, ca, ga, sb, cb, gb = (mod[:, 0].clone(), mod[:, 1].clone(), mod[:, 2].clone(), mod[:, 3].clone(), mod[:, 4].clone(), mod[:, 5].clone())
    h = _layernorm(x, axis=-1) * (1 + ca) + sa
    x = x + ga * _A_ref(h, A_k_cache, A_v_cache, A_wq, A_wo)
    h = _layernorm(x, axis=-1) * (1 + cb) + sb
    x = x + gb * _B_ref(h, B_W_gate, B_W_up, B_W_down)
    return x
```

```python
import re

class Prog:
    def __init__(self):
        self.lines = []
    def __call__(self, s):
        for l in s.split('\n'):
            l = l.strip()
            if l:
                self.lines.append(l)
    def extend(self, other):
        self.lines.extend(other.lines if isinstance(other, Prog) else other)
    def text(self):
        out = []
        for l in self.lines:
            if l.endswith(':') or l.startswith('.') or l.startswith(';'):
                out.append(l)
            else:
                out.append('    ' + l)
        return '\n'.join(out) + '\n'

def vr(b, n=1):
    return f'v{b}' if n == 1 else f'v[{b}:{b+n-1}]'
def ar(b, n=1):
    return f'a{b}' if n == 1 else f'a[{b}:{b+n-1}]'
def sr(b, n=1):
    return f's{b}' if n == 1 else f's[{b}:{b+n-1}]'

class R:
    def __init__(self, f, b, n=1):
        self.f, self.b, self.n = f, b, n
    def __getitem__(self, i):
        if isinstance(i, slice):
            st = i.start or 0
            en = i.stop if i.stop is not None else self.n
            assert 0 <= st < en <= self.n, (st, en, self.n)
            return R(self.f, self.b + st, en - st)
        assert 0 <= i < self.n, (i, self.n)
        return R(self.f, self.b + i, 1)
    def sub(self, st, n):
        return self[st:st + n]
    def __str__(self):
        return f'{self.f}{self.b}' if self.n == 1 else f'{self.f}[{self.b}:{self.b+self.n-1}]'
    __repr__ = __str__
    def __format__(self, spec):
        return str(self)

class Alloc:
    def __init__(self, f, start, limit):
        self.f, self.p, self.limit = f, start, limit
        self.hi = start
    def __call__(self, n=1, align=None):
        if align is None:
            align = 1 if n == 1 else (2 if self.f != 's' else (2 if n == 2 else 4))
        self.p = (self.p + align - 1) // align * align
        r = R(self.f, self.p, n)
        self.p += n
        self.hi = max(self.hi, self.p)
        assert self.p <= self.limit, f'out of {self.f} registers: {self.p} > {self.limit}'
        return r
    def mark(self):
        return self.p
    def release(self, m):
        self.p = m

_reg_re = re.compile(r'^(-|\|)?(?:abs\()?([vas])(?:(\d+)|\[(\d+):(\d+)\])\)?\|?$')
def regs_of(tok):
    tok = tok.strip()
    if tok in ('vcc',):
        return {('s', 106), ('s', 107)}
    if tok == 'vcc_lo': return {('s', 106)}
    if tok == 'vcc_hi': return {('s', 107)}
    if tok == 'exec':
        return {('s', 126), ('s', 127)}
    if tok == 'exec_lo': return {('s', 126)}
    if tok == 'exec_hi': return {('s', 127)}
    if tok == 'm0':
        return {('s', 124)}
    m = _reg_re.match(tok)
    if not m:
        return set()
    f = m.group(2)
    if m.group(3) is not None:
        return {(f, int(m.group(3)))}
    return {(f, i) for i in range(int(m.group(4)), int(m.group(5)) + 1)}

TRANS = ('v_exp_f32', 'v_log_f32', 'v_rcp_f32', 'v_rsq_f32', 'v_sqrt_f32', 'v_sin_f32', 'v_cos_f32', 'v_rcp_iflag_f32')
RMW = ('v_fmac_f32', 'v_dot2c_f32_bf16', 'v_pk_fmac_f16', 'v_writelane_b32')

class Ins:
    def __init__(self, text, idx):
        self.text = text
        self.idx = idx
        t = text.split(';')[0].strip()
        parts = t.split(None, 1)
        op = parts[0]
        for suf in ('_e32', '_e64', '_dpp', '_sdwa'):
            if op.endswith(suf):
                op = op[:-len(suf)]
        self.dpp = '_dpp' in parts[0] or 'row_' in t or 'quad_perm' in t
        self.sdwa = '_sdwa' in parts[0]
        self.op = op
        rest = parts[1] if len(parts) > 1 else ''
        ops, depth, cur = [], 0, ''
        for ch in rest:
            if ch in '[(':
                depth += 1
            if ch in '])':
                depth -= 1
            if ch == ',' and depth == 0:
                ops.append(cur.strip()); cur = ''
            else:
                cur += ch
        if cur.strip():
            ops.append(cur.strip())
        self.mods = ''
        if ops:
            sp = ops[-1].split(None, 1)
            ops[-1] = sp[0]
            if len(sp) > 1:
                self.mods = sp[1]
        self.ops = ops
        self.kind = self._kind()
        self.w, self.r = set(), set()
        self.srcc = set(); self.srcab = set()
        self.lds_dma = False
        self._rw()
    def _kind(self):
        op = self.op
        if op.startswith('v_mfma'): return 'mfma'
        if op.startswith('v_'): return 'valu'
        if op.startswith('ds_'): return 'ds'
        if op.startswith(('buffer_', 'global_', 'flat_')): return 'vmem'
        if op.startswith(('s_load', 's_buffer_load', 's_memtime', 's_memrealtime', 's_atomic')): return 'smem'
        if op.startswith('s_'): return 'salu'
        raise ValueError('unknown instr ' + self.text)
    def _rw(self):
        op, o, k = self.op, self.ops, self.kind
        R_ = lambda i: regs_of(o[i]) if i < len(o) else set()
        if k == 'mfma':
            self.w = R_(0); self.srcab = R_(1) | R_(2); self.srcc = R_(3)
            self.r = self.srcab | self.srcc
            self.passes = 8 if '32x32x16' in op else (4 if '16x16x32' in op else None)
            assert self.passes, op
        elif k == 'valu':
            if op == 'v_nop':
                return
            if op.startswith('v_cmpx'):
                self.w = R_(0) | regs_of('exec'); self.r = R_(1) | R_(2)
            elif op.startswith('v_cmp'):
                self.w = R_(0); self.r = R_(1) | R_(2)
            elif op.startswith(('v_add_co', 'v_sub_co', 'v_addc_co', 'v_subb_co', 'v_subrev_co', 'v_div_scale', 'v_mad_u64_u32')):
                self.w = R_(0) | R_(1)
                for i in range(2, len(o)): self.r |= R_(i)
            elif op.startswith('v_permlane') and 'swap' in op:
                self.w = R_(0) | R_(1); self.r = R_(0) | R_(1)
            elif op == 'v_swap_b32':
                self.w = R_(0) | R_(1); self.r = R_(0) | R_(1)
            else:
                self.w = R_(0)
                for i in range(1, len(o)): self.r |= R_(i)
                if op in RMW or self.dpp or (self.sdwa and 'UNUSED_PRESERVE' in self.text): self.r |= R_(0)
                if op == 'v_cndmask_b32' and len(o) == 3: self.r |= regs_of('vcc')
                if op == 'v_div_fmas_f32': self.r |= regs_of('vcc')
        elif k == 'ds':
            if op.startswith('ds_read') or 'permute' in op or 'swizzle' in op or '_rtn' in op:
                self.w = R_(0)
                for i in range(1, len(o)): self.r |= R_(i)
            else:
                for i in range(0, len(o)): self.r |= R_(i)
        elif k == 'vmem':
            lds = (' lds' in (' ' + self.mods)) or 'load_lds' in op
            if op in ('buffer_wbl2', 'buffer_inv'):
                return
            if lds:
                self.lds_dma = True
                for i in range(len(o)): self.r |= R_(i)
                self.r |= regs_of('m0')
            elif 'load' in op:
                self.w = R_(0)
                for i in range(1, len(o)): self.r |= R_(i)
            elif 'atomic' in op:
                for i in range(len(o)): self.r |= R_(i)
                if 'sc0' in self.mods:
                    self.w = R_(0)
            else:
                for i in range(len(o)): self.r |= R_(i)
                self.store_data = R_(0) if op.startswith('buffer') else R_(1)
        elif k == 'smem':
            self.w = R_(0)
            for i in range(1, len(o)): self.r |= R_(i)
        elif k == 'salu':
            if op in ('s_waitcnt', 's_nop', 's_barrier', 's_endpgm', 's_setprio', 's_sleep', 's_branch') or op.startswith('s_cbranch'):
                if 'vcc' in op: self.r |= regs_of('vcc')
                if 'exec' in op: self.r |= regs_of('exec')
                return
            if op.startswith('s_cmp') or op.startswith('s_bitcmp'):
                for i in range(len(o)): self.r |= R_(i)
                return
            self.w = R_(0)
            for i in range(1, len(o)): self.r |= R_(i)
            if 'saveexec' in op:
                self.w |= regs_of('exec'); self.r |= regs_of('exec')
            if op in ('s_addk_i32', 's_mulk_i32', 's_bitset1_b32', 's_bitset0_b32'): self.r |= R_(0)
    def states(self):
        if self.op == 's_nop':
            return int(self.ops[0], 0) + 1
        return 1

def parse(lines):
    out = []
    for i, l in enumerate(lines):
        l = l.strip()
        if not l or l.endswith(':') or l.startswith('.') or l.startswith(';'):
            continue
        out.append(Ins(l, i))
    return out

def isv(s):
    return {x for x in s if x[0] in 'va'}
def iss(s):
    return {x for x in s if x[0] == 's'}

def check_trace(lines, name='', verbose=True):
    ins = parse(lines)
    errs = []
    def err(i, j, need, have, what):
        errs.append(f'{name}: hazard [{what}] need {need} have {have}:\n     {ins[i].text}\n  -> {ins[j].text}   (trace idx {ins[j].idx})')
    n = len(ins)
    for j in range(n):
        c = ins[j]
        dist = 0
        for i in range(j - 1, max(-1, j - 40), -1):
            p = ins[i]
            if dist >= 20: break
            need, what = 0, ''
            def req(nn, ww):
                nonlocal need, what
                if nn > need: need, what = nn, ww
            if p.kind == 'valu':
                pw_v, pw_s = isv(p.w), iss(p.w)
                if c.kind == 'mfma' and pw_v & c.r: req(2, 'valu->mfma')
                if c.kind == 'mfma' and ('s', 126) in pw_s: req(4, 'valu exec->mfma')
                if c.kind == 'valu':
                    if p.op in TRANS and c.op not in TRANS and pw_v & c.r: req(1, 'trans->valu')
                    if c.dpp and pw_v & c.r: req(2, 'valu->dpp')
                    if c.dpp and ('s', 126) in pw_s: req(5, 'exec->dpp')
                    if c.op.startswith('v_permlane') and pw_v & c.r: req(2, 'valu->permlane')
                    if c.op in ('v_readlane_b32', 'v_readfirstlane_b32') and pw_v & c.r: req(1, 'valu->readlane')
                    if pw_s & c.r:
                        req(2, 'valu sgpr->valu')
                        if c.op in ('v_readlane_b32', 'v_writelane_b32', 'v_div_fmas_f32'): req(4, 'valu sgpr->lane sel')
                    if ('s', 126) in pw_s and c.op in ('v_readlane_b32', 'v_readfirstlane_b32', 'v_writelane_b32'): req(4, 'exec->readlane')
                    if (p.sdwa or 'op_sel' in p.text) and pw_v & (c.r | c.w): req(1, 'sdwa/opsel')
                    if p.op.startswith('v_dot') and pw_v & (c.r | c.w):
                        req(3, 'dot')
                if p.op in TRANS and c.kind in ('ds', 'vmem') and pw_v & c.r: req(1, 'trans->mem')
                if c.kind == 'vmem' and pw_s & c.r: req(5, 'valu sgpr->vmem')
                if c.kind in ('salu', 'smem') and pw_s & c.r: req(1, 'valu sgpr->salu(conservative)')
            if p.kind == 'salu':
                if ('s', 124) in p.w and c.kind == 'vmem' and c.lds_dma: req(1, 'm0->lds dma')
            if p.kind == 'mfma':
                t = {8: (0, 10, 12, 7), 4: (0, 6, 8, 3)}[p.passes]
                if c.kind == 'mfma':
                    if p.w & c.srcc:
                        if not (p.w == c.srcc and p.passes == c.passes): req(t[1], 'mfma D->C overlap')
                    if p.w & c.srcab: req(t[2], 'mfma D->AB')
                    if p.w & c.w and not (p.w & c.srcc): req(t[1], 'mfma WAW(conservative)')
                elif c.kind == 'valu':
                    if p.w & (c.r | c.w): req(t[2], 'mfma D->valu')
                    if p.srcc & c.w: req(t[3], 'mfma C WAR valu')
                elif c.kind in ('ds', 'vmem'):
                    if p.w & (c.r | c.w): req(t[2], 'mfma D->mem')
                    if p.srcc & c.w: req(t[3], 'mfma C WAR load(conservative)')
            if p.kind == 'vmem' and hasattr(p, 'store_data') and len(p.store_data) >= 3:
                if p.store_data & c.w: req(2 if c.kind in ('valu', 'mfma') else 1, 'store data WAR')
            if p.kind == 'ds' and p.op.startswith('ds_write') and c.kind in ('valu',) and (isv(p.r) & c.w) and ('b128' in p.op or 'b96' in p.op):
                req(1, 'ds wide store data WAR(conservative)')
            if need > dist:
                err(i, j, need, dist, what)
            dist += p.states()
    vm, lg = [], []
    smem_out = False
    for c in ins:
        if '; dyn' in c.text and '; dynw' not in c.text: continue
        if c.op == 's_waitcnt':
            t = c.text
            m = re.search(r'vmcnt\((\d+)\)', t)
            if m:
                k = int(m.group(1)); assert k <= 63
                while len(vm) > k: vm.pop(0)
            m = re.search(r'lgkmcnt\((\d+)\)', t)
            if m:
                k = int(m.group(1)); assert k <= 15
                if k == 0:
                    lg = []
                elif not any(x[1].kind == 'smem' for x in lg):
                    while len(lg) > k: lg.pop(0)
            continue
        touched = c.r | c.w
        for q, nm in ((vm, 'vmcnt'), (lg, 'lgkmcnt')):
            for regs, p in q:
                if regs & touched and not (c.kind == 'vmem' and p.kind == 'vmem' and c.w == regs and not (regs & c.r)):
                    errs.append(f'{name}: missing {nm} wait:\n     {p.text}\n  -> {c.text}   (trace idx {c.idx})')
        if c.kind == 'vmem' and c.op not in ('buffer_wbl2', 'buffer_inv'):
            vm.append((set(c.w), c))
            if len(vm) > 63: errs.append(f'{name}: vmcnt overflow (>63 outstanding) at {c.text} idx {c.idx}')
        elif c.kind == 'ds' or c.kind == 'smem':
            lg.append((set(c.w), c))
    if verbose:
        for e in errs[:30]: print(e)
        print(f'[check {name}] {len(ins)} instrs, {len(errs)} problems')
    return errs

def kernel_footer(name, vgpr, agpr, sgpr=96, wg_y=False):
    acc = (vgpr + 3) // 4 * 4
    nfv = acc + agpr if agpr else vgpr
    s = f'''.amdhsa_kernel {name}
  .amdhsa_next_free_vgpr {nfv}
  .amdhsa_next_free_sgpr {sgpr}
  .amdhsa_accum_offset {max(acc,4)}
  .amdhsa_group_segment_fixed_size 0
  .amdhsa_kernarg_size 112
  .amdhsa_user_sgpr_count 2
  .amdhsa_user_sgpr_kernarg_segment_ptr 1
  .amdhsa_system_sgpr_workgroup_id_x 1
  .amdhsa_float_denorm_mode_32 3
  .amdhsa_ieee_mode 0
.end_amdhsa_kernel
'''
    return s
```

```python
import sys
from asmlib import *
HEADER = open('adaLN_cond__gqa_block_cached__glu_gated_reglu__prompt.s.ref').read().split('; Override launch')[0]
def assemble(kernels):
    s = HEADER
    for _, _, l in kernels: s += f'; @launch {l}\n'
    s += '.amdgcn_target "amdgcn-amd-amdhsa--gfx950"\n.text\n'
    for p, _, _ in kernels: s += p.text()
    s += '.section .rodata,"a"\n'
    for _, f, _ in kernels: s += '.p2align 6\n' + f
    return s
```

```python
from asmlib import *

MF = 'v_mfma_f32_16x16x32_bf16'
KBASE = 0
VBASE = 65536
XBASE = 131072

class AttnRegs:
    def __init__(self):
        v = Alloc('v', 1, 256); a = Alloc('a', 0, 256)
        self.v, self.a = v, a
        self.O = a(128, 4)
        self.Kf = a(64, 4)
        self.Vf = a(64, 4)
        self.tmp = v(7)
        self.Q = v(64, 4)
        self.S = v(64, 4)
        self.P = v(32, 4)
        self.negm = v(16, 4)
        self.ones = v(4, 4)
        self.lm = v(8, 4)
        self.la = v(4)
        self.kaddr = v(4)
        self.vaddr = v(8)
        self.dk = v(4)
        self.dv = v(4)
        self.B1 = v(16, 4)
        self.wa0 = v(8)
        self.dw = v(4)
        self.ba = v(2)
        self.ACC = R('v', self.S.b, 128)
        assert self.la.b + 4 == self.S.b + 128
        self.B0 = self.Q.sub(0, 16)
        self.wa1q = self.Q.sub(16, 8)
    def o(self, qb, db): return self.O.sub(32 * qb + 4 * db, 4)
    def kf(self, kb, ds): return self.Kf.sub(16 * kb + 4 * ds, 4)
    def vf(self, ks, db): return self.Vf.sub(32 * ks + 4 * db, 4)
    def q(self, qb, ds): return self.Q.sub(16 * qb + 4 * ds, 4)
    def s(self, qb, kb): return self.S.sub(32 * (qb >> 1) + 8 * kb + 4 * (qb & 1), 4)
    def p(self, qb, ks): return self.P.sub(8 * qb + 4 * ks, 4)
    def nm(self, qb): return self.negm.sub(4 * qb, 4)

S_KSRD = R('s', 8, 4)
S_VSRD = R('s', 12, 4)
S_SOFF = R('s', 16)
S_WLDS = R('s', 17)
S_CNT = R('s', 18)
S_WAVE = R('s', 19)
S_STEP = R('s', 30)

def qk_mfmas(r, pair):
    out = []
    for kb in range(4):
        for q1 in range(2):
            qb = 2 * pair + q1
            for ds in range(4):
                c = r.nm(qb) if ds == 0 else r.s(qb, kb)
                out.append(f'{MF} {r.s(qb, kb)}, {r.kf(kb, ds)}, {r.q(qb, ds)}, {c}')
    return out

def pv_mfmas(r, pair):
    out = []
    for db in range(8):
        for (ks, q1) in ((0, 0), (1, 0), (1, 1), (0, 1)):
            qb = 2 * pair + q1
            out.append(f'{MF} {r.o(qb, db)}, {r.vf(ks, db)}, {r.p(qb, ks)}, {r.o(qb, db)}')
    return out

def msum(r, pair, ks):
    l = r.lm.sub(4 * pair, 4)
    return f'{MF} {l}, {r.ones}, {r.p(2 * pair + 1, ks)}, {l}'

def softmax_ops(r, pair):
    exps, others = [], []
    for kb in range(4):
        for q1 in range(2):
            qb = 2 * pair + q1
            s = r.s(qb, kb)
            pp = r.p(qb, kb >> 1)
            for i in range(4):
                exps.append(f'v_exp_f32 {s[i]}, {s[i]}')
                n = len(exps) - 1
                if q1 == 0:
                    la = r.la[2 * pair + (i & 1)]
                    others.append((n, f'v_add_f32 {la}, {la}, {s[i]}'))
                if i & 1:
                    others.append((n, f'v_cvt_pk_bf16_f32 {pp[2 * (kb & 1) + (i >> 1)]}, {s[i-1]}, {s[i]}'))
    return exps, others

def k_reads(r, slot):
    return [f'ds_read_b128 {r.kf(kb, ds)}, {r.kaddr[ds]} offset:{slot * 16384 + kb * 4096}' for kb in range(4) for ds in range(4)]

def v_reads(r, slot):
    out = []
    for db in range(8):
        for ks in range(2):
            for u in range(2):
                out.append(f'ds_read_b64_tr_b16 {r.vf(ks, db).sub(2 * u, 2)}, {r.vaddr[db]} offset:{slot * 16384 + (32 * ks + 16 * u) * 256}')
    return out

def dma_tile(r, slot):
    out = []
    for p in range(4):
        pre = [f's_add_u32 m0, {S_WLDS}, {KBASE + slot * 16384}'] if p == 0 else []
        out.append((pre, f'buffer_load_dwordx4 {r.dk[p]}, {S_KSRD}, {S_SOFF} offen offset:{1024 * p} lds'))
    for p in range(4):
        pre = [f's_add_u32 m0, {S_WLDS}, {VBASE + slot * 16384}'] if p == 0 else []
        out.append((pre, f'buffer_load_dwordx4 {r.dv[p]}, {S_VSRD}, {S_SOFF} offen offset:{1024 * p} lds'))
    return out

ESTART = 8

def iteration(r, j4, extra_salu=None):
    mf = qk_mfmas(r, 0) + pv_mfmas(r, 1) + qk_mfmas(r, 1) + pv_mfmas(r, 0)
    N = 128
    gaps = [dict(pre=[], mem=None, valu=[], exp=None, post=[]) for _ in range(N)]
    ea, oa = softmax_ops(r, 0)
    eb, ob = softmax_ops(r, 1)
    pend = []
    for (ex, ot, base) in ((ea, oa, ESTART), (eb, ob, 64 + ESTART)):
        for n, e in enumerate(ex):
            gaps[(base + 2 * n) % N]['exp'] = e
        for n, ins in ot:
            pend.append((base + 2 * n + 1, ins))
    vr_ = v_reads(r, (j4 + 1) % 4)
    for n, d in enumerate(vr_):
        gaps[32 + 3 + 2 * n]['mem'] = d
    kr_cur = k_reads(r, (j4 + 2) % 4)
    for n, d in enumerate(kr_cur[:15]):
        gaps[96 + 3 + 2 * n]['mem'] = d
    gaps[1]['mem'] = k_reads(r, (j4 + 1) % 4)[15]
    for n, (pre, d) in enumerate(dma_tile(r, (j4 + 3) % 4)):
        g = 3 + 4 * n
        gaps[g]['mem'] = d
        gaps[g - 1]['pre'] += pre
    gaps[32]['pre'].append(f's_add_u32 {S_SOFF}, {S_SOFF}, {S_STEP}')
    extra = {33: [msum(r, 1, 0), msum(r, 1, 1)], 97: [msum(r, 0, 0), msum(r, 0, 1)]}
    gaps[94]['pre'].append('s_waitcnt lgkmcnt(6)')
    gaps[96 + 22]['pre'].append('s_waitcnt lgkmcnt(10)')
    gaps[126]['pre'].append('s_waitcnt lgkmcnt(6)')
    gaps[14]['pre'].append('s_waitcnt lgkmcnt(0)')
    def cap(g):
        G = gaps[g]
        if G['exp']: return 0
        if G['mem'] is None: return 2
        return 0 if 'lds' in G['mem'] else 1
    xslots = {g: [[], []] for g in extra}
    pend.sort(key=lambda x: x[0])
    queue = []
    placed = {}
    seq = [(g + N * per, ins) for per in range(3) for (g, ins) in pend]
    seq.sort(key=lambda x: x[0])
    qi = 0
    res = {}
    for t in range(0, 3 * N):
        while qi < len(seq) and seq[qi][0] <= t:
            queue.append(seq[qi][1]); qi += 1
        g = t % N
        c = cap(g)
        take = queue[:c]; queue = queue[c:]
        xs = []
        if g in extra:
            for _ in extra[g]:
                xs.append(queue[:2]); queue = queue[2:]
        res[t] = (take, xs)
    for g in range(N):
        assert res[N + g] == res[2 * N + g], g
    out = []
    for g in range(N):
        G = gaps[g]
        out.append(mf[g])
        out += G['pre']
        if extra_salu and g in extra_salu: out += extra_salu[g]
        if G['mem']: out.append(G['mem'])
        if G['exp']: out.append(G['exp'])
        out += res[N + g][0]
        if g in extra:
            for k, m in enumerate(extra[g]):
                out.append(m)
                if g == 97 and k == 0:
                    out.append('s_waitcnt vmcnt(8)')
                if g == 97 and k == 1:
                    out.append('s_barrier')
                out += res[N + g][1][k]
    tail = []
    for g in range(0, 40):
        G = gaps[g]
        if G['exp'] and G['exp'] in eb: tail.append(G['exp'])
        for ins in res[N + g][0] + sum(res[N + g][1], []):
            if ins in [x[1] for x in ob]: tail.append(ins)
    return out, tail

def setup_addr(p, r, lane, wave_v):
    t = r.tmp
    m, G = t[0], t[1]
    p(f'v_and_b32 {m}, 15, {lane}')
    p(f'v_lshrrev_b32 {G}, 4, {lane}')
    p(f'v_xor_b32 {t[2]}, {G}, {m}')
    p(f'v_lshlrev_b32 {t[2]}, 4, {t[2]}')
    p(f'v_lshl_add_u32 {r.kaddr[0]}, {m}, 8, {t[2]}')
    for ds in range(1, 4):
        p(f'v_xor_b32 {r.kaddr[ds]}, {64 * ds}, {r.kaddr[0]}')
    p(f'v_lshrrev_b32 {t[2]}, 2, {lane}')
    p(f'v_and_b32 {t[3]}, 7, {t[2]}')
    p(f'v_lshlrev_b32 {t[3]}, 5, {t[3]}')
    p(f'v_lshl_add_u32 {t[3]}, {t[2]}, 8, {t[3]}')
    p(f'v_and_b32 {t[4]}, 3, {lane}')
    p(f'v_lshl_add_u32 {t[3]}, {t[4]}, 3, {t[3]}')
    p(f'v_add_u32 {r.vaddr[0]}, {VBASE}, {t[3]}')
    for db in range(1, 8):
        p(f'v_xor_b32 {r.vaddr[db]}, {32 * db}, {r.vaddr[0]}')

def setup_dma_kv(p, r, lane, wave_v):
    t = r.tmp
    m, G = t[0], t[1]
    p(f'v_and_b32 {m}, 15, {lane}')
    p(f'v_lshrrev_b32 {G}, 4, {lane}')
    p(f'v_lshl_add_u32 {t[2]}, {wave_v}, 4, {G}')
    p(f'v_lshlrev_b32 {t[2]}, 8, {t[2]}')
    p(f'v_xor_b32 {t[3]}, {m}, {G}')
    p(f'v_lshl_add_u32 {r.dk[0]}, {t[3]}, 4, {t[2]}')
    for q in range(1, 4):
        p(f'v_xor_b32 {r.dk[q]}, {64 * q}, {r.dk[0]}')
    p(f'v_lshlrev_b32 {t[3]}, 1, {G}')
    p(f'v_xor_b32 {t[3]}, {m}, {t[3]}')
    p(f'v_lshl_add_u32 {r.dv[0]}, {t[3]}, 4, {t[2]}')
    p(f'v_xor_b32 {r.dv[1]}, 128, {r.dv[0]}')
    p(f'v_mov_b32 {r.dv[2]}, {r.dv[0]}')
    p(f'v_mov_b32 {r.dv[3]}, {r.dv[1]}')

def allreduce_G(p, x, t, op):
    p(f'v_mov_b32 {t}, {x}')
    p('s_nop 1')
    p(f'v_permlane32_swap_b32 {x}, {t}')
    p(f'{op} {x}, {x}, {t}')
    p(f'v_mov_b32 {t}, {x}')
    p('s_nop 1')
    p(f'v_permlane16_swap_b32 {x}, {t}')
    p(f'{op} {x}, {x}, {t}')

def bfrag_loc(ks):
    w, s = ks >> 2, ks & 3
    if s == 0: return 0, KBASE + 3 * 16384 + 4096 * w
    if s == 1: return 1, 4096 * w
    return 1, 16384 + 8192 * w + (s - 2) * 4096

def gemm(r, wa0, wa1, slot_of, dma_half, finish, prologue_dma_done=True, vm_extra=0):
    acc = lambda nt, rb: r.ACC.sub(16 * nt + 4 * rb, 4)
    A = lambda ks, nt: r.Kf.sub(32 * (ks & 1) + 4 * nt, 4)
    B = lambda ks, rb: (r.B1 if ks & 1 else r.B0).sub(4 * rb, 4)
    def a_reads(ks, u):
        wa = wa1 if u else wa0
        return [f'ds_read_b64_tr_b16 {A(ks, nt).sub(2 * u, 2)}, {wa[nt]} offset:{slot_of(ks) * 16384}' for nt in range(8)]
    def b_reads(ks, u):
        ri, off = bfrag_loc(ks)
        return [f'ds_read_b128 {B(ks, rb)}, {r.ba[ri]} offset:{off + 1024 * rb}' for rb in (2 * u, 2 * u + 1)]
    out = []
    issued = [6]
    nout = {}
    order = list(range(6))
    for h in range(6): nout[h] = 4
    def vm_wait(h):
        n = sum(nout[x] for x in order if x > h)
        return f's_waitcnt vmcnt({n})'
    out.append(vm_wait(0))
    out += a_reads(0, 0) + b_reads(0, 0)
    out.append(vm_wait(1))
    out += a_reads(0, 1)[:4]
    out.append('s_waitcnt lgkmcnt(6)')
    d = dma_half(6); nout[6] = len(d); order.append(6)
    for pre, ins in d:
        for x in pre: out += [x, 's_nop 0']
        out.append(ins)
    out += a_reads(0, 1)[4:] + b_reads(0, 1)
    out.append('s_waitcnt lgkmcnt(0)')
    fin_q = []
    for ks in range(16):
        for u in range(2):
            mem = {}
            pre = {g: [] for g in range(16)}
            if ks < 15:
                rd = b_reads(ks + 1, u) + a_reads(ks + 1, u)
                gs = [0, 1, 3, 4, 5, 7, 8, 9, 11, 12]
                for g, x in zip(gs, rd): mem[g] = x
            h = 2 * ks + u + 7
            d = dma_half(h)
            for g, (pp, ins) in zip((2, 6, 10, 14), d):
                mem[g] = ins
                pre[g - 1] += pp
            for g in range(16):
                n = 16 * u + g
                nt, rb = n >> 2, n & 3
                c = '0' if ks == 0 else acc(nt, rb)
                out.append(f'{MF} {acc(nt, rb)}, {A(ks, nt)}, {B(ks, rb)}, {c}')
                if g == 0 and ks < 15:
                    out.append(vm_wait(2 * (ks + 1) + u))
                if g == 1 and (ks, u) != (0, 0) and (ks, u) != (15, 1):
                    out.append('s_waitcnt lgkmcnt(1)' if ks < 15 else 's_waitcnt lgkmcnt(0)')
                out += pre[g]
                if g == 2:
                    nout[h] = len(d); order.append(h)
                if g in mem: out.append(mem[g])
                if g == 15 and ks < 15 and u == 1:
                    out.append('s_waitcnt lgkmcnt(4)')
                if ks == 15:
                    if n >= 12 and (n - 12) % 8 == 0:
                        fin_q += finish((n - 12) // 8)
                    k = 0
                    while fin_q and k < 2 and g not in mem:
                        x = fin_q.pop(0); out.append(x)
                        k += 2 if x.startswith('buffer') else 1
    out += fin_q
    out.append('s_nop 7')
    out += finish(3)
    return out
```

```python
from asmlib import *
from layout import *
from gen_small import srd
MF = 'v_mfma_f32_16x16x32_bf16'

def stamper(stamp):
    def f(p, k):
        if stamp: p(f's_waitcnt lgkmcnt(0)\ns_memtime s[{60+4*k}:{61+4*k}]\ns_memrealtime s[{62+4*k}:{63+4*k}]\ns_waitcnt lgkmcnt(0)')
    return f
def stamp_out(p, n, T, wave_s, ws, base):
    p('s_waitcnt vmcnt(0)')
    p(f's_memtime s[{60+4*(n-1)}:{61+4*(n-1)}]\ns_memrealtime s[{62+4*(n-1)}:{63+4*(n-1)}]\ns_waitcnt lgkmcnt(0)')
    p(f's_lshl_b32 s28, s2, 9\ns_lshl_b32 s29, {wave_s}, 7\ns_add_u32 s28, s28, s29\ns_add_u32 s28, s28, {base}')
    p(f'v_mov_b32 {T[2]}, 0')
    for k in range(n):
        p(f'v_mov_b32 {T[0]}, s{60+4*k}\nv_mov_b32 {T[1]}, s{62+4*k}')
        p(f'buffer_store_dwordx2 {T.sub(0,2)}, {T[2]}, {ws}, s28 offen offset:{8*k}')
        p('s_waitcnt vmcnt(0)')

def k3(name='k3_kernel', stamp=False, NS=6):
    st = stamper(stamp)
    p = Prog()
    v = Alloc('v', 1, 256)
    lane = R('v', 0); wv = v(); t = v(6, 2)
    ACC = v(128, 4); B = v(32, 4); ga = v(4); ua = v(4); ba = v(); dw = v(2); dh = v(); D = v(32, 4)
    A = R('a', 0, 64)
    GB, UB, HB = 0, NS * 8192, 2 * NS * 8192
    SG, SU, SW = 's[8:11]', 's[12:15]', 's[24:27]'
    S_W, S_WO, S_HO, S_L2 = 's19', 's16', 's17', 's18'
    p('s_cmp_ge_u32 s2, 224\ns_cbranch_scc1 L_k3_end')
    p('s_load_dwordx4 s[4:7], s[0:1], 48')
    p('s_load_dwordx2 s[20:21], s[0:1], 104')
    st(p, 0)
    p(f'v_lshrrev_b32 {wv}, 6, v0\nv_and_b32 v0, 63, v0')
    p(f'v_readfirstlane_b32 {S_W}, {wv}')
    p('s_and_b32 s22, s2, 7\ns_lshr_b32 s23, s2, 3')
    p('s_mul_i32 s28, s23, 37\ns_lshr_b32 s28, s28, 8')
    p('s_mul_i32 s29, s28, 7\ns_sub_u32 s29, s23, s29')
    p('s_lshr_b32 s30, s22, 1\ns_lshl_b32 s30, s30, 2\ns_add_u32 s30, s30, s28')
    p('s_and_b32 s31, s22, 1\ns_mul_i32 s31, s31, 7\ns_add_u32 s31, s31, s29')
    p(f'v_and_b32 {t[0]}, 15, {lane}\nv_lshrrev_b32 {t[1]}, 4, {lane}')
    p(f'v_lshlrev_b32 {t[2]}, 1, {t[1]}\nv_xor_b32 {t[2]}, {t[0]}, {t[2]}\nv_lshlrev_b32 {t[2]}, 4, {t[2]}')
    p(f'v_mul_u32_u24 {t[3]}, 3584, {t[1]}')
    p(f'v_add_u32 {dw[0]}, {t[2]}, {t[3]}')
    p(f'v_xor_b32 {t[2]}, 128, {t[2]}')
    p(f'v_add_u32 {t[3]}, {4*3584 - 1024}, {t[3]}')
    p(f'v_add_u32 {dw[1]}, {t[2]}, {t[3]}')
    p(f'v_lshlrev_b32 {dh}, 4, {lane}')
    p(f's_mul_i32 {S_WO}, {S_W}, {8*3584}\ns_lshl_b32 s28, s31, 8\ns_add_u32 {S_WO}, {S_WO}, s28')
    p(f's_lshl_b32 {S_HO}, s30, 17\ns_lshl_b32 s28, {S_W}, 15\ns_add_u32 {S_HO}, {S_HO}, s28\ns_add_u32 {S_HO}, {S_HO}, {WS_H2}')
    p(f's_add_u32 s34, {S_HO}, {16384 - 1024}')
    p(f's_lshl_b32 {S_L2}, {S_W}, 11')
    p('s_waitcnt lgkmcnt(0)')
    srd(p, 8, 's4', 's5', 512 * 3584); srd(p, 12, 's6', 's7', 512 * 3584); srd(p, 24, 's20', 's21', WS_END)
    def dma(ks):
        if ks >= 16: return []
        sl = (ks % NS) * 8192
        out = []
        out.append(([f's_add_u32 m0, {S_L2}, {HB + sl}'], f'buffer_load_dwordx4 {dh}, {SW}, {S_HO} offen lds'))
        out.append(([f's_add_u32 {S_HO}, {S_HO}, 1024'], f'buffer_load_dwordx4 {dh}, {SW}, s34 offen offset:1024 lds'))
        out.append(([f's_add_u32 m0, {S_L2}, {GB + sl}'], f'buffer_load_dwordx4 {dw[0]}, {SG}, {S_WO} offen lds'))
        out.append((['s_add_u32 s34, s34, 1024'], f'buffer_load_dwordx4 {dw[1]}, {SG}, {S_WO} offen offset:1024 lds'))
        out.append(([f's_add_u32 m0, {S_L2}, {UB + sl}'], f'buffer_load_dwordx4 {dw[0]}, {SU}, {S_WO} offen lds'))
        out.append(([], f'buffer_load_dwordx4 {dw[1]}, {SU}, {S_WO} offen offset:1024 lds'))
        return out
    adv = f's_add_u32 {S_WO}, {S_WO}, {32*3584}'
    for ks in range(NS):
        for pre, ins in dma(ks):
            for x in pre: p(x)
            if pre and 'm0' in pre[0]: p('s_nop 0')
            p(ins)
        p(adv)
    p(f'v_lshrrev_b32 {t[2]}, 2, {lane}\nv_and_b32 {t[3]}, 7, {t[2]}')
    p(f'v_and_b32 {t[4]}, 1, {wv}\nv_lshlrev_b32 {t[4]}, 2, {t[4]}\nv_xor_b32 {t[3]}, {t[3]}, {t[4]}')
    p(f'v_lshlrev_b32 {t[3]}, 5, {t[3]}\nv_lshl_add_u32 {t[3]}, {t[2]}, 8, {t[3]}')
    p(f'v_and_b32 {t[4]}, 3, {lane}\nv_lshl_add_u32 {ga[0]}, {t[4]}, 3, {t[3]}')
    for f in range(1, 4): p(f'v_xor_b32 {ga[f]}, {32*f}, {ga[0]}')
    for f in range(4): p(f'v_add_u32 {ua[f]}, {UB}, {ga[f]}')
    p(f'v_lshrrev_b32 {t[2]}, 1, {wv}\nv_lshl_add_u32 {ba}, {t[2]}, 12, {dh}\nv_add_u32 {ba}, {HB}, {ba}')
    p(f's_lshr_b32 s28, {S_W}, 1\ns_lshl_b32 s28, s28, 2\ns_lshl_b32 s29, s30, 3\ns_add_u32 s28, s28, s29\ns_mul_i32 s28, s28, {56*1024}')
    p(f's_and_b32 s29, {S_W}, 1\ns_lshl_b32 s29, s29, 11\ns_add_u32 s28, s28, s29\ns_lshl_b32 s29, s31, 12\ns_add_u32 s28, s28, s29')
    for rb in range(4): p(f's_add_u32 s{36+rb}, s28, {WS_ACT + rb*56*1024}')
    Af = lambda ks, n: A.sub(32 * (ks & 1) + 4 * n, 4)
    Bf = lambda ks, rb: B.sub(16 * (ks & 1) + 4 * rb, 4)
    acc = lambda n, rb: ACC.sub(16 * n + 4 * rb, 4)
    def reads(ks):
        sl = (ks % NS) * 8192
        o = [f'ds_read_b128 {Bf(ks, rb)}, {ba} offset:{sl + 1024*rb}' for rb in range(4)]
        for n in range(8):
            ad = (ua if n & 1 else ga)[n >> 1]
            for u in range(2):
                o.append(f'ds_read_b64_tr_b16 {Af(ks, n).sub(2*u, 2)}, {ad} offset:{sl + 4096*u}')
        return o
    issued = NS
    def vmw(ks): return f's_waitcnt vmcnt({6 * (min(issued, 16) - ks - 1)})'
    p(vmw(0)); p('s_barrier')
    st(p, 1)
    rd = reads(0)
    for x in rd[:12]: p(x)
    p('s_waitcnt lgkmcnt(4)')
    for x in rd[12:]: p(x)
    def finish(s):
        o = []
        for rb in range(4):
            d = D.sub(16 * s + 4 * rb, 4)
            for ff in range(2):
                g, u = acc(2 * (2 * s + ff), rb), acc(2 * (2 * s + ff) + 1, rb)
                for i in range(4): o.append(f'v_max_f32 {g[i]}, 0, {g[i]}')
                for i in range(4): o.append(f'v_mul_f32 {g[i]}, {g[i]}, {u[i]}')
                for i in range(2): o.append(f'v_cvt_pk_bf16_f32 {d[2*ff+i]}, {g[2*i]}, {g[2*i+1]}')
            o.append(f'buffer_store_dwordx4 {d}, {dh}, {SW}, s{36+rb} offen offset:{1024*s}')
        return o
    fin = []
    for ks in range(16):
        if ks < 15:
            p(f's_waitcnt vmcnt({6 * (min(issued, 16) - ks - 2)}) lgkmcnt(0)')
            p('s_barrier')
        else:
            p('s_waitcnt lgkmcnt(0)')
        mem, pre = {}, {g: [] for g in range(32)}
        d = dma(ks + NS) if ks < 15 else []
        dg = [1, 3, 5, 27, 29, 31]
        for g, (pp, ins) in zip(dg, d):
            mem[g] = ins; pre[g - 1] += pp
        if d: issued += 1
        if ks < 15:
            gs = [g for g in range(7, 27)]
            for g, x in zip(gs, reads(ks + 1)): mem[g] = x
        for g in range(32):
            n, rb = g >> 2, g & 3
            c = '0' if ks == 0 else acc(n, rb)
            p(f'{MF} {acc(n, rb)}, {Af(ks, n)}, {Bf(ks, rb)}, {c}')
            for x in pre[g]: p(x)
            if g in mem: p(mem[g])
            if ks == 15:
                if g == 20: fin += finish(0)
                k = 0
                while fin and k < 2:
                    x = fin.pop(0); p(x); k += 2 if x.startswith('buffer') else 1
        if d: p(adv)
    st(p, 2)
    for x in fin: p(x)
    for x in finish(1): p(x)
    if stamp: stamp_out(p, 4, t, S_W, SW, WS_STAMP + (1 << 18))
    check_trace(p.lines, 'k3')
    p('L_k3_end:\ns_endpgm')
    q = Prog()
    q(f'.globl {name}\n.p2align 8\n.type {name},@function\n{name}:')
    q.extend(p)
    return q, kernel_footer(name, v.hi, 64), f'kernel={name} grid=(224,1,1) block=(256,1,1) lds={3*NS*8192}'

def k4(name='k4_kernel', stamp=False, DEPTH=7):
    st = stamper(stamp)
    p = Prog()
    v = Alloc('v', 1, 256)
    lane = R('v', 0); wv = v(); t = v(6, 2)
    ACC = v(64, 4); A = v(32, 4); aa = v(4); dw = v(4); l16 = v(); X1 = v(8, 4); GBv = v(16, 4); RD = v(48, 4); oo = v()
    B = R('a', 0, 16 * DEPTH)
    NSL = DEPTH + 1
    WREG = NSL * 4096
    SD, SW, SO = 's[8:11]', 's[24:27]', 's[12:15]'
    S_W, S_WO, S_L = 's19', 's16', 's18'
    p('s_cmp_ge_u32 s2, 256\ns_cbranch_scc1 L_k4_end')
    p('s_load_dwordx2 s[4:5], s[0:1], 64')
    p('s_load_dwordx2 s[6:7], s[0:1], 88')
    p('s_load_dwordx2 s[20:21], s[0:1], 104')
    st(p, 0)
    p(f'v_lshrrev_b32 {wv}, 6, v0\nv_and_b32 v0, 63, v0')
    p(f'v_readfirstlane_b32 {S_W}, {wv}')
    p('s_and_b32 s22, s2, 7\ns_lshr_b32 s23, s2, 3')
    p('s_lshr_b32 s30, s22, 1\ns_lshl_b32 s30, s30, 3\ns_lshr_b32 s28, s23, 2\ns_add_u32 s30, s30, s28')
    p('s_and_b32 s31, s22, 1\ns_lshl_b32 s31, s31, 2\ns_and_b32 s28, s23, 3\ns_add_u32 s31, s31, s28')
    p(f'v_lshrrev_b32 {t[0]}, 3, {lane}\nv_and_b32 {t[1]}, 7, {lane}')
    p(f'v_and_b32 {t[2]}, 6, {t[0]}\nv_xor_b32 {t[1]}, {t[1]}, {t[2]}\nv_lshlrev_b32 {t[1]}, 4, {t[1]}')
    p(f'v_lshl_add_u32 {dw[0]}, {t[0]}, 10, {t[1]}')
    for i in range(1, 4): p(f'v_add_u32 {dw[i]}, {7168*i}, {dw[0]}')
    p(f'v_lshlrev_b32 {l16}, 4, {lane}')
    p(f's_mul_i32 {S_WO}, {S_W}, {14*32*1024}\ns_lshl_b32 s28, s31, 7\ns_add_u32 {S_WO}, {S_WO}, s28')
    p(f's_mul_i32 s28, s30, {4*56*1024}\ns_mul_i32 s29, {S_W}, {14*1024}\ns_add_u32 s28, s28, s29')
    for rb in range(4): p(f's_add_u32 s{36+rb}, s28, {WS_ACT + rb*56*1024}')
    p(f's_mul_i32 {S_L}, {S_W}, {WREG}')
    p('s_waitcnt lgkmcnt(0)')
    srd(p, 8, 's4', 's5', 1792 * 1024); srd(p, 12, 's6', 's7', 0x200000); srd(p, 24, 's20', 's21', WS_END)
    Bf = lambda ks, rb: B.sub(16 * (ks % DEPTH) + 4 * rb, 4)
    def wdma(ks):
        out = []
        for i in range(4):
            pre = [f's_add_u32 m0, {S_L}, {(ks % NSL) * 4096}'] if i == 0 else []
            if i == 0 and ks > 0: pre = [f's_add_u32 {S_WO}, {S_WO}, {32*1024}'] + pre
            out.append((pre, f'buffer_load_dwordx4 {dw[i]}, {SD}, {S_WO} offen offset:{1024*i} lds'))
        return out
    def bload(ks):
        out = []
        for rb in range(4):
            pre = [f's_add_u32 s{36+rb}, s{36+rb}, 4096'] if (ks % 4 == 0 and ks > 0) else []
            out.append((pre, f'buffer_load_dwordx4 {Bf(ks, rb)}, {l16}, {SW}, s{36+rb} offen offset:{1024*(ks%4)}'))
        return out
    vq = []
    def emit_now(lst, tag):
        for pre, ins in lst:
            for x in pre: p(x)
            if any('m0' in x for x in pre): p('s_nop 0')
            p(ins); vq.append(tag)
    for ks in range(DEPTH):
        emit_now(wdma(ks), ('w', ks)); emit_now(bload(ks), ('b', ks))
    def vmw(*tags):
        last = max(i for i, x in enumerate(vq) if x in tags)
        return f's_waitcnt vmcnt({len(vq) - 1 - last})'
    p(f'v_lshrrev_b32 {t[0]}, 2, {lane}\nv_lshrrev_b32 {t[1]}, 3, {lane}\nv_and_b32 {t[1]}, 3, {t[1]}\nv_lshlrev_b32 {t[1]}, 5, {t[1]}')
    p(f'v_lshl_add_u32 {t[1]}, {t[0]}, 7, {t[1]}\nv_and_b32 {t[2]}, 3, {lane}\nv_lshl_add_u32 {t[1]}, {t[2]}, 3, {t[1]}')
    p(f'v_add_u32 {aa[0]}, {S_L}, {t[1]}')
    for n in range(1, 4): p(f'v_xor_b32 {aa[n]}, {32*n}, {aa[0]}')
    p(f'v_and_b32 {t[0]}, 15, {lane}\nv_lshrrev_b32 {t[1]}, 4, {lane}\nv_lshlrev_b32 {oo}, 10, {t[0]}\nv_lshl_add_u32 {oo}, {t[1]}, 4, {oo}')
    p(f'v_lshlrev_b32 {t[5]}, 5, {t[1]}')
    p(f's_lshl_b32 s40, s30, 2\ns_add_u32 s40, s40, {S_W}\ns_lshl_b32 s40, s40, 14')
    p(f's_lshl_b32 s28, s31, 11\ns_add_u32 s41, s40, s28\ns_add_u32 s41, s41, {WS_X1}')
    p(f's_lshl_b32 s28, s31, 7\ns_add_u32 s40, s40, s28')
    p(f's_lshl_b32 s42, s31, 8\ns_add_u32 s42, s42, {WS_MOD + MOD_GB}')
    Af = lambda ks, n: A.sub(16 * (ks & 1) + 4 * n, 4)
    acc = lambda n, rb: ACC.sub(16 * rb + 4 * n, 4)
    def reads(ks):
        return [f'ds_read_b64_tr_b16 {Af(ks, n).sub(2*u, 2)}, {aa[n]} offset:{(ks % NSL)*4096 + 2048*u}' for n in range(4) for u in range(2)]
    p(vmw(('w', 0)))
    st(p, 1)
    for x in reads(0): p(x)
    extra = [([], f'buffer_load_dwordx4 {X1.sub(4*s,4)}, {l16}, {SW}, s41 offen offset:{1024*s}') for s in range(2)]
    extra += [([], f'buffer_load_dwordx4 {GBv.sub(8*s+4*h,4)}, {t[5]}, {SW}, s42 offen offset:{128*s+16*h}') for s in range(2) for h in range(2)]
    for ks in range(14):
        tags = [('b', ks)] + ([('w', ks + 1)] if ks < 13 else [])
        p(vmw(*tags) + ' lgkmcnt(0)')
        mem, pre, tag = {}, {g: [] for g in range(17)}, {}
        if ks < 13:
            for g, x in zip(range(0, 8), reads(ks + 1)): mem[g] = x
        nk = ks + DEPTH
        if nk < 14:
            for g, (pp, ins) in zip((8, 9, 10, 11), wdma(nk)):
                mem[g] = ins; pre[g - 1] += pp; tag[g] = ('w', nk)
            for g, (pp, ins) in zip((12, 13, 14, 15), bload(nk)):
                mem[g] = ins; pre[g - 1] += pp; tag[g] = ('b', nk)
        elif nk == 14:
            for g, (pp, ins) in zip(range(8, 14), extra):
                mem[g] = ins; tag[g] = ('x', 0)
        for g in range(16):
            n, rb = g >> 2, g & 3
            c = '0' if ks == 0 else acc(n, rb)
            p(f'{MF} {acc(n, rb)}, {Af(ks, n)}, {Bf(ks, rb)}, {c}')
            for x in pre[g]: p(x)
            if g in mem:
                p(mem[g])
                if g in tag: vq.append(tag[g])
    st(p, 2)
    p(f'v_add_u32 {t[0]}, {S_L}, {l16}')
    p(f'v_lshl_add_u32 {t[1]}, {wv}, 12, {l16}')
    p(f'v_add_u32 {t[2]}, {2*WREG}, {t[1]}')
    p('s_nop 4')
    for n in range(4):
        for rb in range(4):
            p(f'ds_write_b128 {t[0]}, {acc(n, rb)} offset:{rb*4096 + n*1024}')
    p('s_waitcnt lgkmcnt(0)')
    p('s_barrier')
    dst = [ACC.sub(0, 16), RD.sub(0, 16), RD.sub(16, 16), RD.sub(32, 16)]
    for w in range(4):
        for n in range(4):
            ad, off = (t[1], w * WREG) if w < 2 else (t[2], (w - 2) * WREG)
            p(f'ds_read_b128 {dst[w].sub(4*n, 4)}, {ad} offset:{off + n*1024}')
        if w == 2: p('s_waitcnt lgkmcnt(4)')
    XF = ACC.sub(16, 16)
    p('s_waitcnt vmcnt(0)')
    for k in range(8):
        p(f'v_lshlrev_b32 {XF[2*k]}, 16, {X1[k]}')
        p(f'v_and_b32 {XF[2*k+1]}, 0xffff0000, {X1[k]}')
    for i in range(16): p(f'v_add_f32 {dst[0][i]}, {dst[0][i]}, {dst[1][i]}')
    p('s_waitcnt lgkmcnt(0)')
    for i in range(16): p(f'v_add_f32 {dst[2][i]}, {dst[2][i]}, {dst[3][i]}')
    for i in range(16): p(f'v_add_f32 {dst[0][i]}, {dst[0][i]}, {dst[2][i]}')
    for i in range(16): p(f'v_fmac_f32 {XF[i]}, {GBv[i]}, {dst[0][i]}')
    for k in range(8): p(f'v_cvt_pk_bf16_f32 {X1[k]}, {XF[2*k]}, {XF[2*k+1]}')
    p('s_nop 1')
    for sw in ('v_permlane32_swap_b32', 'v_permlane16_swap_b32'):
        for s in range(2):
            for i in range(2): p(f'{sw} {X1[4*s+i]}, {X1[4*s+2+i]}')
    for s in range(2):
        p(f'buffer_store_dwordx4 {X1.sub(4*s,4)}, {oo}, {SO}, s40 offen offset:{64*s}')
    if stamp: stamp_out(p, 4, t, S_W, SW, WS_STAMP + (2 << 18))
    check_trace(p.lines, 'k4')
    p('L_k4_end:\ns_endpgm')
    q = Prog()
    q(f'.globl {name}\n.p2align 8\n.type {name},@function\n{name}:')
    q.extend(p)
    return q, kernel_footer(name, v.hi, 16 * DEPTH), f'kernel={name} grid=(256,1,1) block=(256,1,1) lds={4*WREG}'
```

```python
from gen_attn import *
from layout import *

def k1(name='k1_kernel', stamp=False):
    r = AttnRegs()
    lane, wv = R('v', 0), R('v', 1)
    S_WQ = R('s', 40, 4); S_WS = R('s', 24, 4)
    S_QOFF = R('s', 31)
    S_PASS = R('s', 44)
    S_KB = R('s', 46, 2); S_VB = R('s', 48, 2); S_WOB = R('s', 50, 2)
    t = r.tmp
    def stampit(p, k):
        if stamp: p(f's_waitcnt lgkmcnt(0)\ns_memtime s[{60+4*k}:{61+4*k}]\ns_memrealtime s[{62+4*k}:{63+4*k}]\ns_waitcnt lgkmcnt(0)')
    pro = Prog()
    pro(f's_cmp_ge_u32 s2, 256\ns_cbranch_scc1 L_k1_end')
    pro('s_load_dwordx8 s[4:11], s[0:1], 8')
    pro('s_load_dwordx2 s[20:21], s[0:1], 104')
    stampit(pro, 0)
    pro(f'v_lshrrev_b32 {wv}, 6, v0')
    pro(f'v_and_b32 v0, 63, v0')
    pro(f'v_readfirstlane_b32 {S_WAVE}, {wv}')
    pro('s_and_b32 s22, s2, 7')
    pro('s_lshr_b32 s3, s2, 3')
    pro('s_lshl_b32 s23, s22, 19')
    pro(f's_lshl_b32 {S_WLDS}, {S_WAVE}, 12')
    pro(f'v_lshlrev_b32 {r.ba[0]}, 4, {lane}')
    pro(f'v_lshrrev_b32 {t[1]}, 4, {lane}')
    pro(f'v_lshlrev_b32 {t[5]}, 5, {t[1]}')
    pro('s_waitcnt lgkmcnt(0)')
    pro(f's_mov_b32 s24, s20\ns_mov_b32 s25, s21\ns_mov_b32 s26, {WS_END}\ns_mov_b32 s27, 0x20000')
    X = r.ACC.sub(0, 64); SC = r.ACC.sub(64, 64)
    pro(f's_lshl_b32 s28, s3, 16\ns_add_u32 s28, s28, {S_WLDS}\ns_add_u32 s28, s28, {WS_XN}')
    pro(f's_lshl_b32 s29, {S_WAVE}, 9\ns_add_u32 s29, s29, {WS_MOD}')
    for s in range(4):
        for i in range(2):
            pro(f'buffer_load_dwordx4 {SC.sub(16*s+4*i,4)}, {t[5]}, {S_WS}, s29 offen offset:{MOD_SC1 + 128*s + 16*i}')
            pro(f'buffer_load_dwordx4 {SC.sub(16*s+8+4*i,4)}, {t[5]}, {S_WS}, s29 offen offset:{MOD_SH1 + 128*s + 16*i}')
    for rb in range(4):
        for s in range(4):
            pro(f'buffer_load_dwordx4 {X.sub(16*rb+4*s,4)}, {r.ba[0]}, {S_WS}, s28 offen offset:{s*1024}')
        if rb < 3: pro('s_add_u32 s28, s28, 16384')
    pro(f's_add_u32 {S_KB[0]}, s4, s23\ns_addc_u32 {S_KB[1]}, s5, 0')
    pro(f's_add_u32 {S_VB[0]}, s6, s23\ns_addc_u32 {S_VB[1]}, s7, 0')
    pro(f's_add_u32 {S_WOB[0]}, s10, s23\ns_addc_u32 {S_WOB[1]}, s11, 0')
    pro(f's_mov_b32 {S_WQ[0]}, s8\ns_mov_b32 {S_WQ[1]}, s9\ns_mov_b32 {S_WQ[2]}, 0x400000\ns_mov_b32 {S_WQ[3]}, 0x20000')
    def set_kv_srd(p):
        p(f's_mov_b32 s8, {S_KB[0]}\ns_mov_b32 s9, {S_KB[1]}\ns_mov_b32 s10, 0x80000\ns_mov_b32 s11, 0x20000')
        p(f's_mov_b32 s12, {S_VB[0]}\ns_mov_b32 s13, {S_VB[1]}\ns_mov_b32 s14, 0x80000\ns_mov_b32 s15, 0x20000')
        p(f's_mov_b32 {S_STEP}, 16384\ns_mov_b32 {S_SOFF}, 0')
    set_kv_srd(pro)
    def w_voff(p, dst, stride_log2):
        p(f'v_and_b32 {t[0]}, 15, {lane}')
        p(f'v_lshrrev_b32 {t[1]}, 4, {lane}')
        p(f'v_lshlrev_b32 {t[2]}, 1, {t[1]}')
        p(f'v_xor_b32 {t[2]}, {t[0]}, {t[2]}')
        p(f'v_lshlrev_b32 {t[2]}, 4, {t[2]}')
        p(f'v_lshl_add_u32 {dst[0]}, {t[1]}, {stride_log2}, {t[2]}')
        st = 4 * (1 << stride_log2) - 1024
        p(f'v_xor_b32 {dst[1]}, 128, {dst[0]}')
        p(f'v_add_u32 {dst[1]}, {st}, {dst[1]}')
        p(f'v_add_u32 {dst[2]}, {2*st}, {dst[0]}')
        p(f'v_add_u32 {dst[3]}, {2*st}, {dst[1]}')
    w_voff(pro, r.dw, 13)
    pro(f's_lshl_b32 {S_QOFF}, s22, 2\ns_add_u32 {S_QOFF}, {S_QOFF}, {S_WAVE}\ns_lshl_b32 {S_QOFF}, {S_QOFF}, 8')
    qslot = lambda ks: (ks + 2) % 3
    def q_dma(h):
        ks, u = h >> 1, h & 1
        base = (VBASE if u else KBASE) + qslot(ks) * 16384
        if ks < 16:
            out = []
            for p in range(4):
                pre = [f's_add_u32 m0, {S_WLDS}, {base}'] if p == 0 else []
                if p == 0 and h > 0: pre = [f's_add_u32 {S_QOFF}, {S_QOFF}, {16*8192}'] + pre
                out.append((pre, f'buffer_load_dwordx4 {r.dw[p]}, {S_WQ}, {S_QOFF} offen offset:{1024*p} lds'))
            return out
        if ks < 18:
            d = dma_tile(r, ks - 16)[4*u:4*u+4]
            if ks == 17 and u == 0:
                d[0] = ([f's_add_u32 {S_SOFF}, {S_SOFF}, {S_STEP}'] + d[0][0], d[0][1])
            return d
        return []
    for h in range(6):
        for pre, ins in q_dma(h):
            for x in pre: pro(x)
            if pre: pro('s_nop 0')
            pro(ins)
    setup_dma_kv(pro, r, lane, wv)
    setup_addr(pro, r, lane, wv)
    pro(f'v_add_u32 {r.ba[1]}, {VBASE + 3*16384}, {r.ba[0]}')
    pro(f'v_lshrrev_b32 {t[2]}, 2, {lane}')
    pro(f'v_and_b32 {t[3]}, 7, {t[2]}')
    pro(f'v_lshlrev_b32 {t[3]}, 1, {t[3]}')
    pro(f'v_and_b32 {t[4]}, 3, {lane}')
    pro(f'v_xor_b32 {t[3]}, {t[3]}, {t[4]}')
    pro(f'v_lshlrev_b32 {t[3]}, 4, {t[3]}')
    pro(f'v_lshl_add_u32 {t[3]}, {t[2]}, 8, {t[3]}')
    pro(f'v_add_u32 {r.wa0[0]}, {S_WLDS}, {t[3]}')
    for nt in range(1, 8):
        pro(f'v_xor_b32 {r.wa0[nt]}, {64*(nt>>1) + 8*(nt&1)}, {r.wa0[0]}')
    for nt in range(8):
        pro(f'v_add_u32 {r.wa1q[nt]}, {VBASE}, {r.wa0[nt]}')
    def zero_ov(p):
        for i in range(128): p(f'v_accvgpr_write_b32 {r.O[i]}, 0')
        for i in range(64): p(f'v_accvgpr_write_b32 {r.Vf[i]}, 0')
    zero_ov(pro)
    pro(f's_mov_b32 {S_PASS}, 0')
    wr = [R('v', 9), R('v', 10)]
    pro(f'v_add_u32 {wr[0]}, {S_WLDS}, {r.ba[0]}')
    pro(f'v_add_u32 {wr[1]}, {S_WLDS}, {r.ba[1]}')
    wr2 = R('v', 11)
    pro(f'v_add_u32 {wr2}, {S_WLDS}, {wr[1]}')
    def frag_write(s, rb, D):
        if s == 0: return f'ds_write_b128 {wr[0]}, {D} offset:{KBASE + 3*16384 + 1024*rb}'
        if s == 1: return f'ds_write_b128 {wr[1]}, {D} offset:{1024*rb}'
        return f'ds_write_b128 {wr2}, {D} offset:{16384 + (s-2)*4096 + 1024*rb}'
    T = r.B1
    for rb in range(4):
        pro(f's_waitcnt vmcnt({24 + 4*(3-rb)})')
        for s in range(4):
            x = X.sub(16*rb+4*s, 4); tt = T.sub(8*(s&1), 8)
            for i in range(8):
                hi = i & 1
                pro(f'v_fma_mix_f32 {tt[i]}, {x[i>>1]}, {SC[16*s+i]}, {SC[16*s+8+i]} op_sel:[{hi},0,0] op_sel_hi:[1,0,0]')
            for i in range(4):
                pro(f'v_cvt_pk_bf16_f32 {x[i]}, {tt[2*i]}, {tt[2*i+1]}')
            pro(frag_write(s, rb, x))
    pro('s_waitcnt lgkmcnt(0)')
    pro('s_barrier')
    stampit(pro, 1)
    def q_finish(i):
        out = []
        for rb in range(4):
            for k in range(4):
                a = r.ACC.sub(16*(2*i + (k>>1)) + 4*rb, 4)
                out.append(f'v_cvt_pk_bf16_f32 {r.q(rb, i)[k]}, {a[2*(k&1)]}, {a[2*(k&1)+1]}')
        return out
    pro.extend(gemm(r, r.wa0, r.wa1q, qslot, q_dma, q_finish))
    pro(f's_add_u32 {S_SOFF}, {S_SOFF}, {S_STEP}')
    stampit(pro, 2)
    body = []; tails = None
    for j4 in (3, 0, 1, 2):
        ex = None
        if j4 == 0:
            ex = {40: [f's_cmp_eq_u32 {S_CNT}, 1'], 42: ['s_cbranch_scc1 L_k1_switch', 'L_k1_back:']}
        if j4 == 2:
            ex = {120: [f's_sub_u32 {S_CNT}, {S_CNT}, 1'], 122: [f's_cmp_lg_u32 {S_CNT}, 0']}
        o, tails = iteration(r, j4, ex)
        body += o
    pro('s_waitcnt vmcnt(8)')
    pro('s_barrier')
    kr = k_reads(r, 0)
    for d in kr[:15]: pro(d)
    pro('s_waitcnt lgkmcnt(11)')
    for qb in range(4):
        for ds in range(4):
            c = '0' if ds == 0 else r.s(qb, 0)
            pro(f'{MF} {r.s(qb, 0)}, {r.kf(0, ds)}, {r.q(qb, ds)}, {c}')
            if qb >= 2:
                nt = 4 * (qb - 2) + ds
                pro(f'v_add_u32 {r.wa0[nt]}, {S_WLDS}, {r.vaddr[nt]}')
                pro(f'v_subrev_u32 {r.wa0[nt]}, {VBASE}, {r.wa0[nt]}')
    for qb in range(4):
        s = r.s(qb, 0); x = r.nm(qb)
        if qb == 3: pro('s_nop 1')
        pro(f'v_max3_f32 {x[0]}, {s[0]}, {s[1]}, {s[2]}')
        pro(f'v_max_f32 {x[0]}, {x[0]}, {s[3]}')
    ent = Prog()
    for qb in range(4): x = r.nm(qb); ent(f'v_mov_b32 {x[1]}, {x[0]}')
    for qb in range(4): x = r.nm(qb); ent(f'v_permlane32_swap_b32 {x[0]}, {x[1]}')
    for qb in range(4): x = r.nm(qb); ent(f'v_max_f32 {x[0]}, {x[0]}, {x[1]}')
    for qb in range(4): x = r.nm(qb); ent(f'v_mov_b32 {x[1]}, {x[0]}')
    for qb in range(4): x = r.nm(qb); ent(f'v_permlane16_swap_b32 {x[0]}, {x[1]}')
    for qb in range(4): x = r.nm(qb); ent(f'v_max_f32 {x[0]}, {x[0]}, {x[1]}')
    for qb in range(4):
        x = r.nm(qb)
        for i in (1, 2, 3, 0): ent(f'v_sub_f32 {x[i]}, 0, {x[0]}')
    exp_tail = {x.split()[1].rstrip(',') for x in tails if x.startswith('v_exp')}
    used = set()
    for x in tails:
        for tok in x.replace(',', ' ').split()[1:]: used.add(tok)
    for i in range(32, 64):
        if str(r.S[i]) in used:
            ent(f'v_mov_b32 {r.S[i]}, {"0xff800000" if str(r.S[i]) in exp_tail else "0"}')
    for i in range(16, 32): ent(f'v_mov_b32 {r.P[i]}, 0')
    for i in range(8): ent(f'v_mov_b32 {r.lm[i]}, 0')
    for i in range(4): ent(f'v_mov_b32 {r.la[i]}, 0')
    for i in range(4): ent(f'v_mov_b32 {r.ones[i]}, 0x3f803f80')
    ent(f's_mov_b32 {S_CNT}, 8')
    ent('s_waitcnt lgkmcnt(0)')
    sw = Prog()
    w_voff(sw, r.dk, 10)
    for i in range(4): sw(f'v_mov_b32 {r.dv[i]}, {r.dk[i]}')
    sw(f's_mov_b32 s8, {S_WOB[0]}\ns_mov_b32 s9, {S_WOB[1]}')
    sw(f's_add_u32 s12, {S_WOB[0]}, 16384\ns_addc_u32 s13, {S_WOB[1]}, 0\ns_mov_b32 s14, {0x80000 - 16384}')
    sw(f's_lshl_b32 {S_SOFF}, {S_WAVE}, 8\ns_mov_b32 {S_STEP}, 32768')
    epi = Prog()
    stampit(epi, 3)
    for x in tails:
        epi(x)
        if x.startswith('v_exp'): epi('s_nop 0')
    inv = [t[0], t[1], t[2], t[3]]
    va = []
    for pair in range(2):
        va.append(f'v_add_f32 {inv[2*pair]}, {r.la[2*pair]}, {r.la[2*pair+1]}')
    for pair in range(2): va.append(f'v_mov_b32 {t[4+pair]}, {inv[2*pair]}')
    va.append('s_nop 0')
    for pair in range(2): va.append(f'v_permlane32_swap_b32 {inv[2*pair]}, {t[4+pair]}')
    for pair in range(2): va.append(f'v_add_f32 {inv[2*pair]}, {inv[2*pair]}, {t[4+pair]}')
    for pair in range(2): va.append(f'v_mov_b32 {t[4+pair]}, {inv[2*pair]}')
    va.append('s_nop 0')
    for pair in range(2): va.append(f'v_permlane16_swap_b32 {inv[2*pair]}, {t[4+pair]}')
    for pair in range(2): va.append(f'v_add_f32 {inv[2*pair]}, {inv[2*pair]}, {t[4+pair]}')
    va.append(f'v_add_f32 {t[4]}, {inv[0]}, {inv[2]}')
    va.append(f'v_add_f32 {t[5]}, {r.lm[0]}, {r.lm[4]}')
    va.append(f'v_add_f32 {t[4]}, {t[4]}, {t[5]}')
    va.append(f'v_cmp_ngt_f32 vcc, 0x4e800000, {t[4]}')
    va.append(f'v_rcp_f32 {inv[0]}, {inv[0]}')
    va.append(f'v_rcp_f32 {inv[1]}, {r.lm[0]}')
    va.append(f's_cmp_lg_u64 vcc, 0')
    va.append(f's_cselect_b32 s28, 1, 0')
    va.append(f'v_and_b32 {t[4]}, 3, {lane}')
    va.append(f'v_lshlrev_b32 {t[4]}, 13, {t[4]}')
    va.append(f'v_lshl_add_u32 {t[4]}, {wv}, 2, {t[4]}')
    va.append(f'v_add_u32 {t[4]}, {XBASE}, {t[4]}')
    va.append(f'v_mov_b32 {t[5]}, s28')
    va.append(f'ds_write_b32 {t[4]}, {t[5]}')
    va.append(f'v_rcp_f32 {inv[2]}, {inv[2]}')
    va.append(f'v_rcp_f32 {inv[3]}, {r.lm[4]}')
    va.append(f'v_lshlrev_b32 {t[4]}, 13, {wv}')
    va.append(f'v_add_u32 {t[4]}, {XBASE}, {t[4]}')
    va.append('s_waitcnt lgkmcnt(0)')
    va.append('s_barrier')
    FL = r.B1.sub(0, 4)
    va.append(f'ds_read_b128 {FL}, {t[4]}')
    def norm(qb, s):
        T8 = r.S.sub(8 * ((qb * 4 + s) % 4), 8); D = r.S.sub(32 + 4 * ((qb * 4 + s) % 8), 4)
        o = []
        for i in range(8): o.append(f'v_accvgpr_read_b32 {T8[i]}, {r.O[32*qb + 8*s + i]}')
        for i in range(8): o.append(f'v_mul_f32 {T8[i]}, {T8[i]}, {inv[qb]}')
        for i in range(4): o.append(f'v_cvt_pk_bf16_f32 {D[i]}, {T8[2*i]}, {T8[2*i+1]}')
        o.append(frag_write(s, qb, D))
        return o
    va += norm(0, 0)
    va.append('s_waitcnt lgkmcnt(1)')
    va.append(f'v_or3_b32 {FL[0]}, {FL[0]}, {FL[1]}, {FL[2]}')
    va.append(f'v_or_b32 {FL[0]}, {FL[0]}, {FL[3]}')
    va.append('s_nop 0')
    va.append(f'v_readfirstlane_b32 s28, {FL[0]}')
    mf = [msum(r, 1, 0), msum(r, 1, 1)] + pv_mfmas(r, 1)
    epi('s_nop 0')
    d2 = dma_tile(r, 2)
    for n, m in enumerate(mf):
        epi(m)
        if n < 8:
            pre, ins = d2[n]
            for x in pre: epi(x); epi('s_nop 0')
            epi(ins)
            continue
        k = 0
        while va and k < 2:
            x = va.pop(0); epi(x)
            k += 2 if x.startswith(('v_rcp', 'ds_')) else (0 if x.startswith('s_') else 1)
    for x in va: epi(x)
    epi('s_nop 1')
    epi(f's_andn2_b32 s28, s28, {S_PASS}')
    epi('s_cbranch_scc1 L_k1_fallback')
    for qb in range(4):
        for s in range(4):
            if (qb, s) != (0, 0): epi.extend(norm(qb, s))
    for nt in range(8): epi(f'v_add_u32 {r.vaddr[nt]}, {S_WLDS}, {r.vaddr[nt]}')
    epi(f's_add_u32 {S_SOFF}, {S_SOFF}, 16384')
    epi(f's_lshl_b32 s28, s22, 21\ns_lshl_b32 s29, s3, 16\ns_add_u32 s28, s28, s29\ns_add_u32 s28, s28, {S_WLDS}\ns_add_u32 s28, s28, {WS_PART}')
    for i in range(1, 4): epi(f's_add_u32 s{32+i}, s28, {16384*i}')
    epi('s_mov_b32 s32, s28')
    epi('s_waitcnt lgkmcnt(0)')
    epi('s_barrier')
    stampit(epi, 4)
    def o_dma(h):
        ks, u = h >> 1, h & 1
        if ks >= 16: return []
        base = (VBASE if u else KBASE) + (ks % 3) * 16384
        out = []
        for p in range(4):
            pre = [f's_add_u32 {S_SOFF}, {S_SOFF}, 16384', f's_add_u32 m0, {S_WLDS}, {base}'] if p == 0 else []
            out.append((pre, f'buffer_load_dwordx4 {r.dk[p]}, {S_KSRD}, {S_SOFF} offen offset:{1024*p} lds'))
        return out
    def o_finish(i):
        out = []
        for rb in range(4):
            D = r.Q.sub(16*i + 4*rb, 4)
            for k in range(4):
                a = r.ACC.sub(16*(2*i + (k>>1)) + 4*rb, 4)
                out.append(f'v_cvt_pk_bf16_f32 {D[k]}, {a[2*(k&1)]}, {a[2*(k&1)+1]}')
            out.append(f'buffer_store_dwordx4 {D}, {r.ba[0]}, {S_WS}, s{32+rb} offen offset:{1024*i}')
        return out
    epi.extend(gemm(r, r.wa0, r.vaddr, lambda ks: ks % 3, o_dma, o_finish))
    if stamp:
        epi('s_waitcnt vmcnt(0)')
        stampit(epi, 5)
        epi(f's_lshl_b32 s28, s2, 9\ns_lshl_b32 s29, {S_WAVE}, 7\ns_add_u32 s28, s28, s29\ns_add_u32 s28, s28, {WS_STAMP}')
        epi(f'v_mov_b32 {t[0]}, 0')
        for k in range(6):
            epi(f'v_mov_b32 {r.S[2*k]}, s{60+4*k}\nv_mov_b32 {r.S[2*k+1]}, s{62+4*k}')
            epi(f'buffer_store_dwordx2 {r.S.sub(2*k,2)}, {t[0]}, {S_WS}, s28 offen offset:{8*k}')
    fb = Prog()
    fb('s_waitcnt vmcnt(0) lgkmcnt(0)')
    fb('s_barrier')
    set_kv_srd(fb)
    setup_dma_kv(fb, r, lane, wv)
    for qb in range(4): fb(f'v_mov_b32 {r.nm(qb)[0]}, 0xff800000')
    fb(f's_mov_b32 {S_CNT}, 32')
    fl = Prog()
    for pre, ins in dma_tile(r, 0)[:4]:
        for x in pre: fl(x); fl('s_nop 0')
        fl(ins)
    fl(f's_add_u32 {S_SOFF}, {S_SOFF}, {S_STEP}')
    fl('s_waitcnt vmcnt(0)')
    fl('s_barrier')
    for d in kr[:8]: fl(d)
    fl('s_waitcnt lgkmcnt(0)')
    for d in kr[8:]: fl(d)
    fl('s_waitcnt lgkmcnt(0)')
    fl('s_barrier')
    for kb in range(4):
        for qb in range(4):
            for ds in range(4):
                c = '0' if ds == 0 else r.s(qb, kb)
                fl(f'{MF} {r.s(qb, kb)}, {r.kf(kb, ds)}, {r.q(qb, ds)}, {c}')
    fl('s_nop 7')
    for kb in range(4):
        for qb in range(4):
            s = r.s(qb, kb); x = r.nm(qb)[0]
            fl(f'v_max3_f32 {x}, {x}, {s[0]}, {s[1]}')
            fl(f'v_max3_f32 {x}, {x}, {s[2]}, {s[3]}')
    fl(f's_sub_u32 {S_CNT}, {S_CNT}, 1')
    fl(f's_cmp_lg_u32 {S_CNT}, 0')
    fe = Prog()
    fe(f's_mov_b32 {S_SOFF}, 0\ns_mov_b32 {S_PASS}, 1')
    for tt in range(2):
        for pre, ins in dma_tile(r, tt):
            for x in pre: fe(x); fe('s_nop 0')
            fe(ins)
        fe(f's_add_u32 {S_SOFF}, {S_SOFF}, {S_STEP}')
    zero_ov(fe)
    fe('s_waitcnt vmcnt(8)')
    fe('s_barrier')
    for d in kr[:15]: fe(d)
    def with_switch(b):
        i = b.index('L_k1_back:')
        return b[:i] + sw.lines + ['s_branch L_k1_back'] + b[i:]
    br = ['s_cbranch_scc1 L_k1_loop']
    check_trace(pro.lines + ent.lines + body + br + with_switch(body) + br + epi.lines, 'k1 main')
    i = epi.lines.index('s_cbranch_scc1 L_k1_fallback')
    check_trace(body + br + epi.lines[:i+1] + fb.lines + fl.lines + br + fl.lines + br + fe.lines + ['s_branch x'] + ent.lines + body, 'k1 fallback')
    p = Prog()
    p(f'.globl {name}\n.p2align 8\n.type {name},@function\n{name}:')
    p.extend(pro)
    p('L_k1_entry:')
    p.extend(ent)
    p('.p2align 6\nL_k1_loop:')
    p.extend(body)
    p('s_cbranch_scc1 L_k1_loop')
    p.extend(epi)
    p('L_k1_end:\ns_endpgm')
    p('L_k1_switch:')
    p.extend(sw)
    p('s_branch L_k1_back')
    p('L_k1_fallback:')
    p.extend(fb)
    p('L_k1_fbloop:')
    p.extend(fl)
    p('s_cbranch_scc1 L_k1_fbloop')
    p.extend(fe)
    p('s_branch L_k1_entry')
    return p, kernel_footer(name, 256, 256), f'kernel={name} grid=(256,1,1) block=(256,1,1) lds=163840'
```

```python
from asmlib import *
from layout import *
import math
CQ = math.log2(math.e) / math.sqrt(128.0)
import struct
def f32(x): return hex(struct.unpack('<I', struct.pack('<f', x))[0])

def srd(p, d, lo, hi, n):
    p(f's_mov_b32 s{d}, {lo}\ns_mov_b32 s{d+1}, {hi}\ns_mov_b32 s{d+2}, {n}\ns_mov_b32 s{d+3}, 0x20000')

def red_c8(p, xs, ts):
    p('s_nop 1')
    for x in xs: p(f'v_add_f32_dpp {x}, {x}, {x} row_ror:8 row_mask:0xf bank_mask:0xf')
    for sw in ('v_permlane32_swap_b32', 'v_permlane16_swap_b32'):
        for x, t in zip(xs, ts): p(f'v_mov_b32 {t}, {x}')
        p('s_nop 1')
        for x, t in zip(xs, ts): p(f'{sw} {x}, {t}')
        for x, t in zip(xs, ts): p(f'v_add_f32 {x}, {x}, {t}')

def ln_stats(p, V, T, lane, wv):
    s = T[8]; t = T[9]
    p(f'v_add_f32 {s}, {V[0]}, {V[1]}')
    p(f'v_add_f32 {t}, {V[2]}, {V[3]}')
    for i in range(4, 16, 2):
        p(f'v_add_f32 {s}, {s}, {V[i]}')
        p(f'v_add_f32 {t}, {t}, {V[i+1]}')
    p(f'v_add_f32 {s}, {s}, {t}')
    red_c8(p, [s], [t])
    p(f'v_mul_f32 {s}, {f32(1/128)}, {s}')
    for i in range(16): p(f'v_sub_f32 {V[i]}, {V[i]}, {s}')
    q = T[10]
    p(f'v_mul_f32 {t}, {V[0]}, {V[0]}')
    p(f'v_mul_f32 {q}, {V[1]}, {V[1]}')
    for i in range(2, 16, 2):
        p(f'v_fmac_f32 {t}, {V[i]}, {V[i]}')
        p(f'v_fmac_f32 {q}, {V[i+1]}, {V[i+1]}')
    p(f'v_add_f32 {t}, {t}, {q}')
    red_c8(p, [t], [q])
    a = T[11]
    p(f'v_and_b32 {a}, 7, {lane}')
    p(f'v_lshlrev_b32 {a}, 5, {a}')
    p(f'v_lshl_add_u32 {q}, {wv}, 3, {a}')
    p(f'ds_write_b64 {q}, {T.sub(8, 2)}')
    p('s_waitcnt lgkmcnt(0)')
    p('s_barrier')
    p(f'ds_read_b128 {T.sub(0, 4)}, {a}')
    p(f'ds_read_b128 {T.sub(4, 4)}, {a} offset:16')
    p('s_waitcnt lgkmcnt(0)')
    m = T[9]
    p(f'v_add_f32 {m}, {T[0]}, {T[2]}')
    p(f'v_add_f32 {q}, {T[4]}, {T[6]}')
    p(f'v_add_f32 {m}, {m}, {q}')
    p(f'v_mul_f32 {m}, 0.5, {m}')
    p(f'v_mul_f32 {m}, 0.5, {m}')
    for i in (0, 2, 4, 6): p(f'v_sub_f32 {T[i]}, {T[i]}, {m}')
    p(f'v_mul_f32 {q}, {T[0]}, {T[0]}')
    for i in (2, 4, 6): p(f'v_fmac_f32 {q}, {T[i]}, {T[i]}')
    p(f'v_add_f32 {T[1]}, {T[1]}, {T[3]}')
    p(f'v_add_f32 {T[5]}, {T[5]}, {T[7]}')
    p(f'v_add_f32 {T[1]}, {T[1]}, {T[5]}')
    p(f'v_fmac_f32 {T[1]}, {f32(128.0)}, {q}')
    p(f'v_mov_b32 {q}, {f32(1e-5)}')
    p(f'v_fmac_f32 {q}, {f32(1/512)}, {T[1]}')
    p(f'v_rsq_f32 {q}, {q}')
    p(f'v_sub_f32 {s}, {s}, {m}')
    p(f'v_mul_f32 {s}, {s}, {q}')
    for i in range(16): p(f'v_fma_f32 {V[i]}, {V[i]}, {q}, {s}')

def ln_addr(p, lane, wv, xo, fo, vo, T):
    r8, c8 = T[0], T[1]
    p(f'v_and_b32 {r8}, 7, {lane}')
    p(f'v_lshrrev_b32 {c8}, 3, {lane}')
    p(f'v_lshrrev_b32 {T[2]}, 2, {c8}')
    p(f'v_lshl_add_u32 {T[2]}, {wv}, 2, {T[2]}')
    p(f'v_and_b32 {T[3]}, 3, {c8}')
    p(f'v_lshlrev_b32 {xo}, 10, {r8}')
    p(f'v_lshl_add_u32 {xo}, {T[2]}, 6, {xo}')
    p(f'v_lshl_add_u32 {xo}, {T[3]}, 3, {xo}')
    p(f'v_lshlrev_b32 {fo}, 10, {T[2]}')
    p(f'v_lshl_add_u32 {fo}, {T[3]}, 8, {fo}')
    p(f'v_lshl_add_u32 {fo}, {r8}, 4, {fo}')
    if vo is not None:
        p(f'v_lshlrev_b32 {vo}, 7, {T[2]}')
        p(f'v_lshl_add_u32 {vo}, {T[3]}, 5, {vo}')

def load_x(p, XR, xo, sx, soff):
    for i in range(2):
        for u in range(2):
            p(f'buffer_load_dwordx2 {XR.sub(4*i+2*u, 2)}, {xo}, {sx}, {soff} offen offset:{128*i + 32*u}')

def unpack(p, V, XR):
    for k in range(8):
        p(f'v_lshlrev_b32 {V[2*k]}, 16, {XR[k]}')
        p(f'v_and_b32 {V[2*k+1]}, 0xffff0000, {XR[k]}')

def k0(name='k0_kernel'):
    p = Prog()
    lane, wv = R('v', 1), R('v', 2)
    p('s_cmp_ge_u32 s2, 448\ns_cbranch_scc1 L_k0_end')
    p('s_load_dwordx2 s[4:5], s[0:1], 0')
    p('s_load_dwordx4 s[8:11], s[0:1], 72')
    p('s_load_dwordx2 s[6:7], s[0:1], 104')
    p(f'v_and_b32 {lane}, 63, v0\nv_lshrrev_b32 {wv}, 6, v0')
    p('s_waitcnt lgkmcnt(0)')
    srd(p, 12, 's4', 's5', 0x200000)
    srd(p, 16, 's8', 's9', 1024)
    srd(p, 20, 's10', 's11', 512 * 6144)
    srd(p, 24, 's6', 's7', WS_END)
    head = list(p.lines)
    p('s_cmp_ge_u32 s2, 192\ns_cbranch_scc1 L_k0_xn')
    a = Prog()
    a('s_and_b32 s3, s2, 7\ns_mul_i32 s3, s3, 24\ns_lshr_b32 s28, s2, 3\ns_add_u32 s3, s3, s28')
    a('s_lshl_b32 s28, s3, 5')
    W = R('v', 8, 16); C = R('v', 24, 4); ACC = R('v', 28, 8); U = R('v', 36, 8)
    a('v_lshrrev_b32 v3, 1, v0')
    a('v_lshlrev_b32 v4, 1, v3')
    for i in range(4): a(f'buffer_load_ushort {C[i]}, v4, s[16:19], 0 offen offset:{256*i}')
    a('v_mul_u32_u24 v5, 6144, v3')
    a('v_and_b32 v6, 1, v0')
    a('v_lshl_add_u32 v5, v6, 4, v5')
    for i in range(4):
        a(f'buffer_load_dwordx4 {W.sub(4*i,4)}, v5, s[20:23], s28 offen')
        if i < 3: a(f's_add_u32 s28, s28, {128*6144}')
    a('s_lshr_b32 s29, s3, 5')
    a('s_cmp_eq_u32 s29, 1\ns_cselect_b32 s30, 1.0, 0')
    a('s_cmp_eq_u32 s29, 4\ns_cselect_b32 s30, 1.0, s30')
    a(f's_cmp_lt_u32 s29, 2\ns_cselect_b32 s31, {f32(CQ)}, 1.0')
    a('s_lshr_b32 s32, s3, 1\ns_lshl_b32 s32, s32, 7\ns_and_b32 s33, s3, 1\ns_lshl_b32 s33, s33, 4\ns_add_u32 s32, s32, s33')
    if WS_MOD: a(f's_add_u32 s32, s32, {WS_MOD}')
    a('s_waitcnt vmcnt(4)')
    for i in range(4): a(f'v_lshlrev_b32 {C[i]}, 16, {C[i]}')
    for i in range(4): a(f'v_mul_f32 {U[i]}, {f32(-math.log2(math.e))}, {C[i]}')
    for i in range(4): a(f'v_exp_f32 {U[i]}, {U[i]}')
    for i in range(4): a(f'v_add_f32 {U[i]}, 1.0, {U[i]}')
    for i in range(4): a(f'v_rcp_f32 {U[i]}, {U[i]}')
    for i in range(4): a(f'v_mul_f32 {C[i]}, {C[i]}, {U[i]}')
    for i in range(4):
        a(f's_waitcnt vmcnt({3-i})')
        for k in range(4):
            a(f'v_lshlrev_b32 {U[2*k]}, 16, {W[4*i+k]}')
            a(f'v_and_b32 {U[2*k+1]}, 0xffff0000, {W[4*i+k]}')
        for e in range(8):
            a(f'v_mul_f32 {ACC[e]}, {U[e]}, {C[i]}' if i == 0 else f'v_fmac_f32 {ACC[e]}, {U[e]}, {C[i]}')
    a('v_lshlrev_b32 v5, 12, v6\nv_lshl_add_u32 v5, v3, 2, v5')
    for e in range(8): a(f'ds_write_b32 v5, {ACC[e]} offset:{512*e}')
    a('v_lshlrev_b32 v5, 5, v0')
    a('s_waitcnt lgkmcnt(0)\ns_barrier')
    a(f'ds_read_b128 {U.sub(0,4)}, v5\nds_read_b128 {U.sub(4,4)}, v5 offset:16')
    a('v_lshrrev_b32 v3, 4, v0')
    a('v_lshrrev_b32 v4, 2, v3\nv_and_b32 v3, 3, v3\nv_lshlrev_b32 v4, 5, v4\nv_lshl_add_u32 v4, v3, 2, v4')
    a('s_waitcnt lgkmcnt(0)')
    for e in range(4): a(f'v_add_f32 {U[e]}, {U[e]}, {U[e+4]}')
    a(f'v_add_f32 {U[0]}, {U[0]}, {U[1]}\nv_add_f32 {U[2]}, {U[2]}, {U[3]}\nv_add_f32 {U[0]}, {U[0]}, {U[2]}')
    for sh in (8, 4, 2, 1):
        a('s_nop 1')
        a(f'v_add_f32_dpp {U[0]}, {U[0]}, {U[0]} row_ror:{sh} row_mask:0xf bank_mask:0xf')
    a(f'v_add_f32 {U[0]}, s30, {U[0]}\nv_mul_f32 {U[0]}, s31, {U[0]}')
    a(f'buffer_store_dword {U[0]}, v4, s[24:27], s32 offen')
    a('s_endpgm')
    b = Prog()
    T = R('v', 8, 12); XR = R('v', 20, 8); V = R('v', 28, 16); xo, fo = R('v', 3), R('v', 4)
    b('s_sub_u32 s3, s2, 192')
    ln_addr(b, lane, wv, xo, fo, None, T)
    b('s_lshl_b32 s28, s3, 13')
    load_x(b, XR, xo, 's[12:15]', 's28')
    b(f's_lshr_b32 s29, s3, 1\ns_lshl_b32 s29, s29, 14\ns_and_b32 s30, s3, 1\ns_lshl_b32 s30, s30, 7\ns_add_u32 s29, s29, s30\ns_add_u32 s29, s29, {WS_XN}')
    b('s_waitcnt vmcnt(0)')
    unpack(b, V, XR)
    ln_stats(b, V, T, lane, wv)
    for k in range(8): b(f'v_cvt_pk_f16_f32 {XR[k]}, {V[2*k]}, {V[2*k+1]}')
    for i in range(2): b(f'buffer_store_dwordx4 {XR.sub(4*i,4)}, {fo}, s[24:27], s29 offen offset:{2048*i}')
    check_trace(head + a.lines, 'k0 mod'); check_trace(head + b.lines, 'k0 xn')
    p.extend(a); p('L_k0_xn:'); p.extend(b)
    p('L_k0_end:\ns_endpgm')
    q = Prog()
    q(f'.globl {name}\n.p2align 8\n.type {name},@function\n{name}:')
    q.extend(p)
    return q, kernel_footer(name, 48, 0, 48), f'kernel={name} grid=(448,1,1) block=(256,1,1) lds=8192'

def k2(name='k2_kernel'):
    p = Prog()
    lane, wv = R('v', 1), R('v', 2)
    p('s_cmp_ge_u32 s2, 256\ns_cbranch_scc1 L_k2_end')
    p('s_load_dwordx2 s[4:5], s[0:1], 0')
    p('s_load_dwordx2 s[6:7], s[0:1], 104')
    p(f'v_and_b32 {lane}, 63, v0\nv_lshrrev_b32 {wv}, 6, v0')
    T = R('v', 8, 12); XR = R('v', 20, 8); V = R('v', 28, 16); xo, fo, vo = R('v', 3), R('v', 4), R('v', 5)
    PT = R('v', 44, 64); GA = R('v', 108, 16); SC = R('v', 124, 16); SH = R('v', 140, 16); A = R('v', 156, 16)
    ln_addr(p, lane, wv, xo, fo, vo, T)
    p('s_lshr_b32 s29, s2, 1\ns_lshl_b32 s29, s29, 14\ns_and_b32 s30, s2, 1\ns_lshl_b32 s30, s30, 7\ns_add_u32 s29, s29, s30')
    p(f's_add_u32 s30, s29, {WS_PART}')
    p('s_lshl_b32 s28, s2, 13')
    p('s_waitcnt lgkmcnt(0)')
    srd(p, 12, 's4', 's5', 0x200000)
    srd(p, 24, 's6', 's7', WS_END)
    for g in range(8):
        for i in range(2):
            p(f'buffer_load_dwordx4 {PT.sub(8*g+4*i,4)}, {fo}, s[24:27], s30 offen offset:{2048*i}')
        if g < 7: p(f's_add_u32 s30, s30, {2<<20}')
    load_x(p, XR, xo, 's[12:15]', 's28')
    for D, off in ((GA, MOD_GA), (SC, MOD_SC2), (SH, MOD_SH2)):
        p(f's_mov_b32 s31, {WS_MOD + off}')
        for i in range(2):
            for hh in range(2):
                p(f'buffer_load_dwordx4 {D.sub(8*i+4*hh,4)}, {vo}, s[24:27], s31 offen offset:{256*i + 16*hh}')
    p('s_mov_b32 s32, 0x00003f80\ns_mov_b32 s33, 0x3f800000')
    for g in range(8):
        p(f's_waitcnt vmcnt({16 + 2*(7-g)})')
        for k in range(8):
            if g == 0:
                p(f'v_lshlrev_b32 {A[2*k]}, 16, {PT[k]}')
                p(f'v_and_b32 {A[2*k+1]}, 0xffff0000, {PT[k]}')
            else:
                p(f'v_dot2_f32_bf16 {A[2*k]}, {PT[8*g+k]}, s32, {A[2*k]}')
                p(f'v_dot2_f32_bf16 {A[2*k+1]}, {PT[8*g+k]}, s33, {A[2*k+1]}')
    p('s_waitcnt vmcnt(8)')
    unpack(p, V, XR)
    for i in range(16): p(f'v_fmac_f32 {V[i]}, {GA[i]}, {A[i]}')
    for k in range(8): p(f'v_cvt_pk_bf16_f32 {XR[k]}, {V[2*k]}, {V[2*k+1]}')
    p(f's_add_u32 s30, s29, {WS_X1}')
    for i in range(2): p(f'buffer_store_dwordx4 {XR.sub(4*i,4)}, {fo}, s[24:27], s30 offen offset:{2048*i}')
    ln_stats(p, V, T, lane, wv)
    p('s_waitcnt vmcnt(2)')
    for i in range(16): p(f'v_fma_f32 {V[i]}, {V[i]}, {SC[i]}, {SH[i]}')
    for k in range(8): p(f'v_cvt_pk_bf16_f32 {PT[k]}, {V[2*k]}, {V[2*k+1]}')
    p(f's_add_u32 s30, s29, {WS_H2}')
    for i in range(2): p(f'buffer_store_dwordx4 {PT.sub(4*i,4)}, {fo}, s[24:27], s30 offen offset:{2048*i}')
    check_trace(p.lines, 'k2')
    p('L_k2_end:\ns_endpgm')
    q = Prog()
    q(f'.globl {name}\n.p2align 8\n.type {name},@function\n{name}:')
    q.extend(p)
    return q, kernel_footer(name, 172, 0, 48), f'kernel={name} grid=(256,1,1) block=(256,1,1) lds=98304'
```

```python
WS_MOD = 0
MOD_SH1, MOD_SC1 = 0, 2048
MOD_GA, MOD_SH2, MOD_SC2, MOD_GB = 4096, 6144, 8192, 10240
WS_XN = 1 << 20
WS_PART = 4 << 20
WS_X1 = 20 << 20
WS_H2 = 22 << 20
WS_ACT = 24 << 20
WS_STAMP = 32 << 20
WS_END = 34 << 20
```

```python
import sys
from gen_small import k0, k2
from gen_k1 import k1
from gen_ffn import k3, k4
from build import assemble
stamp = 'stamp' in sys.argv
out = sys.argv[1]
open(out, 'w').write(assemble([k0(), k1(stamp=stamp), k2(), k3(stamp=stamp), k4(stamp=stamp)]))
```

```python
import sys
from asmlib import *
from gen_small import k0, k2
from gen_k1 import k1
from gen_ffn import k3, k4
from build import assemble
def empty(name):
    q = Prog()
    q(f'.globl {name}\n.p2align 8\n.type {name},@function\n{name}:\ns_endpgm')
    return q, kernel_footer(name, 8, 0, 16), f'kernel={name} grid=(256,1,1) block=(256,1,1) lds=0'
ks = [k0(), k1(), k2(), k3(), k4()]
e = [empty(f'e{i}_kernel') for i in range(4)]
open('v_a.s', 'w').write(assemble(ks))
open('v_b.s', 'w').write(assemble(ks + e))
open('v_c.s', 'w').write(assemble(e + ks))
```

```python
from gen_attn import *
from layout import *
from gen_tail import *
from gen_small import srd

def kf(name='kf_kernel', stamp=False, pf=True):
    r = AttnRegs()
    lane, wv = R('v', 0), R('v', 1)
    S_WQ = R('s', 40, 4); S_WS = R('s', 24, 4)
    S_QOFF = R('s', 31)
    S_PASS = R('s', 44); S_HOOK = R('s', 21)
    S_KB = R('s', 46, 2); S_VB = R('s', 48, 2); S_WOB = R('s', 50, 2)
    t = r.tmp
    def stampit(p, k):
        if stamp:
            if hasattr(p, 'wait_all'): p.wait_all(vm=False, ds=True)
            p(f's_waitcnt lgkmcnt(0)\ns_memtime s[96:97]\ns_memrealtime s[98:99]\ns_waitcnt lgkmcnt(0)\ns_mov_b32 s{64+2*k}, s96\ns_mov_b32 s{65+2*k}, s98')
    pro = Prog()
    pro(f's_cmp_ge_u32 s2, 256\ns_cbranch_scc1 L_k1_end')
    pro('s_load_dwordx8 s[4:11], s[0:1], 8')
    pro('s_load_dwordx2 s[20:21], s[0:1], 104')
    pro('s_load_dwordx4 s[92:95], s[0:1], 48\ns_load_dwordx2 s[90:91], s[0:1], 64')
    pro('s_load_dwordx2 s[52:53], s[0:1], 0\ns_load_dwordx2 s[56:57], s[0:1], 88')
    stampit(pro, 0)
    pro(f'v_lshrrev_b32 {wv}, 6, v0')
    pro(f'v_and_b32 v0, 63, v0')
    pro(f'v_readfirstlane_b32 {S_WAVE}, {wv}')
    if OPT.get('cpf', 1):
        pro('s_getpc_b64 s[40:41]')
        pro(f's_mov_b32 s42, L_k1_codeend-{name}-64\ns_mov_b32 s43, 0x20000')
        pro(f'v_and_b32 v254, 7, v0\nv_lshlrev_b32 v254, 6, v254\nv_lshl_add_u32 v254, {wv}, 9, v254')
        pro('s_lshr_b32 s3, s2, 3\ns_lshl_b32 s3, s3, 11')
        pro('buffer_load_dword v8, v254, s[40:43], s3 offen')
    pro('s_and_b32 s22, s2, 7')
    pro('s_lshr_b32 s3, s2, 3')
    pro('s_lshl_b32 s23, s22, 19')
    pro(f's_lshl_b32 {S_WLDS}, {S_WAVE}, 12')
    pro(f'v_lshlrev_b32 {r.ba[0]}, 4, {lane}')
    pro(f'v_lshrrev_b32 {t[1]}, 4, {lane}')
    pro(f'v_lshlrev_b32 {t[5]}, 5, {t[1]}')
    pro('s_waitcnt lgkmcnt(0)')
    pro(f's_mov_b32 s24, s20\ns_mov_b32 s25, s21\ns_mov_b32 s26, {WS_END}\ns_mov_b32 s27, 0x20000')
    X = r.ACC.sub(0, 64); SC = r.ACC.sub(64, 64)
    pro(f's_lshl_b32 s28, s3, 16\ns_add_u32 s28, s28, {S_WLDS}\ns_add_u32 s28, s28, {WS_XN}')
    pro(f's_lshl_b32 s29, {S_WAVE}, 9\ns_add_u32 s29, s29, {WS_MOD}')
    for s in range(4):
        for i in range(2):
            pro(f'buffer_load_dwordx4 {SC.sub(16*s+4*i,4)}, {t[5]}, {S_WS}, s29 offen offset:{MOD_SC1 + 128*s + 16*i}')
            pro(f'buffer_load_dwordx4 {SC.sub(16*s+8+4*i,4)}, {t[5]}, {S_WS}, s29 offen offset:{MOD_SH1 + 128*s + 16*i}')
    for rb in range(4):
        for s in range(4):
            pro(f'buffer_load_dwordx4 {X.sub(16*rb+4*s,4)}, {r.ba[0]}, {S_WS}, s28 offen offset:{s*1024}')
        if rb < 3: pro('s_add_u32 s28, s28, 16384')
    pro('s_mov_b32 s54, 0x200000\ns_mov_b32 s55, 0x20000\ns_mov_b32 s58, 0x200000\ns_mov_b32 s59, 0x20000')
    pro(f's_add_u32 {S_KB[0]}, s4, s23\ns_addc_u32 {S_KB[1]}, s5, 0')
    pro(f's_add_u32 {S_VB[0]}, s6, s23\ns_addc_u32 {S_VB[1]}, s7, 0')
    pro(f's_add_u32 {S_WOB[0]}, s10, s23\ns_addc_u32 {S_WOB[1]}, s11, 0')
    pro(f's_mov_b32 {S_WQ[0]}, s8\ns_mov_b32 {S_WQ[1]}, s9\ns_mov_b32 {S_WQ[2]}, 0x400000\ns_mov_b32 {S_WQ[3]}, 0x20000')
    PF = R('v', 254); PFD = R('v', 255)
    if pf:
        pro(f'v_and_b32 {t[0]}, 15, {lane}\nv_lshlrev_b32 {t[0]}, 6, {t[0]}\nv_lshl_add_u32 {PF}, {t[1]}, 13, {t[0]}')
        pro(f's_lshl_b32 s28, s3, 2\ns_add_u32 s28, s28, {S_WAVE}\ns_lshl_b32 s28, s28, 15\ns_lshl_b32 s29, s22, 10\ns_add_u32 s28, s28, s29')
        pro(f'buffer_load_dword {PFD}, {PF}, {S_WQ}, s28 offen')
    def set_kv_srd(p):
        p(f's_mov_b32 s8, {S_KB[0]}\ns_mov_b32 s9, {S_KB[1]}\ns_mov_b32 s10, 0x80000\ns_mov_b32 s11, 0x20000')
        p(f's_mov_b32 s12, {S_VB[0]}\ns_mov_b32 s13, {S_VB[1]}\ns_mov_b32 s14, 0x80000\ns_mov_b32 s15, 0x20000')
        p(f's_mov_b32 {S_STEP}, 16384\ns_mov_b32 {S_SOFF}, 0')
    set_kv_srd(pro)
    def w_voff(p, dst, stride_log2):
        p(f'v_and_b32 {t[0]}, 15, {lane}')
        p(f'v_lshrrev_b32 {t[1]}, 4, {lane}')
        p(f'v_lshlrev_b32 {t[2]}, 1, {t[1]}')
        p(f'v_xor_b32 {t[2]}, {t[0]}, {t[2]}')
        p(f'v_lshlrev_b32 {t[2]}, 4, {t[2]}')
        p(f'v_lshl_add_u32 {dst[0]}, {t[1]}, {stride_log2}, {t[2]}')
        st = 4 * (1 << stride_log2) - 1024
        p(f'v_xor_b32 {dst[1]}, 128, {dst[0]}')
        p(f'v_add_u32 {dst[1]}, {st}, {dst[1]}')
        p(f'v_add_u32 {dst[2]}, {2*st}, {dst[0]}')
        p(f'v_add_u32 {dst[3]}, {2*st}, {dst[1]}')
    w_voff(pro, r.dw, 13)
    pro(f's_lshl_b32 {S_QOFF}, s22, 2\ns_add_u32 {S_QOFF}, {S_QOFF}, {S_WAVE}\ns_lshl_b32 {S_QOFF}, {S_QOFF}, 8')
    qslot = lambda ks: (ks + 2) % 3
    def q_dma(h):
        ks, u = h >> 1, h & 1
        base = (VBASE if u else KBASE) + qslot(ks) * 16384
        if ks < 16:
            out = []
            for p in range(4):
                pre = [f's_add_u32 m0, {S_WLDS}, {base}'] if p == 0 else []
                if p == 0 and h > 0: pre = [f's_add_u32 {S_QOFF}, {S_QOFF}, {16*8192}'] + pre
                out.append((pre, f'buffer_load_dwordx4 {r.dw[p]}, {S_WQ}, {S_QOFF} offen offset:{1024*p} lds'))
            return out
        if ks < 18:
            d = dma_tile(r, ks - 16)[4*u:4*u+4]
            if ks == 17 and u == 0:
                d[0] = ([f's_add_u32 {S_SOFF}, {S_SOFF}, {S_STEP}'] + d[0][0], d[0][1])
            return d
        return []
    for h in range(6):
        for pre, ins in q_dma(h):
            for x in pre: pro(x)
            if pre: pro('s_nop 0')
            pro(ins)
    setup_dma_kv(pro, r, lane, wv)
    setup_addr(pro, r, lane, wv)
    pro(f'v_add_u32 {r.ba[1]}, {VBASE + 3*16384}, {r.ba[0]}')
    pro(f'v_lshrrev_b32 {t[2]}, 2, {lane}')
    pro(f'v_and_b32 {t[3]}, 7, {t[2]}')
    pro(f'v_lshlrev_b32 {t[3]}, 1, {t[3]}')
    pro(f'v_and_b32 {t[4]}, 3, {lane}')
    pro(f'v_xor_b32 {t[3]}, {t[3]}, {t[4]}')
    pro(f'v_lshlrev_b32 {t[3]}, 4, {t[3]}')
    pro(f'v_lshl_add_u32 {t[3]}, {t[2]}, 8, {t[3]}')
    pro(f'v_add_u32 {r.wa0[0]}, {S_WLDS}, {t[3]}')
    for nt in range(1, 8):
        pro(f'v_xor_b32 {r.wa0[nt]}, {64*(nt>>1) + 8*(nt&1)}, {r.wa0[0]}')
    for nt in range(8):
        pro(f'v_add_u32 {r.wa1q[nt]}, {VBASE}, {r.wa0[nt]}')
    def zero_ov(p):
        for i in range(128): p(f'v_accvgpr_write_b32 {r.O[i]}, 0')
        for i in range(64): p(f'v_accvgpr_write_b32 {r.Vf[i]}, 0')
    zero_ov(pro)
    pro(f's_mov_b32 {S_PASS}, 0\ns_mov_b32 {S_HOOK}, 0x1fe\ns_mov_b32 {S_TAG}, 1')
    wr = [R('v', 9), R('v', 10)]
    pro(f'v_add_u32 {wr[0]}, {S_WLDS}, {r.ba[0]}')
    pro(f'v_add_u32 {wr[1]}, {S_WLDS}, {r.ba[1]}')
    wr2 = R('v', 11)
    pro(f'v_add_u32 {wr2}, {S_WLDS}, {wr[1]}')
    def frag_write(s, rb, D):
        if s == 0: return f'ds_write_b128 {wr[0]}, {D} offset:{KBASE + 3*16384 + 1024*rb}'
        if s == 1: return f'ds_write_b128 {wr[1]}, {D} offset:{1024*rb}'
        return f'ds_write_b128 {wr2}, {D} offset:{16384 + (s-2)*4096 + 1024*rb}'
    T = r.B1
    for rb in range(4):
        pro(f's_waitcnt vmcnt({24 + (1 if pf else 0) + 4*(3-rb)})')
        for s in range(4):
            x = X.sub(16*rb+4*s, 4); tt = T.sub(8*(s&1), 8)
            for i in range(8):
                hi = i & 1
                pro(f'v_fma_mix_f32 {tt[i]}, {x[i>>1]}, {SC[16*s+i]}, {SC[16*s+8+i]} op_sel:[{hi},0,0] op_sel_hi:[1,0,0]')
            for i in range(4):
                pro(f'v_cvt_pk_bf16_f32 {x[i]}, {tt[2*i]}, {tt[2*i+1]}')
            pro(frag_write(s, rb, x))
    pro('s_waitcnt lgkmcnt(0)')
    pro('s_barrier')
    stampit(pro, 1)
    def q_finish(i):
        out = []
        for rb in range(4):
            for k in range(4):
                a = r.ACC.sub(16*(2*i + (k>>1)) + 4*rb, 4)
                out.append(f'v_cvt_pk_bf16_f32 {r.q(rb, i)[k]}, {a[2*(k&1)]}, {a[2*(k&1)+1]}')
        return out
    pro.extend(gemm(r, r.wa0, r.wa1q, qslot, q_dma, q_finish))
    pro(f's_add_u32 {S_SOFF}, {S_SOFF}, {S_STEP}')
    stampit(pro, 2)
    body = []; tails = None
    for j4 in (3, 0, 1, 2):
        ex = None
        if j4 == 0:
            ex = {96: [f's_bitcmp1_b32 {S_HOOK}, {S_CNT}'], 98: ['s_cbranch_scc1 L_k1_switch', 'L_k1_back:']}
        if j4 == 2:
            ex = {120: [f's_sub_u32 {S_CNT}, {S_CNT}, 1'], 122: [f's_cmp_lg_u32 {S_CNT}, 0']}
        if OPT.get('itst'):
            ex = dict(ex or {})
            idx = (3, 0, 1, 2).index(j4)
            ex[4] = ['s_memtime s[96:97]']
            ex[6] = [f's_lshl_b32 s98, {S_CNT}, 2', f's_sub_u32 s98, {32 + idx}, s98']
            ex[16] = [f'v_cmp_eq_u32 vcc, s98, v0', f'v_mov_b32 {t[5]}, s96', 's_nop 1', f'v_cndmask_b32 v8, v8, {t[5]}, vcc']
        o, tails = iteration(r, j4, ex)
        body += o
    pro('s_waitcnt vmcnt(8)')
    pro('s_barrier')
    kr = k_reads(r, 0)
    for d in kr[:15]: pro(d)
    pro('s_waitcnt lgkmcnt(11)')
    for qb in range(4):
        for ds in range(4):
            c = '0' if ds == 0 else r.s(qb, 0)
            pro(f'{MF} {r.s(qb, 0)}, {r.kf(0, ds)}, {r.q(qb, ds)}, {c}')
    for qb in range(4):
        s = r.s(qb, 0); x = r.nm(qb)
        if qb == 3: pro('s_nop 1')
        if qb == 2: pro('s_nop 0')
        pro(f'v_max3_f32 {x[0]}, {s[0]}, {s[1]}, {s[2]}')
        pro(f'v_max_f32 {x[0]}, {x[0]}, {s[3]}')
    ent = Prog()
    for qb in range(4): x = r.nm(qb); ent(f'v_mov_b32 {x[1]}, {x[0]}')
    for qb in range(4): x = r.nm(qb); ent(f'v_permlane32_swap_b32 {x[0]}, {x[1]}')
    for qb in range(4): x = r.nm(qb); ent(f'v_max_f32 {x[0]}, {x[0]}, {x[1]}')
    for qb in range(4): x = r.nm(qb); ent(f'v_mov_b32 {x[1]}, {x[0]}')
    for qb in range(4): x = r.nm(qb); ent(f'v_permlane16_swap_b32 {x[0]}, {x[1]}')
    for qb in range(4): x = r.nm(qb); ent(f'v_max_f32 {x[0]}, {x[0]}, {x[1]}')
    for qb in range(4):
        x = r.nm(qb)
        for i in (1, 2, 3, 0): ent(f'v_sub_f32 {x[i]}, 0, {x[0]}')
    exp_tail = {x.split()[1].rstrip(',') for x in tails if x.startswith('v_exp')}
    used = set()
    for x in tails:
        for tok in x.replace(',', ' ').split()[1:]: used.add(tok)
    for i in range(32, 64):
        if str(r.S[i]) in used:
            ent(f'v_mov_b32 {r.S[i]}, {"0xff800000" if str(r.S[i]) in exp_tail else "0"}')
    for i in range(16, 32): ent(f'v_mov_b32 {r.P[i]}, 0')
    for i in range(8): ent(f'v_mov_b32 {r.lm[i]}, 0')
    for i in range(4): ent(f'v_mov_b32 {r.la[i]}, 0')
    for i in range(4): ent(f'v_mov_b32 {r.ones[i]}, 0x3f803f80')
    ent(f's_mov_b32 {S_CNT}, 8')
    ent('s_waitcnt lgkmcnt(0)')
    S_T = R('s', 40, 4)
    S_U = 's60'
    XW = 's61'
    ST = r.B1
    def h_uidx(p):
        p(f's_lshl_b32 {S_U}, s3, 2\ns_add_u32 {S_U}, {S_U}, {S_WAVE}')
        p(f's_lshl_b32 {XW}, {S_WAVE}, 13\ns_add_u32 {XW}, {XW}, {XBASE}')
    def h_load_rows(p, lo, hi, nbytes, buf):
        p(f's_mov_b32 {S_T[0]}, {lo}\ns_mov_b32 {S_T[1]}, {hi}\ns_mov_b32 {S_T[2]}, {nbytes}')
        p(f'v_lshrrev_b32 {t[0]}, 3, {lane}\nv_and_b32 {t[1]}, 7, {lane}\nv_lshlrev_b32 {t[1]}, 4, {t[1]}\nv_lshl_add_u32 {t[0]}, {t[0]}, 10, {t[1]}')
        p(f's_lshr_b32 s28, {S_U}, 3\ns_lshl_b32 s28, s28, 15\ns_and_b32 s29, {S_U}, 7\ns_lshl_b32 s29, s29, 7\ns_add_u32 s28, s28, s29')
        p(f's_add_u32 m0, {XW}, {4096*buf}')
        for i in range(4):
            p('s_add_u32 s28, s28, 7168' if i else 's_nop 0')
            p(f'buffer_load_dwordx4 {t[0]}, {S_T}, s28 offen offset:{1024*i} lds')
    def h_read_rows(p, buf):
        p(f'v_lshrrev_b32 {t[0]}, 2, {lane}\nv_and_b32 {t[1]}, 3, {lane}\nv_lshlrev_b32 {t[1]}, 3, {t[1]}\nv_lshl_add_u32 {t[0]}, {t[0]}, 7, {t[1]}\nv_add_u32 {t[0]}, {XW}, {t[0]}')
        for n in range(4):
            for u in range(2):
                p(f'ds_read_b64_tr_b16 {ST.sub(4*n+2*u, 2)}, {t[0]} offset:{4096*buf + 32*n + 2048*u}')
    def h_store(p, n, so): p(f'buffer_store_dwordx4 {ST.sub(4*n, 4)}, {r.ba[0]}, {S_WS}, {so} offen sc1')
    def h_gbase(p):
        p(f's_bfe_u32 s29, {S_U}, 0x20001\ns_lshl_b32 s23, s22, 2\ns_add_u32 s29, s29, s23\ns_mul_i32 s29, s29, {WF_WAVE}\ns_add_u32 s29, s29, {WS_WF}')
        p(f's_and_b32 s23, {S_U}, 1')
    H = {}
    h = H[8] = Prog()
    h_uidx(h)
    h_load_rows(h, S_WOB[0], S_WOB[1], 0x80000, 0)
    h = H[7] = Prog()
    h_read_rows(h, 0)
    h_gbase(h)
    h(f's_lshl_b32 s23, s23, 16\ns_add_u32 s29, s29, s23')
    h(f's_lshr_b32 s23, {S_U}, 5\ns_lshl_b32 s23, s23, 13\ns_add_u32 s29, s29, s23')
    h(f's_bfe_u32 s23, {S_U}, 0x20003\ns_lshl_b32 s23, s23, 10\ns_add_u32 s29, s29, s23')
    h('s_waitcnt lgkmcnt(0)')
    for n in range(4):
        h_store(h, n, 's29')
        if n < 3: h(f's_add_u32 s29, s29, {4096 if n != 1 else 32768 - 4096}')
    h(f's_cmp_ge_u32 {S_U}, 112\ns_cbranch_scc1 L_k1_back')
    h(f'v_lshrrev_b32 {t[0]}, 2, {lane}\nv_mul_u32_u24 {t[0]}, 3584, {t[0]}\nv_and_b32 {t[1]}, 3, {lane}\nv_lshl_add_u32 {t[0]}, {t[1]}, 4, {t[0]}')
    h(f's_and_b32 s28, {S_U}, 15\ns_mul_i32 s28, s28, {32*3584}\ns_lshr_b32 s29, {S_U}, 4\ns_lshl_b32 s29, s29, 6\ns_add_u32 s28, s28, s29')
    h(f's_mul_i32 s29, s22, 448\ns_add_u32 s28, s28, s29\ns_add_u32 s29, s28, {16*3584 - 1024}')
    h(f's_mov_b32 {S_T[2]}, {512*3584}')
    for mtx in range(2):
        h(f's_add_u32 m0, {XW}, {4096 + 2048*mtx}')
        h(f's_mov_b32 {S_T[0]}, s{92+2*mtx}\ns_mov_b32 {S_T[1]}, s{93+2*mtx}')
        h(f'buffer_load_dwordx4 {t[0]}, {S_T}, s28 offen lds')
        h(f'buffer_load_dwordx4 {t[0]}, {S_T}, s29 offen offset:1024 lds')
    h = H[6] = Prog()
    h(f's_cmp_ge_u32 {S_U}, 112\ns_cbranch_scc1 L_k1_back')
    h(f'v_lshrrev_b32 {t[0]}, 2, {lane}\nv_lshlrev_b32 {t[0]}, 6, {t[0]}\nv_and_b32 {t[1]}, 1, {lane}\nv_lshl_add_u32 {t[0]}, {t[1]}, 3, {t[0]}')
    h(f'v_bfe_u32 {t[1]}, {lane}, 1, 1\nv_lshl_add_u32 {t[0]}, {t[1]}, 11, {t[0]}\nv_add_u32 {t[0]}, {XW}, {t[0]}')
    for n in range(4):
        for u in range(2):
            h(f'ds_read_b64_tr_b16 {ST.sub(4*n+2*u, 2)}, {t[0]} offset:{4096 + 16*n + 1024*u}')
    h(f's_mul_i32 s62, s22, {4*WF_WAVE}\ns_add_u32 s62, s62, {WS_WF + 128*1024}')
    h(f's_bfe_u32 s23, {S_U}, 0x20002\ns_mul_i32 s23, s23, {28*1024}\ns_add_u32 s62, s62, s23')
    h(f's_and_b32 s23, {S_U}, 3\ns_lshl_b32 s23, s23, 10\ns_add_u32 s62, s62, s23')
    h(f's_lshr_b32 s63, {S_U}, 4\ns_lshl_b32 s63, s63, 2')
    h('s_waitcnt lgkmcnt(0)')
    for n in range(4):
        h(f's_add_u32 s28, s63, {n}\ns_mul_i32 s29, s28, 37\ns_lshr_b32 s29, s29, 8\ns_mul_i32 s29, s29, {WF_WAVE - 28*1024}')
        h('s_lshl_b32 s28, s28, 12\ns_add_u32 s29, s29, s28\ns_add_u32 s29, s29, s62')
        h_store(h, n, 's29')
    h(f's_cmp_ge_u32 {S_U}, 56\ns_cbranch_scc1 L_k1_back')
    h(f's_mul_i32 s28, s22, {224*1024}\ns_add_u32 s62, s90, s28\ns_addc_u32 s63, s91, 0')
    h_load_rows(h, 's62', 's63', 224*1024, 0)
    h = H[5] = Prog()
    h(f's_cmp_ge_u32 {S_U}, 56\ns_cbranch_scc1 L_k1_back')
    h_read_rows(h, 0)
    h_gbase(h)
    h(f's_mul_i32 s23, s23, {28*1024}\ns_add_u32 s29, s29, s23')
    h(f's_lshr_b32 s23, {S_U}, 3\ns_add_u32 s23, s23, 240\ns_lshl_b32 s23, s23, 10\ns_add_u32 s29, s29, s23')
    h('s_waitcnt lgkmcnt(0)')
    for n in range(4):
        h_store(h, n, 's29')
        if n < 3: h(f's_add_u32 s29, s29, {7*1024}')
    h = H[4] = Prog()
    tail_setup(r, h)
    h(f's_lshl_b32 s28, s22, 7\ns_lshl_b32 s29, s3, 2\ns_add_u32 s28, s28, s29\ns_add_u32 s28, s28, {WS_PFLAG}')
    h(f'v_mov_b32 {t[0]}, {S_TAG}\nv_mov_b32 {t[1]}, 0')
    h(f'buffer_store_dword {t[0]}, {t[1]}, {S_WS}, s28 offen sc1')
    h = H[3] = Prog()
    h(f's_lshl_b32 s62, s22, 7\ns_add_u32 s62, s62, {WS_PFLAG}')
    h(f'buffer_load_dword {PFD}, v245, {S_WS}, s62 offen sc1')
    h = H[2] = Prog()
    h('s_mov_b32 s28, 0')
    h('L_k1_pchk:')
    h(f'v_cmp_ne_u32 vcc, {S_TAG}, {PFD}')
    h('s_add_u32 s28, s28, 1\ns_cmp_gt_u32 s28, 0x40000\ns_cbranch_scc1 L_k1_pok')
    h('s_cbranch_vccz L_k1_pok')
    h(f'buffer_load_dword {PFD}, v245, {S_WS}, s62 offen sc1')
    h('s_waitcnt vmcnt(0)')
    h('s_branch L_k1_pchk')
    h('L_k1_pok:')
    h(f'v_lshlrev_b32 {PF}, 6, {lane}')
    h(f's_mul_i32 s28, s22, {4*WF_WAVE}\ns_mul_i32 s29, {S_U}, {4*WF_WAVE//128}\ns_add_u32 s28, s28, s29\ns_add_u32 s28, s28, {WS_WF}')
    for i in range(3):
        h(f'buffer_load_dword {t[i]}, {PF}, {S_WS}, s28 offen {OPT["pfsc"]}')
        if i < 2: h(f's_add_u32 s28, s28, {4096 if i == 0 else 4*WF_WAVE//128 - 8192}')
    h = H[1] = Prog()
    for i in range(4): h(f'v_mov_b32 {r.dk[i]}, {r.ba[0]}\nv_mov_b32 {r.dv[i]}, {r.ba[0]}')
    h(f's_mov_b32 s8, s24\ns_mov_b32 s9, s25\ns_mov_b32 s10, {WS_END}')
    h(f's_add_u32 s12, s24, 4096\ns_addc_u32 s13, s25, 0\ns_mov_b32 s14, {WS_END - 4096}')
    h(f's_lshl_b32 {S_SOFF}, s22, 2\ns_add_u32 {S_SOFF}, {S_SOFF}, {S_WAVE}\ns_mul_i32 {S_SOFF}, {S_SOFF}, {WF_WAVE}\ns_add_u32 {S_SOFF}, {S_SOFF}, {WS_WF}')
    h(f's_mov_b32 {S_STEP}, 8192')
    epi = Prog()
    stampit(epi, 3)
    for x in tails:
        epi(x)
        if x.startswith('v_exp'): epi('s_nop 0')
    inv = [t[0], t[1], t[2], t[3]]
    va = []
    for pair in range(2):
        va.append(f'v_add_f32 {inv[2*pair]}, {r.la[2*pair]}, {r.la[2*pair+1]}')
    for pair in range(2): va.append(f'v_mov_b32 {t[4+pair]}, {inv[2*pair]}')
    va.append('s_nop 0')
    for pair in range(2): va.append(f'v_permlane32_swap_b32 {inv[2*pair]}, {t[4+pair]}')
    for pair in range(2): va.append(f'v_add_f32 {inv[2*pair]}, {inv[2*pair]}, {t[4+pair]}')
    for pair in range(2): va.append(f'v_mov_b32 {t[4+pair]}, {inv[2*pair]}')
    va.append('s_nop 0')
    for pair in range(2): va.append(f'v_permlane16_swap_b32 {inv[2*pair]}, {t[4+pair]}')
    for pair in range(2): va.append(f'v_add_f32 {inv[2*pair]}, {inv[2*pair]}, {t[4+pair]}')
    va.append(f'v_add_f32 {t[4]}, {inv[0]}, {inv[2]}')
    va.append(f'v_add_f32 {t[5]}, {r.lm[0]}, {r.lm[4]}')
    va.append(f'v_add_f32 {t[4]}, {t[4]}, {t[5]}')
    va.append(f'v_cmp_ngt_f32 vcc, 0x4e800000, {t[4]}')
    va.append(f'v_rcp_f32 {inv[0]}, {inv[0]}')
    va.append(f'v_rcp_f32 {inv[1]}, {r.lm[0]}')
    va.append(f's_cmp_lg_u64 vcc, 0')
    va.append(f's_cselect_b32 s28, 1, 0')
    va.append(f'v_and_b32 {t[4]}, 3, {lane}')
    va.append(f'v_lshlrev_b32 {t[4]}, 13, {t[4]}')
    va.append(f'v_lshl_add_u32 {t[4]}, {wv}, 2, {t[4]}')
    va.append(f'v_add_u32 {t[4]}, {XBASE}, {t[4]}')
    va.append(f'v_mov_b32 {t[5]}, s28')
    va.append(f'ds_write_b32 {t[4]}, {t[5]}')
    va.append(f'v_rcp_f32 {inv[2]}, {inv[2]}')
    va.append(f'v_rcp_f32 {inv[3]}, {r.lm[4]}')
    va.append(f'v_lshlrev_b32 {t[4]}, 13, {wv}')
    va.append(f'v_add_u32 {t[4]}, {XBASE}, {t[4]}')
    va.append('s_waitcnt lgkmcnt(0)')
    va.append('s_barrier')
    FL = r.B1.sub(0, 4)
    va.append(f'ds_read_b128 {FL}, {t[4]}')
    def norm(qb, s):
        T8 = r.S.sub(8 * ((qb * 4 + s) % 4), 8); D = r.S.sub(32 + 4 * ((qb * 4 + s) % 8), 4)
        o = []
        for i in range(8): o.append(f'v_accvgpr_read_b32 {T8[i]}, {r.O[32*qb + 8*s + i]}')
        for i in range(8): o.append(f'v_mul_f32 {T8[i]}, {T8[i]}, {inv[qb]}')
        for i in range(4): o.append(f'v_cvt_pk_bf16_f32 {D[i]}, {T8[2*i]}, {T8[2*i+1]}')
        o.append(frag_write(s, qb, D))
        return o
    va += norm(0, 0)
    va.append('s_waitcnt lgkmcnt(1)')
    va.append(f'v_or3_b32 {FL[0]}, {FL[0]}, {FL[1]}, {FL[2]}')
    va.append(f'v_or_b32 {FL[0]}, {FL[0]}, {FL[3]}')
    va.append('s_nop 0')
    va.append(f'v_readfirstlane_b32 s28, {FL[0]}')
    mf = [msum(r, 1, 0), msum(r, 1, 1)] + pv_mfmas(r, 1)
    epi('s_nop 0')
    for n, m in enumerate(mf):
        epi(m)
        k = 0
        while va and k < 2:
            x = va.pop(0); epi(x)
            k += 2 if x.startswith(('v_rcp', 'ds_')) else (0 if x.startswith('s_') else 1)
    for x in va: epi(x)
    epi('s_nop 1')
    epi(f's_andn2_b32 s28, s28, {S_PASS}')
    epi('s_cbranch_scc1 L_k1_fallback')
    e = Em(vq=['old'] * 8)
    st = AStream(a_regs(), r.ba[0])
    e(f's_add_u32 {S_AOFF}, {S_SOFF}, {-4096 & 0xffffffff}')
    st.skip(16)
    e(f'v_add_u32 {t[4]}, {VBASE}, {wr[0]}')
    e.wait(vm=['old'])
    for qb in range(4):
        for s in range(4):
            i = 4 * qb + s
            st.issue(e)
            nn = norm(qb, s) if (qb, s) != (0, 0) else []
            for x in nn[:10]: e(x)
            e(f'ds_read_b128 {st.regs[i]}, {t[4] if i & 4 else wr[0]} offset:{(i >> 3) * 16384 + (i & 3) * 1024}')
            e.seen.add(('A', i))
            for x in nn[10:]: e(x)
    e(f's_lshl_b32 s28, s22, 21\ns_lshl_b32 s29, s3, 16\ns_add_u32 s28, s28, s29\ns_add_u32 s28, s28, {S_WLDS}\ns_add_u32 s28, s28, {WS_PART}')
    for i in range(1, 4): e(f's_add_u32 s{32+i}, s28, {16384*i}')
    e('s_mov_b32 s32, s28')
    e('s_waitcnt lgkmcnt(0)')
    e('s_barrier')
    stampit(e, 4)
    tail(r, e, st, stampit)
    if stamp:
        e('s_waitcnt vmcnt(0)')
        stampit(e, 12)
        e(f's_lshl_b32 s28, s2, 9\ns_lshl_b32 s29, {S_WAVE}, 7\ns_add_u32 s28, s28, s29\ns_add_u32 s28, s28, {WS_STAMP}')
        if OPT.get('itst'):
            e(f's_lshl_b32 s30, s2, 10\ns_lshl_b32 s29, {S_WAVE}, 8\ns_add_u32 s30, s30, s29\ns_add_u32 s30, s30, {WS_STAMP + (1 << 18)}')
            e(f'v_lshlrev_b32 {t[0]}, 2, v0')
            e(f'buffer_store_dword v8, {t[0]}, {S_WS}, s30 offen')
        e(f'v_mov_b32 {t[0]}, 0')
        for k in range(13):
            e(f'v_mov_b32 {r.S[2*k]}, s{64+2*k}\nv_mov_b32 {r.S[2*k+1]}, s{65+2*k}')
            e(f'buffer_store_dwordx2 {r.S.sub(2*k,2)}, {t[0]}, {S_WS}, s28 offen offset:{8*k}')
    epi.extend(e.out)
    fb = Prog()
    fb('s_waitcnt vmcnt(0) lgkmcnt(0)')
    fb('s_barrier')
    set_kv_srd(fb)
    setup_dma_kv(fb, r, lane, wv)
    for qb in range(4): fb(f'v_mov_b32 {r.nm(qb)[0]}, 0xff800000')
    fb(f's_mov_b32 {S_CNT}, 32')
    fl = Prog()
    for pre, ins in dma_tile(r, 0)[:4]:
        for x in pre: fl(x); fl('s_nop 0')
        fl(ins)
    fl(f's_add_u32 {S_SOFF}, {S_SOFF}, {S_STEP}')
    fl('s_waitcnt vmcnt(0)')
    fl('s_barrier')
    for d in kr[:8]: fl(d)
    fl('s_waitcnt lgkmcnt(0)')
    for d in kr[8:]: fl(d)
    fl('s_waitcnt lgkmcnt(0)')
    fl('s_barrier')
    for kb in range(4):
        for qb in range(4):
            for ds in range(4):
                c = '0' if ds == 0 else r.s(qb, kb)
                fl(f'{MF} {r.s(qb, kb)}, {r.kf(kb, ds)}, {r.q(qb, ds)}, {c}')
    fl('s_nop 7')
    for kb in range(4):
        for qb in range(4):
            s = r.s(qb, kb); x = r.nm(qb)[0]
            fl(f'v_max3_f32 {x}, {x}, {s[0]}, {s[1]}')
            fl(f'v_max3_f32 {x}, {x}, {s[2]}, {s[3]}')
    fl(f's_sub_u32 {S_CNT}, {S_CNT}, 1')
    fl(f's_cmp_lg_u32 {S_CNT}, 0')
    fe = Prog()
    fe(f's_mov_b32 {S_SOFF}, 0\ns_mov_b32 {S_PASS}, 1\ns_mov_b32 {S_HOOK}, 2')
    for tt in range(2):
        for pre, ins in dma_tile(r, tt):
            for x in pre: fe(x); fe('s_nop 0')
            fe(ins)
        fe(f's_add_u32 {S_SOFF}, {S_SOFF}, {S_STEP}')
    zero_ov(fe)
    fe('s_waitcnt vmcnt(8)')
    fe('s_barrier')
    for d in kr[:15]: fe(d)
    def with_hook(b, blk):
        i = b.index('L_k1_back:')
        return b[:i] + blk.lines + ['s_branch L_k1_back'] + b[i:]
    br = ['s_cbranch_scc1 L_k1_loop']
    tr = pro.lines + ent.lines
    for c in range(8, 0, -1): tr += with_hook(body, H[c]) + br
    check_trace(tr + epi.lines, 'kf main')
    i = epi.lines.index('s_cbranch_scc1 L_k1_fallback')
    check_trace(body + br + epi.lines[:i+1] + fb.lines + fl.lines + br + fl.lines + br + fe.lines + ['s_branch x'] + ent.lines + body, 'k1 fallback')
    p = Prog()
    p(f'.globl {name}\n.p2align 8\n.type {name},@function\n{name}:')
    p.extend(pro)
    p('L_k1_entry:')
    p.extend(ent)
    p('.p2align 6\nL_k1_loop:')
    p.extend(body)
    p('s_cbranch_scc1 L_k1_loop')
    p.extend(epi)
    p('L_k1_end:\ns_endpgm')
    p('L_k1_switch:')
    for c in range(8, 1, -1): p(f's_cmp_eq_u32 {S_CNT}, {c}\ns_cbranch_scc1 L_k1_h{c}')
    for c in range(1, 9):
        p(f'L_k1_h{c}:')
        p.extend(H[c])
        p('s_branch L_k1_back')
    p('L_k1_fallback:')
    p.extend(fb)
    p('L_k1_fbloop:')
    p.extend(fl)
    p('s_cbranch_scc1 L_k1_fbloop')
    p.extend(fe)
    p('s_branch L_k1_entry')
    p('L_k1_codeend:')
    return p, kernel_footer(name, 256, 256, 100), f'kernel={name} grid=(256,1,1) block=(256,1,1) lds=163840'
```

```python
from asmlib import *
from layout import *
import math
CQ = math.log2(math.e) / math.sqrt(128.0)
import struct
def f32(x): return hex(struct.unpack('<I', struct.pack('<f', x))[0])

def srd(p, d, lo, hi, n):
    p(f's_mov_b32 s{d}, {lo}\ns_mov_b32 s{d+1}, {hi}\ns_mov_b32 s{d+2}, {n}\ns_mov_b32 s{d+3}, 0x20000')

def red_c8(p, xs, ts):
    p('s_nop 1')
    for x in xs: p(f'v_add_f32_dpp {x}, {x}, {x} row_ror:8 row_mask:0xf bank_mask:0xf')
    for sw in ('v_permlane32_swap_b32', 'v_permlane16_swap_b32'):
        for x, t in zip(xs, ts): p(f'v_mov_b32 {t}, {x}')
        p('s_nop 1')
        for x, t in zip(xs, ts): p(f'{sw} {x}, {t}')
        for x, t in zip(xs, ts): p(f'v_add_f32 {x}, {x}, {t}')

def ln_stats(p, V, T, lane, wv, base=0):
    s = T[8]; t = T[9]
    p(f'v_add_f32 {s}, {V[0]}, {V[1]}')
    p(f'v_add_f32 {t}, {V[2]}, {V[3]}')
    for i in range(4, 16, 2):
        p(f'v_add_f32 {s}, {s}, {V[i]}')
        p(f'v_add_f32 {t}, {t}, {V[i+1]}')
    p(f'v_add_f32 {s}, {s}, {t}')
    red_c8(p, [s], [t])
    p(f'v_mul_f32 {s}, {f32(1/128)}, {s}')
    for i in range(16): p(f'v_sub_f32 {V[i]}, {V[i]}, {s}')
    q = T[10]
    p(f'v_mul_f32 {t}, {V[0]}, {V[0]}')
    p(f'v_mul_f32 {q}, {V[1]}, {V[1]}')
    for i in range(2, 16, 2):
        p(f'v_fmac_f32 {t}, {V[i]}, {V[i]}')
        p(f'v_fmac_f32 {q}, {V[i+1]}, {V[i+1]}')
    p(f'v_add_f32 {t}, {t}, {q}')
    red_c8(p, [t], [q])
    a = T[11]
    p(f'v_and_b32 {a}, 7, {lane}')
    p(f'v_lshlrev_b32 {a}, 5, {a}')
    if base: p(f'v_add_u32 {a}, {base}, {a}')
    p(f'v_lshl_add_u32 {q}, {wv}, 3, {a}')
    p(f'ds_write_b64 {q}, {T.sub(8, 2)}')
    p('s_waitcnt lgkmcnt(0)')
    p('s_barrier')
    p(f'ds_read_b128 {T.sub(0, 4)}, {a}')
    p(f'ds_read_b128 {T.sub(4, 4)}, {a} offset:16')
    p('s_waitcnt lgkmcnt(0)')
    m = T[9]
    p(f'v_add_f32 {m}, {T[0]}, {T[2]}')
    p(f'v_add_f32 {q}, {T[4]}, {T[6]}')
    p(f'v_add_f32 {m}, {m}, {q}')
    p(f'v_mul_f32 {m}, 0.5, {m}')
    p(f'v_mul_f32 {m}, 0.5, {m}')
    for i in (0, 2, 4, 6): p(f'v_sub_f32 {T[i]}, {T[i]}, {m}')
    p(f'v_mul_f32 {q}, {T[0]}, {T[0]}')
    for i in (2, 4, 6): p(f'v_fmac_f32 {q}, {T[i]}, {T[i]}')
    p(f'v_add_f32 {T[1]}, {T[1]}, {T[3]}')
    p(f'v_add_f32 {T[5]}, {T[5]}, {T[7]}')
    p(f'v_add_f32 {T[1]}, {T[1]}, {T[5]}')
    p(f'v_fmac_f32 {T[1]}, {f32(128.0)}, {q}')
    p(f'v_mov_b32 {q}, {f32(1e-5)}')
    p(f'v_fmac_f32 {q}, {f32(1/512)}, {T[1]}')
    p(f'v_rsq_f32 {q}, {q}')
    p(f'v_sub_f32 {s}, {s}, {m}')
    p(f'v_mul_f32 {s}, {s}, {q}')
    for i in range(16): p(f'v_fma_f32 {V[i]}, {V[i]}, {q}, {s}')

def ln_addr(p, lane, wv, xo, fo, vo, T):
    r8, c8 = T[0], T[1]
    p(f'v_and_b32 {r8}, 7, {lane}')
    p(f'v_lshrrev_b32 {c8}, 3, {lane}')
    p(f'v_lshrrev_b32 {T[2]}, 2, {c8}')
    p(f'v_lshl_add_u32 {T[2]}, {wv}, 2, {T[2]}')
    p(f'v_and_b32 {T[3]}, 3, {c8}')
    p(f'v_lshlrev_b32 {xo}, 10, {r8}')
    p(f'v_lshl_add_u32 {xo}, {T[2]}, 6, {xo}')
    p(f'v_lshl_add_u32 {xo}, {T[3]}, 3, {xo}')
    p(f'v_lshlrev_b32 {fo}, 10, {T[2]}')
    p(f'v_lshl_add_u32 {fo}, {T[3]}, 8, {fo}')
    p(f'v_lshl_add_u32 {fo}, {r8}, 4, {fo}')
    if vo is not None:
        p(f'v_lshlrev_b32 {vo}, 7, {T[2]}')
        p(f'v_lshl_add_u32 {vo}, {T[3]}, 5, {vo}')

def load_x(p, XR, xo, sx, soff):
    for i in range(2):
        for u in range(2):
            p(f'buffer_load_dwordx2 {XR.sub(4*i+2*u, 2)}, {xo}, {sx}, {soff} offen offset:{128*i + 32*u}')

def unpack(p, V, XR):
    for k in range(8):
        p(f'v_lshlrev_b32 {V[2*k]}, 16, {XR[k]}')
        p(f'v_and_b32 {V[2*k+1]}, 0xffff0000, {XR[k]}')

def k0(name='k0_kernel'):
    p = Prog()
    lane, wv = R('v', 1), R('v', 2)
    p('s_cmp_ge_u32 s2, 448\ns_cbranch_scc1 L_k0_end')
    p('s_load_dwordx2 s[4:5], s[0:1], 0')
    p('s_load_dwordx4 s[8:11], s[0:1], 72')
    p('s_load_dwordx2 s[6:7], s[0:1], 104')
    p(f'v_and_b32 {lane}, 63, v0\nv_lshrrev_b32 {wv}, 6, v0')
    p('s_waitcnt lgkmcnt(0)')
    srd(p, 12, 's4', 's5', 0x200000)
    srd(p, 16, 's8', 's9', 1024)
    srd(p, 20, 's10', 's11', 512 * 6144)
    srd(p, 24, 's6', 's7', WS_END)
    head = list(p.lines)
    p('s_cmp_ge_u32 s2, 192\ns_cbranch_scc1 L_k0_xn')
    a = Prog()
    a('s_and_b32 s3, s2, 7\ns_mul_i32 s3, s3, 24\ns_lshr_b32 s28, s2, 3\ns_add_u32 s3, s3, s28')
    a('s_lshl_b32 s28, s3, 5')
    W = R('v', 8, 16); C = R('v', 24, 4); ACC = R('v', 28, 8); U = R('v', 36, 8)
    a('v_lshrrev_b32 v3, 1, v0')
    a('v_lshlrev_b32 v4, 1, v3')
    for i in range(4): a(f'buffer_load_ushort {C[i]}, v4, s[16:19], 0 offen offset:{256*i}')
    a('v_mul_u32_u24 v5, 6144, v3')
    a('v_and_b32 v6, 1, v0')
    a('v_lshl_add_u32 v5, v6, 4, v5')
    for i in range(4):
        a(f'buffer_load_dwordx4 {W.sub(4*i,4)}, v5, s[20:23], s28 offen')
        if i < 3: a(f's_add_u32 s28, s28, {128*6144}')
    a('s_lshr_b32 s29, s3, 5')
    a('s_cmp_eq_u32 s29, 1\ns_cselect_b32 s30, 1.0, 0')
    a('s_cmp_eq_u32 s29, 4\ns_cselect_b32 s30, 1.0, s30')
    a(f's_cmp_lt_u32 s29, 2\ns_cselect_b32 s31, {f32(CQ)}, 1.0')
    a('s_lshr_b32 s32, s3, 1\ns_lshl_b32 s32, s32, 7\ns_and_b32 s33, s3, 1\ns_lshl_b32 s33, s33, 4\ns_add_u32 s32, s32, s33')
    if WS_MOD: a(f's_add_u32 s32, s32, {WS_MOD}')
    a('s_waitcnt vmcnt(4)')
    for i in range(4): a(f'v_lshlrev_b32 {C[i]}, 16, {C[i]}')
    for i in range(4): a(f'v_mul_f32 {U[i]}, {f32(-math.log2(math.e))}, {C[i]}')
    for i in range(4): a(f'v_exp_f32 {U[i]}, {U[i]}')
    for i in range(4): a(f'v_add_f32 {U[i]}, 1.0, {U[i]}')
    for i in range(4): a(f'v_rcp_f32 {U[i]}, {U[i]}')
    for i in range(4): a(f'v_mul_f32 {C[i]}, {C[i]}, {U[i]}')
    for i in range(4):
        a(f's_waitcnt vmcnt({3-i})')
        for k in range(4):
            a(f'v_lshlrev_b32 {U[2*k]}, 16, {W[4*i+k]}')
            a(f'v_and_b32 {U[2*k+1]}, 0xffff0000, {W[4*i+k]}')
        for e in range(8):
            a(f'v_mul_f32 {ACC[e]}, {U[e]}, {C[i]}' if i == 0 else f'v_fmac_f32 {ACC[e]}, {U[e]}, {C[i]}')
    a('v_lshlrev_b32 v5, 12, v6\nv_lshl_add_u32 v5, v3, 2, v5')
    for e in range(8): a(f'ds_write_b32 v5, {ACC[e]} offset:{512*e}')
    a('v_lshlrev_b32 v5, 5, v0')
    a('s_waitcnt lgkmcnt(0)\ns_barrier')
    a(f'ds_read_b128 {U.sub(0,4)}, v5\nds_read_b128 {U.sub(4,4)}, v5 offset:16')
    a('v_lshrrev_b32 v3, 4, v0')
    a('v_lshrrev_b32 v4, 2, v3\nv_and_b32 v3, 3, v3\nv_lshlrev_b32 v4, 5, v4\nv_lshl_add_u32 v4, v3, 2, v4')
    a('s_waitcnt lgkmcnt(0)')
    for e in range(4): a(f'v_add_f32 {U[e]}, {U[e]}, {U[e+4]}')
    a(f'v_add_f32 {U[0]}, {U[0]}, {U[1]}\nv_add_f32 {U[2]}, {U[2]}, {U[3]}\nv_add_f32 {U[0]}, {U[0]}, {U[2]}')
    for sh in (8, 4, 2, 1):
        a('s_nop 1')
        a(f'v_add_f32_dpp {U[0]}, {U[0]}, {U[0]} row_ror:{sh} row_mask:0xf bank_mask:0xf')
    a(f'v_add_f32 {U[0]}, s30, {U[0]}\nv_mul_f32 {U[0]}, s31, {U[0]}')
    a(f'buffer_store_dword {U[0]}, v4, s[24:27], s32 offen')
    a('s_endpgm')
    b = Prog()
    T = R('v', 8, 12); XR = R('v', 20, 8); V = R('v', 28, 16); xo, fo = R('v', 3), R('v', 4)
    b('s_sub_u32 s3, s2, 192')
    ln_addr(b, lane, wv, xo, fo, None, T)
    b('s_lshl_b32 s28, s3, 13')
    load_x(b, XR, xo, 's[12:15]', 's28')
    b(f's_lshr_b32 s29, s3, 1\ns_lshl_b32 s29, s29, 14\ns_and_b32 s30, s3, 1\ns_lshl_b32 s30, s30, 7\ns_add_u32 s29, s29, s30\ns_add_u32 s29, s29, {WS_XN}')
    b(f'v_lshlrev_b32 v5, 2, v0\nv_mov_b32 v6, 0\ns_lshl_b32 s31, s3, 10\ns_add_u32 s31, s31, {WS_FLAG}')
    b('buffer_store_dword v6, v5, s[24:27], s31 offen')
    b('s_waitcnt vmcnt(1)')
    unpack(b, V, XR)
    ln_stats(b, V, T, lane, wv)
    for k in range(8): b(f'v_cvt_pk_f16_f32 {XR[k]}, {V[2*k]}, {V[2*k+1]}')
    for i in range(2): b(f'buffer_store_dwordx4 {XR.sub(4*i,4)}, {fo}, s[24:27], s29 offen offset:{2048*i}')
    check_trace(head + a.lines, 'k0 mod'); check_trace(head + b.lines, 'k0 xn')
    p.extend(a); p('L_k0_xn:'); p.extend(b)
    p('L_k0_end:\ns_endpgm')
    q = Prog()
    q(f'.globl {name}\n.p2align 8\n.type {name},@function\n{name}:')
    q.extend(p)
    return q, kernel_footer(name, 48, 0, 48), f'kernel={name} grid=(448,1,1) block=(256,1,1) lds=8192'

def k2(name='k2_kernel'):
    p = Prog()
    lane, wv = R('v', 1), R('v', 2)
    p('s_cmp_ge_u32 s2, 256\ns_cbranch_scc1 L_k2_end')
    p('s_load_dwordx2 s[4:5], s[0:1], 0')
    p('s_load_dwordx2 s[6:7], s[0:1], 104')
    p(f'v_and_b32 {lane}, 63, v0\nv_lshrrev_b32 {wv}, 6, v0')
    T = R('v', 8, 12); XR = R('v', 20, 8); V = R('v', 28, 16); xo, fo, vo = R('v', 3), R('v', 4), R('v', 5)
    PT = R('v', 44, 64); GA = R('v', 108, 16); SC = R('v', 124, 16); SH = R('v', 140, 16); A = R('v', 156, 16)
    ln_addr(p, lane, wv, xo, fo, vo, T)
    p('s_lshr_b32 s29, s2, 1\ns_lshl_b32 s29, s29, 14\ns_and_b32 s30, s2, 1\ns_lshl_b32 s30, s30, 7\ns_add_u32 s29, s29, s30')
    p(f's_add_u32 s30, s29, {WS_PART}')
    p('s_lshl_b32 s28, s2, 13')
    p('s_waitcnt lgkmcnt(0)')
    srd(p, 12, 's4', 's5', 0x200000)
    srd(p, 24, 's6', 's7', WS_END)
    for g in range(8):
        for i in range(2):
            p(f'buffer_load_dwordx4 {PT.sub(8*g+4*i,4)}, {fo}, s[24:27], s30 offen offset:{2048*i}')
        if g < 7: p(f's_add_u32 s30, s30, {2<<20}')
    load_x(p, XR, xo, 's[12:15]', 's28')
    for D, off in ((GA, MOD_GA), (SC, MOD_SC2), (SH, MOD_SH2)):
        p(f's_mov_b32 s31, {WS_MOD + off}')
        for i in range(2):
            for hh in range(2):
                p(f'buffer_load_dwordx4 {D.sub(8*i+4*hh,4)}, {vo}, s[24:27], s31 offen offset:{256*i + 16*hh}')
    p('s_mov_b32 s32, 0x00003f80\ns_mov_b32 s33, 0x3f800000')
    for g in range(8):
        p(f's_waitcnt vmcnt({16 + 2*(7-g)})')
        for k in range(8):
            if g == 0:
                p(f'v_lshlrev_b32 {A[2*k]}, 16, {PT[k]}')
                p(f'v_and_b32 {A[2*k+1]}, 0xffff0000, {PT[k]}')
            else:
                p(f'v_dot2_f32_bf16 {A[2*k]}, {PT[8*g+k]}, s32, {A[2*k]}')
                p(f'v_dot2_f32_bf16 {A[2*k+1]}, {PT[8*g+k]}, s33, {A[2*k+1]}')
    p('s_waitcnt vmcnt(8)')
    unpack(p, V, XR)
    for i in range(16): p(f'v_fmac_f32 {V[i]}, {GA[i]}, {A[i]}')
    for k in range(8): p(f'v_cvt_pk_bf16_f32 {XR[k]}, {V[2*k]}, {V[2*k+1]}')
    p(f's_add_u32 s30, s29, {WS_X1}')
    for i in range(2): p(f'buffer_store_dwordx4 {XR.sub(4*i,4)}, {fo}, s[24:27], s30 offen offset:{2048*i}')
    ln_stats(p, V, T, lane, wv)
    p('s_waitcnt vmcnt(2)')
    for i in range(16): p(f'v_fma_f32 {V[i]}, {V[i]}, {SC[i]}, {SH[i]}')
    for k in range(8): p(f'v_cvt_pk_bf16_f32 {PT[k]}, {V[2*k]}, {V[2*k+1]}')
    p(f's_add_u32 s30, s29, {WS_H2}')
    for i in range(2): p(f'buffer_store_dwordx4 {PT.sub(4*i,4)}, {fo}, s[24:27], s30 offen offset:{2048*i}')
    check_trace(p.lines, 'k2')
    p('L_k2_end:\ns_endpgm')
    q = Prog()
    q(f'.globl {name}\n.p2align 8\n.type {name},@function\n{name}:')
    q.extend(p)
    return q, kernel_footer(name, 172, 0, 48), f'kernel={name} grid=(256,1,1) block=(256,1,1) lds=98304'
```

```python
from gen_attn import *
from layout import *
from sched import Em
from gen_small import ln_stats, ln_addr, unpack, f32

S_WS = R('s', 24, 4)
S_AOFF = R('s', 31)
S_TAG = R('s', 45)
S_XS = R('s', 52, 4)
S_OS = R('s', 56, 4)
OPT = dict(opace=4.25, gpace=4.6, dpace=4.5, pre1=8, pre2=12, asc='sc1', pfsc='sc1', nostore=False)
H2B, ACTB, LNB = 0, 65536, 98304
ACTA = [220, 221, 222, 223, 249, 250, 251]

class AStream:
    def __init__(self, regs, l16):
        self.regs, self.n, self.l16 = regs, 0, l16
    def more(self): return self.n < len(self.regs)
    def skip(self, k):
        self.n += k
    def issue(self, e):
        i = self.n
        if i and i % 4 == 0: e(f's_add_u32 {S_AOFF}, {S_AOFF}, 4096')
        e.vm(f'buffer_load_dwordx4 {self.regs[i]}, {self.l16}, {S_WS}, {S_AOFF} offen offset:{1024 * (i % 4)} {OPT["asc"]}', ('A', i))
        self.n += 1

def a_regs():
    wo_ring = [R('v', 12 + 4 * i, 4) for i in range(16)] + [R('v', 140 + 4 * i, 4) for i in range(16)]
    ffn_ring = [R('a', 4 * i, 4) for i in range(32)] + [R('v', 140 + 4 * i, 4) for i in range(20)]
    return [wo_ring[i % 32] for i in range(128)] + [ffn_ring[i % 52] for i in range(168)]

def signal_and_poll(e, seam, lab, fa, pa, tmp, s_grp, s_own, pre=None):
    if pre: pre(e)
    e.wait(vm=['st'])
    e('s_barrier')
    e(f's_cmp_lg_u32 {S_WAVE}, 0')
    e(f's_cbranch_scc1 L_pout{lab}')
    e(f'v_mov_b32 {tmp[0]}, {S_TAG}')
    e(f'buffer_store_dword {tmp[0]}, {fa}, {S_WS}, {s_grp} offen offset:{128 * seam} sc1')
    e('s_mov_b32 s28, 0')
    e(f'L_poll{lab}:')
    e(f'buffer_load_dword {tmp[1]}, {pa}, {S_WS}, {s_own} offen offset:{128 * seam} sc1')
    e('s_add_u32 s28, s28, 1')
    e('s_cmp_gt_u32 s28, 0x40000')
    e('s_waitcnt vmcnt(0)')
    e(f's_cbranch_scc1 L_pout{lab}')
    e(f'v_cmp_ne_u32 vcc, {S_TAG}, {tmp[1]}')
    e('s_nop 0')
    e(f's_cbranch_vccnz L_poll{lab}')
    e(f'L_pout{lab}:')
    e('s_barrier')

class Pacer:
    def __init__(self, pace): self.pace, self.t = pace, -1e9
    def ok(self, n): return n >= self.t + self.pace
    def use(self, n): self.t = max(self.t + self.pace, n - 0.99)

def npass_gemm(e, bt, st, abase, nks, B, accb, D, s_st, l16, group, bread=None, late=None, a_ahead=None, pace=5, lead=20):
    ng = nks // group
    seq = []
    for p in range(4):
        for kg in range(ng):
            for tile in range(2):
                for rb in range(4):
                    for k in range(group):
                        ai = abase + p * 2 * nks + kg * 2 * group + tile * group + k
                        seq.append((p, kg, tile, rb, k, ai))
    acc = lambda p, tile, rb: accb.sub(32 * (p & 1) + 16 * tile + 4 * rb, 4)
    last_use, first_use = {}, {}
    for n, x in enumerate(seq):
        last_use[x[5]] = n; first_use.setdefault(x[5], n)
    pc = Pacer(pace)
    def fin(p):
        o = []
        for rb in range(4):
            d = D.sub(4 * rb, 4)
            for k in range(4):
                a = acc(p, k >> 1, rb)
                o.append(f'v_cvt_pk_bf16_f32 {d[k]}, {a[2*(k&1)]}, {a[2*(k&1)+1]}')
            o.append(f'buffer_store_dwordx4 {d}, {l16}, {S_WS}, {s_st[rb]} offen offset:{1024 * p} sc1')
        return o
    finq = []
    bread = list(bread or [])
    per = 8 * nks
    for n, (p, kg, tile, rb, k, ai) in enumerate(seq):
        if rb == 0 and k == 0:
            e.wait(vm=[('A', ai + j) for j in range(group)])
        if p == 0 and tile == 0:
            e.wait(ds=[(bt, kg * group + k, rb)])
        c = '0' if (kg == 0 and k == 0) else acc(p, tile, rb)
        e(f'{MF} {acc(p, tile, rb)}, {st.regs[ai]}, {B(kg * group + k, rb)}, {c}')
        if p > 0 and n % per == 4: finq += fin(p - 1)
        done = False
        if pc.ok(n):
            if finq and finq[0].startswith('buffer'):
                e.vm(finq.pop(0), 'st'); done = True
            elif st.more() and a_ahead(st.n, n, last_use):
                assert first_use.get(st.n, 1 << 30) - n >= lead, (st.n, n)
                st.issue(e); done = True
            elif late:
                f = late(n)
                if f: f(e); done = True
            if done: pc.use(n)
        if not done and bread:
            ins, tag = bread.pop(0); e.ds(ins, tag); done = True
        if not done:
            kk = 0
            while finq and kk < 2 and not finq[0].startswith('buffer'):
                e(finq.pop(0)); kk += 1
    assert not finq and not bread
    e('s_nop 4')
    for x in fin(3):
        if x.startswith('buffer'): e.vm(x, 'st')
        else: e(x)

def gather_sum(e, PT, A, fo, s_off, after=None, mid=None):
    for g in range(8):
        for i in range(2):
            e.vm(f'buffer_load_dwordx4 {PT.sub(8*g+4*i,4)}, {fo}, {S_WS}, {s_off} offen offset:{2048*i} sc1', ('pt', g))
        if g < 7: e(f's_add_u32 {s_off}, {s_off}, {2<<20}')
    if after: after(e)
    e('s_mov_b32 s28, 0x00003f80\ns_mov_b32 s29, 0x3f800000')
    for g in range(8):
        if mid: mid(e, g)
        e.wait(vm=[('pt', g)])
        for k in range(8):
            if g == 0:
                e(f'v_lshlrev_b32 {A[2*k]}, 16, {PT[k]}')
                e(f'v_and_b32 {A[2*k+1]}, 0xffff0000, {PT[k]}')
            else:
                e(f'v_dot2_f32_bf16 {A[2*k]}, {PT[8*g+k]}, s28, {A[2*k]}')
                e(f'v_dot2_f32_bf16 {A[2*k+1]}, {PT[8*g+k]}, s29, {A[2*k+1]}')

def tail(r, e, st, stampit):
    lane, wv = R('v', 0), R('v', 1)
    t = r.tmp
    l16 = r.ba[0]
    xo, fo, vo, fa, pa8, pa32 = [R('v', 240 + i) for i in range(6)]
    hb, aw0, ab = R('v', 246), R('v', 247), R('v', 248)
    S_GRP, S_OWN, S_ROW = R('s', 36), R('s', 37), R('s', 38)
    Bo = lambda ks, rb: R('a', 16 * ks + 4 * rb, 4)
    br = []
    for ks4 in range(4):
        for rb in range(4):
            for k in range(4):
                ks = 4 * ks4 + k
                ri, off = bfrag_loc(ks)
                br.append((f'ds_read_b128 {Bo(ks, rb)}, {r.ba[ri]} offset:{off + 1024 * rb}', ('Bo', ks, rb)))
    for ins, tag in br[:10]: e.ds(ins, tag)
    PT = R('v', 12, 64); A = R('v', 76, 16); T = R('v', 92, 12); X1 = R('v', 124, 16)
    XR = R('v', 204, 8); GA = R('v', 140, 16); SC = R('v', 156, 16); SH = R('v', 172, 16)
    lateq = []
    for i in range(2):
        for u in range(2):
            lateq.append((0, f'buffer_load_dwordx2 {XR.sub(4*i+2*u, 2)}, {xo}, {S_XS}, s39 offen offset:{128*i + 32*u}', 'x'))
    def a_ahead(i, n, last_use):
        if i < 128: return i < 32 or last_use[i - 32] <= n
        return False
    def late(n):
        if n >= 384 and lateq:
            _, ins, tag = lateq.pop(0)
            return lambda e: e.vm(ins, tag)
        return None
    npass_gemm(e, 'Bo', st, 0, 16, Bo, R('v', 76, 64), r.B1, [f's{32+i}' for i in range(4)], l16, 4, br[10:], None, a_ahead, pace=OPT['opace'])
    assert st.n == 128
    stampit(e, 5)
    def pre1(e):
        for _, ins, tag in lateq: e.vm(ins, tag)
        for D_, off in ((GA, MOD_GA), (SC, MOD_SC2), (SH, MOD_SH2)):
            e(f's_mov_b32 s29, {WS_MOD + off}')
            for i in range(2):
                for hh in range(2):
                    e.vm(f'buffer_load_dwordx4 {D_.sub(8*i+4*hh,4)}, {vo}, {S_WS}, s29 offen offset:{256*i + 16*hh}', 'mv')
        for _ in range(OPT['pre1']): st.issue(e)
    signal_and_poll(e, 0, 'a', fa, pa8, t, S_GRP, S_OWN, pre1)
    stampit(e, 6)
    e(f's_add_u32 s30, {S_ROW}, {WS_PART}')
    def after1(e):
        e.wait(vm=['x', 'mv'])
        unpack(e, X1, XR)
    def mid1(e, g):
        for _ in range(4):
            if st.n < 160: st.issue(e)
    gather_sum(e, PT, A, fo, 's30', after1, mid1)
    assert st.n == 160
    V = R('v', 104, 16)
    e('s_nop 0')
    for i in range(16): e(f'v_fmac_f32 {X1[i]}, {GA[i]}, {A[i]}')
    for i in range(16): e(f'v_mov_b32 {V[i]}, {X1[i]}')
    ln_stats(e, V, T, lane, wv, LNB)
    for i in range(16): e(f'v_fma_f32 {V[i]}, {V[i]}, {SC[i]}, {SH[i]}')
    for k in range(8): e(f'v_cvt_pk_bf16_f32 {PT[k]}, {V[2*k]}, {V[2*k+1]}')
    e(f's_add_u32 s30, {S_ROW}, {WS_H2}')
    for i in range(2): e.vm(f'buffer_store_dwordx4 {PT.sub(4*i,4)}, {fo}, {S_WS}, s30 offen offset:{2048*i} sc1', 'st')
    stampit(e, 7)
    def pre2(e):
        for _ in range(OPT['pre2']): st.issue(e)
        act_addr(r, e)
    signal_and_poll(e, 1, 'b', fa, pa8, t, S_GRP, S_OWN, pre2)
    stampit(e, 8)
    e(f's_lshl_b32 s30, s3, 2\ns_add_u32 s30, s30, {S_WAVE}\ns_lshl_b32 s30, s30, 14\ns_add_u32 s30, s30, {WS_H2}')
    e(f's_lshl_b32 s29, {S_WAVE}, 10')
    for ks in range(16):
        e(f's_add_u32 m0, s29, {H2B + ks * 4096}')
        if ks: e('s_add_u32 s30, s30, 1024')
        else: e('s_nop 0')
        e.vm(f'buffer_load_dwordx4 {l16}, {S_WS}, s30 offen sc1 lds', ('h', ks >> 2))
    Bf = lambda kg, k, rb: R('a', 128 + 64 * (kg & 1) + 16 * k + 4 * rb, 4)
    ACC = R('v', 12, 112)
    acc = lambda i, rb: ACC.sub(16 * i + 4 * rb, 4)
    def hreads(kg):
        return [(f'ds_read_b128 {Bf(kg, k, rb)}, {l16} offset:{H2B + (4*kg+k)*4096 + rb*1024}', ('Bh', kg, rb, k)) for rb in range(4) for k in range(4)]
    e.wait(vm=[('h', 0)])
    e('s_barrier')
    hq = hreads(0)
    for ins, tag in hq[:12]: e.ds(ins, tag)
    hq = hq[12:]
    TT = r.B1
    def act_fin(i):
        o = []
        for pr in range(2):
            X, Y = acc(i, 2 * pr), acc(i, 2 * pr + 1)
            for k in range(4): o.append(f'v_permlane32_swap_b32 {X[k]}, {Y[k]}')
            for k in range(4): o.append(f'v_max_f32 {X[k]}, 0, {X[k]}')
            for k in range(4): o.append(f'v_mul_f32 {X[k]}, {X[k]}, {Y[k]}')
            d = TT.sub(4 * (i & 1) + 2 * pr, 2)
            for k in range(2): o.append(f'v_cvt_pk_bf16_f32 {d[k]}, {X[2*k]}, {X[2*k+1]}')
            o.append(f'ds_write_b64 v{ACTA[i]}, {d} offset:{2048 * pr}')
        return o
    seq = [(kg, i, rb, k) for kg in range(4) for i in range(7) for rb in range(4) for k in range(4)]
    aidx = lambda kg, i, k: 128 + kg * 28 + i * 4 + k
    last, first = {}, {}
    for n, (kg, i, rb, k) in enumerate(seq):
        last[aidx(kg, i, k)] = n; first.setdefault(aidx(kg, i, k), n)
    pc = Pacer(OPT['gpace'])
    finq = []
    for n, (kg, i, rb, k) in enumerate(seq):
        m = n % 112
        if rb == 0 and k == 0: e.wait(vm=[('A', aidx(kg, i, j)) for j in range(4)])
        if i == 0 and k == 0: e.wait(ds=[('Bh', kg, rb, j) for j in range(4)])
        c = '0' if (kg == 0 and k == 0) else acc(i, rb)
        e(f'{MF} {acc(i, rb)}, {st.regs[aidx(kg, i, k)]}, {Bf(kg, k, rb)}, {c}')
        if m == 56 and kg < 3:
            e.wait(vm=[('h', kg + 1)])
            e('s_barrier')
            hq += hreads(kg + 1)
            continue
        if kg == 3 and m >= 20 and (m - 20) % 16 == 0: finq += act_fin((m - 20) // 16)
        if pc.ok(n) and st.more() and (st.n - 52 < 128 or last.get(st.n - 52, 1 << 30) <= n):
            assert first.get(st.n, 1 << 30) - n >= 20
            st.issue(e); pc.use(n); continue
        if hq and (n % 2 == 0 or kg == 0):
            ins, tag = hq.pop(0); e.ds(ins, tag); continue
        kk = 0
        while finq and kk < 2:
            x = finq[0]
            if x.startswith('ds_'):
                if kk: break
                e.ds(x, 'aw'); kk = 1
            else:
                e(x); kk += 1
            finq.pop(0)
    rest = finq + ['s_nop 1'] + act_fin(6)
    for x in rest:
        if x.startswith('ds_'): e.ds(x, 'aw')
        else: e(x)
    e.wait_all(vm=False, ds=True)
    e('s_barrier')
    stampit(e, 9)
    Bd = lambda ks, rb: R('a', 128 + 16 * ks + 4 * rb, 4)
    br = [(f'ds_read_b128 {Bd(ks, rb)}, {ab} offset:{ks*4096 + rb*1024}', ('Bd', ks, rb)) for rb in range(4) for ks in range(7)]
    for ins, tag in br[:10]: e.ds(ins, tag)
    for i in range(4): e(f's_add_u32 s{32+i}, s{32+i}, {WS_PART2 - WS_PART}')
    GBv = R('v', 92, 16)
    lateq = [f'buffer_load_dwordx4 {GBv.sub(8*i+4*hh,4)}, {vo}, {S_WS}, s29 offen offset:{256*i + 16*hh}' for i in range(2) for hh in range(2)]
    e(f's_mov_b32 s29, {WS_MOD + MOD_GB}')
    def a_ahead2(i, n, last_use):
        return (i - 52) < 240 or last_use[i - 52] <= n
    def late2(n):
        if n > 100 and lateq:
            ins = lateq.pop(0)
            return lambda e: e.vm(ins, 'gb')
        return None
    npass_gemm(e, 'Bd', st, 240, 7, Bd, R('v', 12, 64), R('v', 76, 16), [f's{32+i}' for i in range(4)], l16, 7, br[10:], late2, a_ahead2, pace=OPT['dpace'])
    assert not lateq and not st.more()
    stampit(e, 10)
    signal_and_poll(e, 2, 'c', fa, pa8, t, S_GRP, S_OWN)
    stampit(e, 11)
    e(f's_add_u32 s30, {S_ROW}, {WS_PART2}')
    gather_sum(e, PT, A, fo, 's30')
    e('s_nop 0')
    for i in range(16): e(f'v_fmac_f32 {X1[i]}, {GBv[i]}, {A[i]}')
    for k in range(8): e(f'v_cvt_pk_bf16_f32 {PT[k]}, {X1[2*k]}, {X1[2*k+1]}')
    for i in range(2):
        for u in range(2):
            e.vm(f'buffer_store_dwordx2 {PT.sub(4*i+2*u, 2)}, {xo}, {S_OS}, s39 offen offset:{128*i + 32*u}', 'st')

def tail_setup(r, p):
    lane, wv = R('v', 0), R('v', 1)
    t = r.tmp
    xo, fo, vo, fa, pa8, pa32 = [R('v', 240 + i) for i in range(6)]
    ab = R('v', 248)
    ln_addr(p, lane, wv, xo, fo, vo, t)
    p(f'v_and_b32 {t[0]}, 7, {lane}\nv_lshlrev_b32 {fa}, 9, {t[0]}')
    p(f'v_lshlrev_b32 {pa8}, 2, {t[0]}')
    p(f'v_and_b32 {t[0]}, 31, {lane}\nv_lshlrev_b32 {pa32}, 2, {t[0]}')
    p(f'v_add_u32 {ab}, {ACTB}, {r.ba[0]}')
    p(f's_lshl_b32 s36, s22, 2\ns_lshl_b32 s28, s3, 12\ns_add_u32 s36, s36, s28\ns_add_u32 s36, s36, {WS_FLAG}')
    p(f's_lshl_b32 s37, s2, 9\ns_add_u32 s37, s37, {WS_FLAG}')
    p('s_lshr_b32 s38, s2, 1\ns_lshl_b32 s38, s38, 14\ns_and_b32 s28, s2, 1\ns_lshl_b32 s28, s28, 7\ns_add_u32 s38, s38, s28')
    p('s_lshl_b32 s39, s2, 13')

def act_addr(r, p):
    lane, wv = R('v', 0), R('v', 1)
    t = r.tmp
    p(f'v_lshrrev_b32 {t[0]}, 5, {lane}\nv_lshlrev_b32 {t[0]}, 10, {t[0]}')
    p(f'v_and_b32 {t[1]}, 31, {lane}\nv_lshl_add_u32 {t[0]}, {t[1]}, 4, {t[0]}')
    p(f's_mul_i32 s29, {S_WAVE}, 7')
    for i in range(7):
        p(f's_add_u32 s28, s29, {i}')
        p('s_lshr_b32 s30, s28, 2\ns_lshl_b32 s30, s30, 12')
        p('s_bfe_u32 s23, s28, 0x10001\ns_lshl_b32 s23, s23, 3\ns_add_u32 s30, s30, s23')
        p('s_and_b32 s23, s28, 1\ns_lshl_b32 s23, s23, 9\ns_add_u32 s30, s30, s23')
        p(f's_add_u32 s30, s30, {ACTB}')
        p(f'v_add_u32 v{ACTA[i]}, s30, {t[0]}')
```

```python
WS_MOD = 0
MOD_SH1, MOD_SC1 = 0, 2048
MOD_GA, MOD_SH2, MOD_SC2, MOD_GB = 4096, 6144, 8192, 10240
WS_FLAG = 1 << 16
WS_PFLAG = WS_FLAG + 256 * 512
WS_FLAG_END = WS_PFLAG + 1024
WS_XN = 1 << 20
WS_PART = 4 << 20
WS_X1 = 20 << 20
WS_H2 = 22 << 20
WS_ACT = 24 << 20
WS_STAMP = 32 << 20
WS_PART2 = 34 << 20
WS_WF = 50 << 20
WF_WAVE = 296 * 1024
WS_END = 60 << 20
```

```python
class Em:
    def __init__(self, vq=None, lq=None):
        self.out = []
        self.vq = list(vq or [])
        self.lq = list(lq or [])
        self.seen = set(self.vq) | set(self.lq)
    def __call__(self, s):
        for l in s.split('\n'):
            l = l.strip()
            if l: self.out.append(l)
    def vm(self, ins, tag=None):
        self.out.append(ins); self.vq.append(tag); self.seen.add(tag)
        assert len(self.vq) <= 63, 'too many vm ops outstanding'
    def ds(self, ins, tag=None):
        self.out.append(ins); self.lq.append(tag); self.seen.add(tag)
    def _n(self, q, tags):
        idx = [i for i, x in enumerate(q) if x in tags]
        if not idx: return None
        return len(q) - 1 - max(idx)
    def wait(self, vm=(), ds=()):
        s = ''
        for x in list(vm) + list(ds): assert x in self.seen, f'wait for unissued {x}'
        n = self._n(self.vq, set(vm))
        if n is not None:
            s += f' vmcnt({n})'; self.vq = self.vq[len(self.vq) - n:]
        n = self._n(self.lq, set(ds))
        if n is not None:
            n = min(n, 15)
            s += f' lgkmcnt({n})'; self.lq = self.lq[len(self.lq) - n:]
        if s: self.out.append('s_waitcnt' + s)
    def wait_all(self, vm=True, ds=True):
        s = ''
        if vm: s += ' vmcnt(0)'; self.vq = []
        if ds: s += ' lgkmcnt(0)'; self.lq = []
        self.out.append('s_waitcnt' + s)
```

```python
import sys
from gen_small import k0
from gen_fused import kf
from build import assemble
import gen_tail, gen_attn
for a in sys.argv[2:]:
    if '=' in a:
        k, v = a.split('=')
        gen_tail.OPT[k] = int(v) if v.lstrip('-').isdigit() else (float(v) if v.replace('.','').isdigit() else v)
stamp = 'stamp' in sys.argv
open(sys.argv[1], 'w').write(assemble([k0(dbg=bool(gen_tail.OPT.get('dbg'))), kf(stamp=stamp)]))
```

```python
from gen_attn import *
from layout import *
from gen_tail import *
from gen_small import srd

def kf(name='kf_kernel', stamp=False, pf=True):
    r = AttnRegs()
    lane, wv = R('v', 0), R('v', 1)
    S_WQ = R('s', 40, 4); S_WS = R('s', 24, 4)
    S_QOFF = R('s', 31)
    S_PASS = R('s', 44); S_HOOK = R('s', 21)
    S_KB = R('s', 46, 2); S_VB = R('s', 48, 2); S_WOB = R('s', 50, 2)
    t = r.tmp
    def stampit(p, k):
        if stamp:
            if hasattr(p, 'wait_all'): p.wait_all(vm=False, ds=True)
            p(f's_waitcnt lgkmcnt(0)\ns_memtime s[96:97]\ns_memrealtime s[98:99]\ns_waitcnt lgkmcnt(0)\ns_mov_b32 s{64+2*k}, s96\ns_mov_b32 s{65+2*k}, s98')
    pro = Prog()
    pro(f's_cmp_ge_u32 s2, 256\ns_cbranch_scc1 L_k1_end')
    pro('s_load_dwordx8 s[4:11], s[0:1], 8')
    pro('s_load_dwordx2 s[20:21], s[0:1], 104')
    pro('s_load_dwordx4 s[92:95], s[0:1], 48\ns_load_dwordx2 s[90:91], s[0:1], 64')
    pro('s_load_dwordx2 s[52:53], s[0:1], 0\ns_load_dwordx2 s[56:57], s[0:1], 88')
    stampit(pro, 0)
    pro(f'v_lshrrev_b32 {wv}, 6, v0')
    pro(f'v_and_b32 v0, 63, v0')
    pro(f'v_readfirstlane_b32 {S_WAVE}, {wv}')
    if OPT.get('cpf', 1):
        pro('s_getpc_b64 s[40:41]')
        pro(f's_mov_b32 s42, L_k1_codeend-{name}-64\ns_mov_b32 s43, 0x20000')
        pro(f'v_and_b32 v254, 7, v0\nv_lshlrev_b32 v254, 6, v254\nv_lshl_add_u32 v254, {wv}, 9, v254')
        pro('s_lshr_b32 s3, s2, 3\ns_lshl_b32 s3, s3, 11')
        pro('buffer_load_dword v8, v254, s[40:43], s3 offen')
    pro('s_and_b32 s22, s2, 7')
    pro('s_lshr_b32 s3, s2, 3')
    pro('s_lshl_b32 s23, s22, 19')
    pro(f's_lshl_b32 {S_WLDS}, {S_WAVE}, 12')
    pro(f'v_lshlrev_b32 {r.ba[0]}, 4, {lane}')
    pro(f'v_lshrrev_b32 {t[1]}, 4, {lane}')
    pro(f'v_lshlrev_b32 {t[5]}, 5, {t[1]}')
    pro('s_waitcnt lgkmcnt(0)')
    pro(f's_mov_b32 s24, s20\ns_mov_b32 s25, s21\ns_mov_b32 s26, {WS_END}\ns_mov_b32 s27, 0x20000')
    X = r.ACC.sub(0, 64); SC = r.ACC.sub(64, 64)
    pro(f's_lshl_b32 s28, s3, 16\ns_add_u32 s28, s28, {S_WLDS}\ns_add_u32 s28, s28, {WS_XN}')
    pro(f's_lshl_b32 s29, {S_WAVE}, 9\ns_add_u32 s29, s29, {WS_MOD}')
    for s in range(4):
        for i in range(2):
            pro(f'buffer_load_dwordx4 {SC.sub(16*s+4*i,4)}, {t[5]}, {S_WS}, s29 offen offset:{MOD_SC1 + 128*s + 16*i}')
            pro(f'buffer_load_dwordx4 {SC.sub(16*s+8+4*i,4)}, {t[5]}, {S_WS}, s29 offen offset:{MOD_SH1 + 128*s + 16*i}')
    for rb in range(4):
        for s in range(4):
            pro(f'buffer_load_dwordx4 {X.sub(16*rb+4*s,4)}, {r.ba[0]}, {S_WS}, s28 offen offset:{s*1024}')
        if rb < 3: pro('s_add_u32 s28, s28, 16384')
    pro('s_mov_b32 s54, 0x200000\ns_mov_b32 s55, 0x20000\ns_mov_b32 s58, 0x200000\ns_mov_b32 s59, 0x20000')
    pro(f's_add_u32 {S_KB[0]}, s4, s23\ns_addc_u32 {S_KB[1]}, s5, 0')
    pro(f's_add_u32 {S_VB[0]}, s6, s23\ns_addc_u32 {S_VB[1]}, s7, 0')
    pro(f's_add_u32 {S_WOB[0]}, s10, s23\ns_addc_u32 {S_WOB[1]}, s11, 0')
    pro(f's_mov_b32 {S_WQ[0]}, s8\ns_mov_b32 {S_WQ[1]}, s9\ns_mov_b32 {S_WQ[2]}, 0x400000\ns_mov_b32 {S_WQ[3]}, 0x20000')
    PF = R('v', 254); PFD = R('v', 255)
    if pf:
        pro(f'v_and_b32 {t[0]}, 15, {lane}\nv_lshlrev_b32 {t[0]}, 6, {t[0]}\nv_lshl_add_u32 {PF}, {t[1]}, 13, {t[0]}')
        pro(f's_lshl_b32 s28, s3, 2\ns_add_u32 s28, s28, {S_WAVE}\ns_lshl_b32 s28, s28, 15\ns_lshl_b32 s29, s22, 10\ns_add_u32 s28, s28, s29')
        pro(f'buffer_load_dword {PFD}, {PF}, {S_WQ}, s28 offen')
    def set_kv_srd(p):
        p(f's_mov_b32 s8, {S_KB[0]}\ns_mov_b32 s9, {S_KB[1]}\ns_mov_b32 s10, 0x80000\ns_mov_b32 s11, 0x20000')
        p(f's_mov_b32 s12, {S_VB[0]}\ns_mov_b32 s13, {S_VB[1]}\ns_mov_b32 s14, 0x80000\ns_mov_b32 s15, 0x20000')
        p(f's_mov_b32 {S_STEP}, 16384\ns_mov_b32 {S_SOFF}, 0')
    set_kv_srd(pro)
    def w_voff(p, dst, stride_log2):
        p(f'v_and_b32 {t[0]}, 15, {lane}')
        p(f'v_lshrrev_b32 {t[1]}, 4, {lane}')
        p(f'v_lshlrev_b32 {t[2]}, 1, {t[1]}')
        p(f'v_xor_b32 {t[2]}, {t[0]}, {t[2]}')
        p(f'v_lshlrev_b32 {t[2]}, 4, {t[2]}')
        p(f'v_lshl_add_u32 {dst[0]}, {t[1]}, {stride_log2}, {t[2]}')
        st = 4 * (1 << stride_log2) - 1024
        p(f'v_xor_b32 {dst[1]}, 128, {dst[0]}')
        p(f'v_add_u32 {dst[1]}, {st}, {dst[1]}')
        p(f'v_add_u32 {dst[2]}, {2*st}, {dst[0]}')
        p(f'v_add_u32 {dst[3]}, {2*st}, {dst[1]}')
    w_voff(pro, r.dw, 13)
    pro(f's_lshl_b32 {S_QOFF}, s22, 2\ns_add_u32 {S_QOFF}, {S_QOFF}, {S_WAVE}\ns_lshl_b32 {S_QOFF}, {S_QOFF}, 8')
    qslot = lambda ks: (ks + 2) % 3
    def q_dma(h):
        ks, u = h >> 1, h & 1
        base = (VBASE if u else KBASE) + qslot(ks) * 16384
        if ks < 16:
            out = []
            for p in range(4):
                pre = [f's_add_u32 m0, {S_WLDS}, {base}'] if p == 0 else []
                if p == 0 and h > 0: pre = [f's_add_u32 {S_QOFF}, {S_QOFF}, {16*8192}'] + pre
                out.append((pre, f'buffer_load_dwordx4 {r.dw[p]}, {S_WQ}, {S_QOFF} offen offset:{1024*p} lds'))
            return out
        if ks < 18:
            d = dma_tile(r, ks - 16)[4*u:4*u+4]
            if ks == 17 and u == 0:
                d[0] = ([f's_add_u32 {S_SOFF}, {S_SOFF}, {S_STEP}'] + d[0][0], d[0][1])
            return d
        return []
    for h in range(6):
        for pre, ins in q_dma(h):
            for x in pre: pro(x)
            if pre: pro('s_nop 0')
            pro(ins)
    setup_dma_kv(pro, r, lane, wv)
    setup_addr(pro, r, lane, wv)
    pro(f'v_add_u32 {r.ba[1]}, {VBASE + 3*16384}, {r.ba[0]}')
    pro(f'v_lshrrev_b32 {t[2]}, 2, {lane}')
    pro(f'v_and_b32 {t[3]}, 7, {t[2]}')
    pro(f'v_lshlrev_b32 {t[3]}, 1, {t[3]}')
    pro(f'v_and_b32 {t[4]}, 3, {lane}')
    pro(f'v_xor_b32 {t[3]}, {t[3]}, {t[4]}')
    pro(f'v_lshlrev_b32 {t[3]}, 4, {t[3]}')
    pro(f'v_lshl_add_u32 {t[3]}, {t[2]}, 8, {t[3]}')
    pro(f'v_add_u32 {r.wa0[0]}, {S_WLDS}, {t[3]}')
    for nt in range(1, 8):
        pro(f'v_xor_b32 {r.wa0[nt]}, {64*(nt>>1) + 8*(nt&1)}, {r.wa0[0]}')
    for nt in range(8):
        pro(f'v_add_u32 {r.wa1q[nt]}, {VBASE}, {r.wa0[nt]}')
    def zero_ov(p):
        for i in range(128): p(f'v_accvgpr_write_b32 {r.O[i]}, 0')
        for i in range(64): p(f'v_accvgpr_write_b32 {r.Vf[i]}, 0')
    zero_ov(pro)
    pro(f's_mov_b32 {S_PASS}, 0\ns_mov_b32 {S_HOOK}, 0x1fe\ns_mov_b32 {S_TAG}, 1')
    wr = [R('v', 9), R('v', 10)]
    pro(f'v_add_u32 {wr[0]}, {S_WLDS}, {r.ba[0]}')
    pro(f'v_add_u32 {wr[1]}, {S_WLDS}, {r.ba[1]}')
    wr2 = R('v', 11)
    pro(f'v_add_u32 {wr2}, {S_WLDS}, {wr[1]}')
    def frag_write(s, rb, D):
        if s == 0: return f'ds_write_b128 {wr[0]}, {D} offset:{KBASE + 3*16384 + 1024*rb}'
        if s == 1: return f'ds_write_b128 {wr[1]}, {D} offset:{1024*rb}'
        return f'ds_write_b128 {wr2}, {D} offset:{16384 + (s-2)*4096 + 1024*rb}'
    T = r.B1
    for rb in range(4):
        pro(f's_waitcnt vmcnt({24 + (1 if pf else 0) + 4*(3-rb)})')
        for s in range(4):
            x = X.sub(16*rb+4*s, 4); tt = T.sub(8*(s&1), 8)
            for i in range(8):
                hi = i & 1
                pro(f'v_fma_mix_f32 {tt[i]}, {x[i>>1]}, {SC[16*s+i]}, {SC[16*s+8+i]} op_sel:[{hi},0,0] op_sel_hi:[1,0,0]')
            for i in range(4):
                pro(f'v_cvt_pk_bf16_f32 {x[i]}, {tt[2*i]}, {tt[2*i+1]}')
            pro(frag_write(s, rb, x))
    pro('s_waitcnt lgkmcnt(0)')
    pro('s_barrier')
    stampit(pro, 1)
    def q_finish(i):
        out = []
        for rb in range(4):
            for k in range(4):
                a = r.ACC.sub(16*(2*i + (k>>1)) + 4*rb, 4)
                out.append(f'v_cvt_pk_bf16_f32 {r.q(rb, i)[k]}, {a[2*(k&1)]}, {a[2*(k&1)+1]}')
        return out
    pro.extend(gemm(r, r.wa0, r.wa1q, qslot, q_dma, q_finish))
    pro(f's_add_u32 {S_SOFF}, {S_SOFF}, {S_STEP}')
    stampit(pro, 2)
    body = []; tails = None
    for j4 in (3, 0, 1, 2):
        ex = None
        if j4 == 0:
            ex = {96: [f's_bitcmp1_b32 {S_HOOK}, {S_CNT}'], 98: ['s_cbranch_scc1 L_k1_switch', 'L_k1_back:']}
        if j4 == 2:
            ex = {120: [f's_sub_u32 {S_CNT}, {S_CNT}, 1'], 122: [f's_cmp_lg_u32 {S_CNT}, 0']}
        if OPT.get('itst'):
            ex = dict(ex or {})
            idx = (3, 0, 1, 2).index(j4)
            ex[4] = ['s_memtime s[96:97]']
            ex[6] = [f's_lshl_b32 s98, {S_CNT}, 2', f's_sub_u32 s98, {32 + idx}, s98']
            ex[16] = [f'v_cmp_eq_u32 vcc, s98, v0', f'v_mov_b32 {t[5]}, s96', 's_nop 1', f'v_cndmask_b32 v8, v8, {t[5]}, vcc']
        o, tails = iteration(r, j4, ex)
        body += o
    pro('s_waitcnt vmcnt(8)')
    pro('s_barrier')
    kr = k_reads(r, 0)
    for d in kr[:15]: pro(d)
    pro('s_waitcnt lgkmcnt(11)')
    for qb in range(4):
        for ds in range(4):
            c = '0' if ds == 0 else r.s(qb, 0)
            pro(f'{MF} {r.s(qb, 0)}, {r.kf(0, ds)}, {r.q(qb, ds)}, {c}')
    for qb in range(4):
        s = r.s(qb, 0); x = r.nm(qb)
        if qb == 3: pro('s_nop 1')
        if qb == 2: pro('s_nop 0')
        pro(f'v_max3_f32 {x[0]}, {s[0]}, {s[1]}, {s[2]}')
        pro(f'v_max_f32 {x[0]}, {x[0]}, {s[3]}')
    ent = Prog()
    for qb in range(4): x = r.nm(qb); ent(f'v_mov_b32 {x[1]}, {x[0]}')
    for qb in range(4): x = r.nm(qb); ent(f'v_permlane32_swap_b32 {x[0]}, {x[1]}')
    for qb in range(4): x = r.nm(qb); ent(f'v_max_f32 {x[0]}, {x[0]}, {x[1]}')
    for qb in range(4): x = r.nm(qb); ent(f'v_mov_b32 {x[1]}, {x[0]}')
    for qb in range(4): x = r.nm(qb); ent(f'v_permlane16_swap_b32 {x[0]}, {x[1]}')
    for qb in range(4): x = r.nm(qb); ent(f'v_max_f32 {x[0]}, {x[0]}, {x[1]}')
    for qb in range(4):
        x = r.nm(qb)
        for i in (1, 2, 3, 0): ent(f'v_sub_f32 {x[i]}, 0, {x[0]}')
    exp_tail = {x.split()[1].rstrip(',') for x in tails if x.startswith('v_exp')}
    used = set()
    for x in tails:
        for tok in x.replace(',', ' ').split()[1:]: used.add(tok)
    for i in range(32, 64):
        if str(r.S[i]) in used:
            ent(f'v_mov_b32 {r.S[i]}, {"0xff800000" if str(r.S[i]) in exp_tail else "0"}')
    for i in range(16, 32): ent(f'v_mov_b32 {r.P[i]}, 0')
    for i in range(8): ent(f'v_mov_b32 {r.lm[i]}, 0')
    for i in range(4): ent(f'v_mov_b32 {r.la[i]}, 0')
    for i in range(4): ent(f'v_mov_b32 {r.ones[i]}, 0x3f803f80')
    ent(f's_mov_b32 {S_CNT}, 8')
    ent('s_waitcnt lgkmcnt(0)')
    S_T = R('s', 40, 4)
    S_U = 's60'
    XW = 's61'
    ST = r.B1
    def h_uidx(p):
        p(f's_lshl_b32 {S_U}, s3, 2\ns_add_u32 {S_U}, {S_U}, {S_WAVE}')
        p(f's_lshl_b32 {XW}, {S_WAVE}, 13\ns_add_u32 {XW}, {XW}, {XBASE}')
    def h_load_rows(p, lo, hi, nbytes, buf):
        p(f's_mov_b32 {S_T[0]}, {lo}\ns_mov_b32 {S_T[1]}, {hi}\ns_mov_b32 {S_T[2]}, {nbytes}')
        p(f'v_lshrrev_b32 {t[0]}, 3, {lane}\nv_and_b32 {t[1]}, 7, {lane}\nv_lshlrev_b32 {t[1]}, 4, {t[1]}\nv_lshl_add_u32 {t[0]}, {t[0]}, 10, {t[1]}')
        p(f's_lshr_b32 s28, {S_U}, 3\ns_lshl_b32 s28, s28, 15\ns_and_b32 s29, {S_U}, 7\ns_lshl_b32 s29, s29, 7\ns_add_u32 s28, s28, s29')
        p(f's_add_u32 m0, {XW}, {4096*buf}')
        for i in range(4):
            p('s_add_u32 s28, s28, 7168' if i else 's_nop 0')
            p(f'buffer_load_dwordx4 {t[0]}, {S_T}, s28 offen offset:{1024*i} lds')
    def h_read_rows(p, buf):
        p(f'v_lshrrev_b32 {t[0]}, 2, {lane}\nv_and_b32 {t[1]}, 3, {lane}\nv_lshlrev_b32 {t[1]}, 3, {t[1]}\nv_lshl_add_u32 {t[0]}, {t[0]}, 7, {t[1]}\nv_add_u32 {t[0]}, {XW}, {t[0]}')
        for n in range(4):
            for u in range(2):
                p(f'ds_read_b64_tr_b16 {ST.sub(4*n+2*u, 2)}, {t[0]} offset:{4096*buf + 32*n + 2048*u}')
    def h_store(p, n, so): p(f'buffer_store_dwordx4 {ST.sub(4*n, 4)}, {r.ba[0]}, {S_WS}, {so} offen sc1')
    def h_gbase(p):
        p(f's_bfe_u32 s29, {S_U}, 0x20001\ns_lshl_b32 s23, s22, 2\ns_add_u32 s29, s29, s23\ns_mul_i32 s29, s29, {WF_WAVE}\ns_add_u32 s29, s29, {WS_WF}')
        p(f's_and_b32 s23, {S_U}, 1')
    H = {}
    h = H[8] = Prog()
    h_uidx(h)
    h_load_rows(h, S_WOB[0], S_WOB[1], 0x80000, 0)
    h = H[7] = Prog()
    h_read_rows(h, 0)
    h_gbase(h)
    h(f's_lshl_b32 s23, s23, 16\ns_add_u32 s29, s29, s23')
    h(f's_lshr_b32 s23, {S_U}, 5\ns_lshl_b32 s23, s23, 13\ns_add_u32 s29, s29, s23')
    h(f's_bfe_u32 s23, {S_U}, 0x20003\ns_lshl_b32 s23, s23, 10\ns_add_u32 s29, s29, s23')
    h('s_waitcnt lgkmcnt(0)')
    for n in range(4):
        h_store(h, n, 's29')
        if n < 3: h(f's_add_u32 s29, s29, {4096 if n != 1 else 32768 - 4096}')
    h(f's_cmp_ge_u32 {S_U}, 112\ns_cbranch_scc1 L_k1_back')
    h(f'v_lshrrev_b32 {t[0]}, 2, {lane}\nv_mul_u32_u24 {t[0]}, 3584, {t[0]}\nv_and_b32 {t[1]}, 3, {lane}\nv_lshl_add_u32 {t[0]}, {t[1]}, 4, {t[0]}')
    h(f's_and_b32 s28, {S_U}, 15\ns_mul_i32 s28, s28, {32*3584}\ns_lshr_b32 s29, {S_U}, 4\ns_lshl_b32 s29, s29, 6\ns_add_u32 s28, s28, s29')
    h(f's_mul_i32 s29, s22, 448\ns_add_u32 s28, s28, s29\ns_add_u32 s29, s28, {16*3584 - 1024}')
    h(f's_mov_b32 {S_T[2]}, {512*3584}')
    for mtx in range(2):
        h(f's_add_u32 m0, {XW}, {4096 + 2048*mtx}')
        h(f's_mov_b32 {S_T[0]}, s{92+2*mtx}\ns_mov_b32 {S_T[1]}, s{93+2*mtx}')
        h(f'buffer_load_dwordx4 {t[0]}, {S_T}, s28 offen lds')
        h(f'buffer_load_dwordx4 {t[0]}, {S_T}, s29 offen offset:1024 lds')
    h = H[6] = Prog()
    h(f's_cmp_ge_u32 {S_U}, 112\ns_cbranch_scc1 L_k1_back')
    h(f'v_lshrrev_b32 {t[0]}, 2, {lane}\nv_lshlrev_b32 {t[0]}, 6, {t[0]}\nv_and_b32 {t[1]}, 1, {lane}\nv_lshl_add_u32 {t[0]}, {t[1]}, 3, {t[0]}')
    h(f'v_bfe_u32 {t[1]}, {lane}, 1, 1\nv_lshl_add_u32 {t[0]}, {t[1]}, 11, {t[0]}\nv_add_u32 {t[0]}, {XW}, {t[0]}')
    for n in range(4):
        for u in range(2):
            h(f'ds_read_b64_tr_b16 {ST.sub(4*n+2*u, 2)}, {t[0]} offset:{4096 + 16*n + 1024*u}')
    h(f's_mul_i32 s62, s22, {4*WF_WAVE}\ns_add_u32 s62, s62, {WS_WF + 128*1024}')
    h(f's_bfe_u32 s23, {S_U}, 0x20002\ns_mul_i32 s23, s23, {28*1024}\ns_add_u32 s62, s62, s23')
    h(f's_and_b32 s23, {S_U}, 3\ns_lshl_b32 s23, s23, 10\ns_add_u32 s62, s62, s23')
    h(f's_lshr_b32 s63, {S_U}, 4\ns_lshl_b32 s63, s63, 2')
    h('s_waitcnt lgkmcnt(0)')
    for n in range(4):
        h(f's_add_u32 s28, s63, {n}\ns_mul_i32 s29, s28, 37\ns_lshr_b32 s29, s29, 8\ns_mul_i32 s29, s29, {WF_WAVE - 28*1024}')
        h('s_lshl_b32 s28, s28, 12\ns_add_u32 s29, s29, s28\ns_add_u32 s29, s29, s62')
        h_store(h, n, 's29')
    h(f's_cmp_ge_u32 {S_U}, 56\ns_cbranch_scc1 L_k1_back')
    h(f's_mul_i32 s28, s22, {224*1024}\ns_add_u32 s62, s90, s28\ns_addc_u32 s63, s91, 0')
    h_load_rows(h, 's62', 's63', 224*1024, 0)
    h = H[5] = Prog()
    h(f's_cmp_ge_u32 {S_U}, 56\ns_cbranch_scc1 L_k1_back')
    h_read_rows(h, 0)
    h_gbase(h)
    h(f's_mul_i32 s23, s23, {28*1024}\ns_add_u32 s29, s29, s23')
    h(f's_lshr_b32 s23, {S_U}, 3\ns_add_u32 s23, s23, 240\ns_lshl_b32 s23, s23, 10\ns_add_u32 s29, s29, s23')
    h('s_waitcnt lgkmcnt(0)')
    for n in range(4):
        h_store(h, n, 's29')
        if n < 3: h(f's_add_u32 s29, s29, {7*1024}')
    h = H[4] = Prog()
    tail_setup(r, h)
    h(f's_lshl_b32 s28, s22, 7\ns_lshl_b32 s29, s3, 2\ns_add_u32 s28, s28, s29\ns_add_u32 s28, s28, {WS_PFLAG}')
    h(f'v_mov_b32 {t[0]}, {S_TAG}\nv_mov_b32 {t[1]}, 0')
    h(f'buffer_store_dword {t[0]}, {t[1]}, {S_WS}, s28 offen sc1')
    h = H[3] = Prog()
    h(f's_lshl_b32 s62, s22, 7\ns_add_u32 s62, s62, {WS_PFLAG}')
    h(f'buffer_load_dword {PFD}, v245, {S_WS}, s62 offen sc1')
    h = H[2] = Prog()
    h('s_mov_b32 s28, 0')
    h('L_k1_pchk:')
    h(f'v_cmp_ne_u32 vcc, {S_TAG}, {PFD}')
    h('s_add_u32 s28, s28, 1\ns_cmp_gt_u32 s28, 0x40000\ns_cbranch_scc1 L_k1_pok')
    h('s_cbranch_vccz L_k1_pok')
    h(f'buffer_load_dword {PFD}, v245, {S_WS}, s62 offen sc1')
    h('s_waitcnt vmcnt(0)')
    h('s_branch L_k1_pchk')
    h('L_k1_pok:')
    h(f'v_lshlrev_b32 {PF}, 6, {lane}')
    h(f's_mul_i32 s28, s22, {4*WF_WAVE}\ns_mul_i32 s29, {S_U}, {4*WF_WAVE//128}\ns_add_u32 s28, s28, s29\ns_add_u32 s28, s28, {WS_WF}')
    for i in range(3):
        h(f'buffer_load_dword {t[i]}, {PF}, {S_WS}, s28 offen {OPT["pfsc"]}')
        if i < 2: h(f's_add_u32 s28, s28, {4096 if i == 0 else 4*WF_WAVE//128 - 8192}')
    h = H[1] = Prog()
    for i in range(4): h(f'v_mov_b32 {r.dk[i]}, {r.ba[0]}\nv_mov_b32 {r.dv[i]}, {r.ba[0]}')
    h(f's_mov_b32 s8, s24\ns_mov_b32 s9, s25\ns_mov_b32 s10, {WS_END}')
    h(f's_add_u32 s12, s24, 4096\ns_addc_u32 s13, s25, 0\ns_mov_b32 s14, {WS_END - 4096}')
    h(f's_lshl_b32 {S_SOFF}, s22, 2\ns_add_u32 {S_SOFF}, {S_SOFF}, {S_WAVE}\ns_mul_i32 {S_SOFF}, {S_SOFF}, {WF_WAVE}\ns_add_u32 {S_SOFF}, {S_SOFF}, {WS_WF}')
    h(f's_mov_b32 {S_STEP}, 8192')
    epi = Prog()
    stampit(epi, 3)
    for x in tails:
        epi(x)
        if x.startswith('v_exp'): epi('s_nop 0')
    inv = [t[0], t[1], t[2], t[3]]
    va = []
    for pair in range(2):
        va.append(f'v_add_f32 {inv[2*pair]}, {r.la[2*pair]}, {r.la[2*pair+1]}')
    for pair in range(2): va.append(f'v_mov_b32 {t[4+pair]}, {inv[2*pair]}')
    va.append('s_nop 0')
    for pair in range(2): va.append(f'v_permlane32_swap_b32 {inv[2*pair]}, {t[4+pair]}')
    for pair in range(2): va.append(f'v_add_f32 {inv[2*pair]}, {inv[2*pair]}, {t[4+pair]}')
    for pair in range(2): va.append(f'v_mov_b32 {t[4+pair]}, {inv[2*pair]}')
    va.append('s_nop 0')
    for pair in range(2): va.append(f'v_permlane16_swap_b32 {inv[2*pair]}, {t[4+pair]}')
    for pair in range(2): va.append(f'v_add_f32 {inv[2*pair]}, {inv[2*pair]}, {t[4+pair]}')
    va.append(f'v_add_f32 {t[4]}, {inv[0]}, {inv[2]}')
    va.append(f'v_add_f32 {t[5]}, {r.lm[0]}, {r.lm[4]}')
    va.append(f'v_add_f32 {t[4]}, {t[4]}, {t[5]}')
    va.append(f'v_cmp_ngt_f32 vcc, 0x4e800000, {t[4]}')
    va.append(f'v_rcp_f32 {inv[0]}, {inv[0]}')
    va.append(f'v_rcp_f32 {inv[1]}, {r.lm[0]}')
    va.append(f's_cmp_lg_u64 vcc, 0')
    va.append(f's_cselect_b32 s28, 1, 0')
    va.append(f'v_and_b32 {t[4]}, 3, {lane}')
    va.append(f'v_lshlrev_b32 {t[4]}, 13, {t[4]}')
    va.append(f'v_lshl_add_u32 {t[4]}, {wv}, 2, {t[4]}')
    va.append(f'v_add_u32 {t[4]}, {XBASE}, {t[4]}')
    va.append(f'v_mov_b32 {t[5]}, s28')
    va.append(f'ds_write_b32 {t[4]}, {t[5]}')
    va.append(f'v_rcp_f32 {inv[2]}, {inv[2]}')
    va.append(f'v_rcp_f32 {inv[3]}, {r.lm[4]}')
    va.append(f'v_lshlrev_b32 {t[4]}, 13, {wv}')
    va.append(f'v_add_u32 {t[4]}, {XBASE}, {t[4]}')
    va.append('s_waitcnt lgkmcnt(0)')
    va.append('s_barrier')
    FL = r.B1.sub(0, 4)
    va.append(f'ds_read_b128 {FL}, {t[4]}')
    def norm(qb, s):
        T8 = r.S.sub(8 * ((qb * 4 + s) % 4), 8); D = r.S.sub(32 + 4 * ((qb * 4 + s) % 8), 4)
        o = []
        for i in range(8): o.append(f'v_accvgpr_read_b32 {T8[i]}, {r.O[32*qb + 8*s + i]}')
        for i in range(8): o.append(f'v_mul_f32 {T8[i]}, {T8[i]}, {inv[qb]}')
        for i in range(4): o.append(f'v_cvt_pk_bf16_f32 {D[i]}, {T8[2*i]}, {T8[2*i+1]}')
        o.append(frag_write(s, qb, D))
        return o
    va += norm(0, 0)
    va.append('s_waitcnt lgkmcnt(1)')
    va.append(f'v_or3_b32 {FL[0]}, {FL[0]}, {FL[1]}, {FL[2]}')
    va.append(f'v_or_b32 {FL[0]}, {FL[0]}, {FL[3]}')
    va.append('s_nop 0')
    va.append(f'v_readfirstlane_b32 s28, {FL[0]}')
    mf = [msum(r, 1, 0), msum(r, 1, 1)] + pv_mfmas(r, 1)
    epi('s_nop 0')
    for n, m in enumerate(mf):
        epi(m)
        k = 0
        while va and k < 2:
            x = va.pop(0); epi(x)
            k += 2 if x.startswith(('v_rcp', 'ds_')) else (0 if x.startswith('s_') else 1)
    for x in va: epi(x)
    epi('s_nop 1')
    epi(f's_andn2_b32 s28, s28, {S_PASS}')
    epi('s_cbranch_scc1 L_k1_fallback')
    e = Em(vq=['old'] * 8)
    st = AStream(a_regs(), r.ba[0])
    e(f's_add_u32 {S_AOFF}, {S_SOFF}, {-4096 & 0xffffffff}')
    st.skip(16)
    e(f'v_add_u32 {t[4]}, {VBASE}, {wr[0]}')
    e.wait(vm=['old'])
    for qb in range(4):
        for s in range(4):
            i = 4 * qb + s
            st.issue(e)
            nn = norm(qb, s) if (qb, s) != (0, 0) else []
            for x in nn[:10]: e(x)
            e(f'ds_read_b128 {st.regs[i]}, {t[4] if i & 4 else wr[0]} offset:{(i >> 3) * 16384 + (i & 3) * 1024}')
            e.seen.add(('A', i))
            for x in nn[10:]: e(x)
    e(f's_lshl_b32 s28, s22, 21\ns_lshl_b32 s29, s3, 16\ns_add_u32 s28, s28, s29\ns_add_u32 s28, s28, {S_WLDS}\ns_add_u32 s28, s28, {WS_PART}')
    for i in range(1, 4): e(f's_add_u32 s{32+i}, s28, {16384*i}')
    e('s_mov_b32 s32, s28')
    e('s_waitcnt lgkmcnt(0)')
    e('s_barrier')
    stampit(e, 4)
    tail(r, e, st, stampit)
    if stamp:
        e('s_waitcnt vmcnt(0)')
        stampit(e, 12)
        e(f's_lshl_b32 s28, s2, 9\ns_lshl_b32 s29, {S_WAVE}, 7\ns_add_u32 s28, s28, s29\ns_add_u32 s28, s28, {WS_STAMP}')
        if OPT.get('itst'):
            e(f's_lshl_b32 s30, s2, 10\ns_lshl_b32 s29, {S_WAVE}, 8\ns_add_u32 s30, s30, s29\ns_add_u32 s30, s30, {WS_STAMP + (1 << 18)}')
            e(f'v_lshlrev_b32 {t[0]}, 2, v0')
            e(f'buffer_store_dword v8, {t[0]}, {S_WS}, s30 offen')
        e(f'v_mov_b32 {t[0]}, 0')
        for k in range(13):
            e(f'v_mov_b32 {r.S[2*k]}, s{64+2*k}\nv_mov_b32 {r.S[2*k+1]}, s{65+2*k}')
            e(f'buffer_store_dwordx2 {r.S.sub(2*k,2)}, {t[0]}, {S_WS}, s28 offen offset:{8*k}')
    if OPT.get('dbg'):
        e(f's_cmp_lg_u32 s2, {OPT["dbg"] - 1}\ns_cbranch_scc1 L_k1_end')
        e('s_load_dwordx2 s[40:41], s[0:1], 96\ns_waitcnt lgkmcnt(0)')
        e(f's_sub_u32 s40, s40, {OPT.get("dbgoff", 512)}\ns_subb_u32 s41, s41, 0\ns_mov_b32 s42, 256')
        for k in range(13):
            e(f'v_mov_b32 {t[1]}, s{65+2*k}')
            e(f'buffer_store_dword {t[1]}, {t[0]}, s[40:43], 0 offen offset:{8 + 4*k}')
            e('s_waitcnt vmcnt(0)')
        e(f's_sub_u32 s28, s70, s68\nv_mov_b32 {t[1]}, s28')
        e(f'buffer_store_dword {t[1]}, {t[0]}, s[40:43], 0 offen offset:60')
    epi.extend(e.out)
    fb = Prog()
    fb('s_waitcnt vmcnt(0) lgkmcnt(0)')
    fb('s_barrier')
    set_kv_srd(fb)
    setup_dma_kv(fb, r, lane, wv)
    for qb in range(4): fb(f'v_mov_b32 {r.nm(qb)[0]}, 0xff800000')
    fb(f's_mov_b32 {S_CNT}, 32')
    fl = Prog()
    for pre, ins in dma_tile(r, 0)[:4]:
        for x in pre: fl(x); fl('s_nop 0')
        fl(ins)
    fl(f's_add_u32 {S_SOFF}, {S_SOFF}, {S_STEP}')
    fl('s_waitcnt vmcnt(0)')
    fl('s_barrier')
    for d in kr[:8]: fl(d)
    fl('s_waitcnt lgkmcnt(0)')
    for d in kr[8:]: fl(d)
    fl('s_waitcnt lgkmcnt(0)')
    fl('s_barrier')
    for kb in range(4):
        for qb in range(4):
            for ds in range(4):
                c = '0' if ds == 0 else r.s(qb, kb)
                fl(f'{MF} {r.s(qb, kb)}, {r.kf(kb, ds)}, {r.q(qb, ds)}, {c}')
    fl('s_nop 7')
    for kb in range(4):
        for qb in range(4):
            s = r.s(qb, kb); x = r.nm(qb)[0]
            fl(f'v_max3_f32 {x}, {x}, {s[0]}, {s[1]}')
            fl(f'v_max3_f32 {x}, {x}, {s[2]}, {s[3]}')
    fl(f's_sub_u32 {S_CNT}, {S_CNT}, 1')
    fl(f's_cmp_lg_u32 {S_CNT}, 0')
    fe = Prog()
    fe(f's_mov_b32 {S_SOFF}, 0\ns_mov_b32 {S_PASS}, 1\ns_mov_b32 {S_HOOK}, 2')
    for tt in range(2):
        for pre, ins in dma_tile(r, tt):
            for x in pre: fe(x); fe('s_nop 0')
            fe(ins)
        fe(f's_add_u32 {S_SOFF}, {S_SOFF}, {S_STEP}')
    zero_ov(fe)
    fe('s_waitcnt vmcnt(8)')
    fe('s_barrier')
    for d in kr[:15]: fe(d)
    def with_hook(b, blk):
        i = b.index('L_k1_back:')
        return b[:i] + blk.lines + ['s_branch L_k1_back'] + b[i:]
    br = ['s_cbranch_scc1 L_k1_loop']
    tr = pro.lines + ent.lines
    for c in range(8, 0, -1): tr += with_hook(body, H[c]) + br
    check_trace(tr + epi.lines, 'kf main')
    i = epi.lines.index('s_cbranch_scc1 L_k1_fallback')
    check_trace(body + br + epi.lines[:i+1] + fb.lines + fl.lines + br + fl.lines + br + fe.lines + ['s_branch x'] + ent.lines + body, 'k1 fallback')
    p = Prog()
    p(f'.globl {name}\n.p2align 8\n.type {name},@function\n{name}:')
    p.extend(pro)
    p('L_k1_entry:')
    p.extend(ent)
    p('.p2align 6\nL_k1_loop:')
    p.extend(body)
    p('s_cbranch_scc1 L_k1_loop')
    p.extend(epi)
    p('L_k1_end:\ns_endpgm')
    p('L_k1_switch:')
    for c in range(8, 1, -1): p(f's_cmp_eq_u32 {S_CNT}, {c}\ns_cbranch_scc1 L_k1_h{c}')
    for c in range(1, 9):
        p(f'L_k1_h{c}:')
        p.extend(H[c])
        p('s_branch L_k1_back')
    p('L_k1_fallback:')
    p.extend(fb)
    p('L_k1_fbloop:')
    p.extend(fl)
    p('s_cbranch_scc1 L_k1_fbloop')
    p.extend(fe)
    p('s_branch L_k1_entry')
    p('L_k1_codeend:')
    return p, kernel_footer(name, 256, 256, 100), f'kernel={name} grid=(256,1,1) block=(256,1,1) lds=163840'
```

```python
from asmlib import *
from layout import *
import math
CQ = math.log2(math.e) / math.sqrt(128.0)
import struct
def f32(x): return hex(struct.unpack('<I', struct.pack('<f', x))[0])

def srd(p, d, lo, hi, n):
    p(f's_mov_b32 s{d}, {lo}\ns_mov_b32 s{d+1}, {hi}\ns_mov_b32 s{d+2}, {n}\ns_mov_b32 s{d+3}, 0x20000')

def red_c8(p, xs, ts):
    p('s_nop 1')
    for x in xs: p(f'v_add_f32_dpp {x}, {x}, {x} row_ror:8 row_mask:0xf bank_mask:0xf')
    for sw in ('v_permlane32_swap_b32', 'v_permlane16_swap_b32'):
        for x, t in zip(xs, ts): p(f'v_mov_b32 {t}, {x}')
        p('s_nop 1')
        for x, t in zip(xs, ts): p(f'{sw} {x}, {t}')
        for x, t in zip(xs, ts): p(f'v_add_f32 {x}, {x}, {t}')

def ln_stats(p, V, T, lane, wv, base=0):
    s = T[8]; t = T[9]
    p(f'v_add_f32 {s}, {V[0]}, {V[1]}')
    p(f'v_add_f32 {t}, {V[2]}, {V[3]}')
    for i in range(4, 16, 2):
        p(f'v_add_f32 {s}, {s}, {V[i]}')
        p(f'v_add_f32 {t}, {t}, {V[i+1]}')
    p(f'v_add_f32 {s}, {s}, {t}')
    red_c8(p, [s], [t])
    p(f'v_mul_f32 {s}, {f32(1/128)}, {s}')
    for i in range(16): p(f'v_sub_f32 {V[i]}, {V[i]}, {s}')
    q = T[10]
    p(f'v_mul_f32 {t}, {V[0]}, {V[0]}')
    p(f'v_mul_f32 {q}, {V[1]}, {V[1]}')
    for i in range(2, 16, 2):
        p(f'v_fmac_f32 {t}, {V[i]}, {V[i]}')
        p(f'v_fmac_f32 {q}, {V[i+1]}, {V[i+1]}')
    p(f'v_add_f32 {t}, {t}, {q}')
    red_c8(p, [t], [q])
    a = T[11]
    p(f'v_and_b32 {a}, 7, {lane}')
    p(f'v_lshlrev_b32 {a}, 5, {a}')
    if base: p(f'v_add_u32 {a}, {base}, {a}')
    p(f'v_lshl_add_u32 {q}, {wv}, 3, {a}')
    p(f'ds_write_b64 {q}, {T.sub(8, 2)}')
    p('s_waitcnt lgkmcnt(0)')
    p('s_barrier')
    p(f'ds_read_b128 {T.sub(0, 4)}, {a}')
    p(f'ds_read_b128 {T.sub(4, 4)}, {a} offset:16')
    p('s_waitcnt lgkmcnt(0)')
    m = T[9]
    p(f'v_add_f32 {m}, {T[0]}, {T[2]}')
    p(f'v_add_f32 {q}, {T[4]}, {T[6]}')
    p(f'v_add_f32 {m}, {m}, {q}')
    p(f'v_mul_f32 {m}, 0.5, {m}')
    p(f'v_mul_f32 {m}, 0.5, {m}')
    for i in (0, 2, 4, 6): p(f'v_sub_f32 {T[i]}, {T[i]}, {m}')
    p(f'v_mul_f32 {q}, {T[0]}, {T[0]}')
    for i in (2, 4, 6): p(f'v_fmac_f32 {q}, {T[i]}, {T[i]}')
    p(f'v_add_f32 {T[1]}, {T[1]}, {T[3]}')
    p(f'v_add_f32 {T[5]}, {T[5]}, {T[7]}')
    p(f'v_add_f32 {T[1]}, {T[1]}, {T[5]}')
    p(f'v_fmac_f32 {T[1]}, {f32(128.0)}, {q}')
    p(f'v_mov_b32 {q}, {f32(1e-5)}')
    p(f'v_fmac_f32 {q}, {f32(1/512)}, {T[1]}')
    p(f'v_rsq_f32 {q}, {q}')
    p(f'v_sub_f32 {s}, {s}, {m}')
    p(f'v_mul_f32 {s}, {s}, {q}')
    for i in range(16): p(f'v_fma_f32 {V[i]}, {V[i]}, {q}, {s}')

def ln_addr(p, lane, wv, xo, fo, vo, T):
    r8, c8 = T[0], T[1]
    p(f'v_and_b32 {r8}, 7, {lane}')
    p(f'v_lshrrev_b32 {c8}, 3, {lane}')
    p(f'v_lshrrev_b32 {T[2]}, 2, {c8}')
    p(f'v_lshl_add_u32 {T[2]}, {wv}, 2, {T[2]}')
    p(f'v_and_b32 {T[3]}, 3, {c8}')
    p(f'v_lshlrev_b32 {xo}, 10, {r8}')
    p(f'v_lshl_add_u32 {xo}, {T[2]}, 6, {xo}')
    p(f'v_lshl_add_u32 {xo}, {T[3]}, 3, {xo}')
    p(f'v_lshlrev_b32 {fo}, 10, {T[2]}')
    p(f'v_lshl_add_u32 {fo}, {T[3]}, 8, {fo}')
    p(f'v_lshl_add_u32 {fo}, {r8}, 4, {fo}')
    if vo is not None:
        p(f'v_lshlrev_b32 {vo}, 7, {T[2]}')
        p(f'v_lshl_add_u32 {vo}, {T[3]}, 5, {vo}')

def load_x(p, XR, xo, sx, soff):
    for i in range(2):
        for u in range(2):
            p(f'buffer_load_dwordx2 {XR.sub(4*i+2*u, 2)}, {xo}, {sx}, {soff} offen offset:{128*i + 32*u}')

def unpack(p, V, XR):
    for k in range(8):
        p(f'v_lshlrev_b32 {V[2*k]}, 16, {XR[k]}')
        p(f'v_and_b32 {V[2*k+1]}, 0xffff0000, {XR[k]}')

def k0(name='k0_kernel', dbg=False):
    p = Prog()
    lane, wv = R('v', 1), R('v', 2)
    p('s_cmp_ge_u32 s2, 448\ns_cbranch_scc1 L_k0_end')
    if dbg: p('s_memrealtime s[36:37]\ns_load_dwordx2 s[40:41], s[0:1], 96')
    p('s_load_dwordx2 s[4:5], s[0:1], 0')
    p('s_load_dwordx4 s[8:11], s[0:1], 72')
    p('s_load_dwordx2 s[6:7], s[0:1], 104')
    p(f'v_and_b32 {lane}, 63, v0\nv_lshrrev_b32 {wv}, 6, v0')
    p('s_waitcnt lgkmcnt(0)')
    srd(p, 12, 's4', 's5', 0x200000)
    srd(p, 16, 's8', 's9', 1024)
    srd(p, 20, 's10', 's11', 512 * 6144)
    srd(p, 24, 's6', 's7', WS_END)
    head = list(p.lines)
    p('s_cmp_ge_u32 s2, 192\ns_cbranch_scc1 L_k0_xn')
    a = Prog()
    a('s_and_b32 s3, s2, 7\ns_mul_i32 s3, s3, 24\ns_lshr_b32 s28, s2, 3\ns_add_u32 s3, s3, s28')
    a('s_lshl_b32 s28, s3, 5')
    W = R('v', 8, 16); C = R('v', 24, 4); ACC = R('v', 28, 8); U = R('v', 36, 8)
    a('v_lshrrev_b32 v3, 1, v0')
    a('v_lshlrev_b32 v4, 1, v3')
    for i in range(4): a(f'buffer_load_ushort {C[i]}, v4, s[16:19], 0 offen offset:{256*i}')
    a('v_mul_u32_u24 v5, 6144, v3')
    a('v_and_b32 v6, 1, v0')
    a('v_lshl_add_u32 v5, v6, 4, v5')
    for i in range(4):
        a(f'buffer_load_dwordx4 {W.sub(4*i,4)}, v5, s[20:23], s28 offen')
        if i < 3: a(f's_add_u32 s28, s28, {128*6144}')
    a('s_lshr_b32 s29, s3, 5')
    a('s_cmp_eq_u32 s29, 1\ns_cselect_b32 s30, 1.0, 0')
    a('s_cmp_eq_u32 s29, 4\ns_cselect_b32 s30, 1.0, s30')
    a(f's_cmp_lt_u32 s29, 2\ns_cselect_b32 s31, {f32(CQ)}, 1.0')
    a('s_lshr_b32 s32, s3, 1\ns_lshl_b32 s32, s32, 7\ns_and_b32 s33, s3, 1\ns_lshl_b32 s33, s33, 4\ns_add_u32 s32, s32, s33')
    if WS_MOD: a(f's_add_u32 s32, s32, {WS_MOD}')
    a('s_waitcnt vmcnt(4)')
    for i in range(4): a(f'v_lshlrev_b32 {C[i]}, 16, {C[i]}')
    for i in range(4): a(f'v_mul_f32 {U[i]}, {f32(-math.log2(math.e))}, {C[i]}')
    for i in range(4): a(f'v_exp_f32 {U[i]}, {U[i]}')
    for i in range(4): a(f'v_add_f32 {U[i]}, 1.0, {U[i]}')
    for i in range(4): a(f'v_rcp_f32 {U[i]}, {U[i]}')
    for i in range(4): a(f'v_mul_f32 {C[i]}, {C[i]}, {U[i]}')
    for i in range(4):
        a(f's_waitcnt vmcnt({3-i})')
        for k in range(4):
            a(f'v_lshlrev_b32 {U[2*k]}, 16, {W[4*i+k]}')
            a(f'v_and_b32 {U[2*k+1]}, 0xffff0000, {W[4*i+k]}')
        for e in range(8):
            a(f'v_mul_f32 {ACC[e]}, {U[e]}, {C[i]}' if i == 0 else f'v_fmac_f32 {ACC[e]}, {U[e]}, {C[i]}')
    a('v_lshlrev_b32 v5, 12, v6\nv_lshl_add_u32 v5, v3, 2, v5')
    for e in range(8): a(f'ds_write_b32 v5, {ACC[e]} offset:{512*e}')
    a('v_lshlrev_b32 v5, 5, v0')
    a('s_waitcnt lgkmcnt(0)\ns_barrier')
    a(f'ds_read_b128 {U.sub(0,4)}, v5\nds_read_b128 {U.sub(4,4)}, v5 offset:16')
    a('v_lshrrev_b32 v3, 4, v0')
    a('v_lshrrev_b32 v4, 2, v3\nv_and_b32 v3, 3, v3\nv_lshlrev_b32 v4, 5, v4\nv_lshl_add_u32 v4, v3, 2, v4')
    a('s_waitcnt lgkmcnt(0)')
    for e in range(4): a(f'v_add_f32 {U[e]}, {U[e]}, {U[e+4]}')
    a(f'v_add_f32 {U[0]}, {U[0]}, {U[1]}\nv_add_f32 {U[2]}, {U[2]}, {U[3]}\nv_add_f32 {U[0]}, {U[0]}, {U[2]}')
    for sh in (8, 4, 2, 1):
        a('s_nop 1')
        a(f'v_add_f32_dpp {U[0]}, {U[0]}, {U[0]} row_ror:{sh} row_mask:0xf bank_mask:0xf')
    a(f'v_add_f32 {U[0]}, s30, {U[0]}\nv_mul_f32 {U[0]}, s31, {U[0]}')
    a(f'buffer_store_dword {U[0]}, v4, s[24:27], s32 offen')
    if dbg:
        a('s_cmp_lg_u32 s2, 0\ns_cbranch_scc1 L_k0_end')
        a('s_waitcnt vmcnt(0)\ns_memrealtime s[38:39]\ns_mov_b32 s42, 256\ns_mov_b32 s43, 0x20000\ns_waitcnt lgkmcnt(0)')
        a('v_mov_b32 v8, s36\nv_mov_b32 v9, s38\nv_mov_b32 v10, 0')
        a('buffer_store_dwordx2 v[8:9], v10, s[40:43], 0 offen')
    a('s_endpgm')
    b = Prog()
    T = R('v', 8, 12); XR = R('v', 20, 8); V = R('v', 28, 16); xo, fo = R('v', 3), R('v', 4)
    b('s_sub_u32 s3, s2, 192')
    ln_addr(b, lane, wv, xo, fo, None, T)
    b('s_lshl_b32 s28, s3, 13')
    load_x(b, XR, xo, 's[12:15]', 's28')
    b(f's_lshr_b32 s29, s3, 1\ns_lshl_b32 s29, s29, 14\ns_and_b32 s30, s3, 1\ns_lshl_b32 s30, s30, 7\ns_add_u32 s29, s29, s30\ns_add_u32 s29, s29, {WS_XN}')
    b(f'v_lshlrev_b32 v5, 2, v0\nv_mov_b32 v6, 0\ns_lshl_b32 s31, s3, 10\ns_add_u32 s31, s31, {WS_FLAG}')
    b('buffer_store_dword v6, v5, s[24:27], s31 offen')
    b('s_waitcnt vmcnt(1)')
    unpack(b, V, XR)
    ln_stats(b, V, T, lane, wv)
    for k in range(8): b(f'v_cvt_pk_f16_f32 {XR[k]}, {V[2*k]}, {V[2*k+1]}')
    for i in range(2): b(f'buffer_store_dwordx4 {XR.sub(4*i,4)}, {fo}, s[24:27], s29 offen offset:{2048*i}')
    check_trace(head + a.lines, 'k0 mod'); check_trace(head + b.lines, 'k0 xn')
    p.extend(a); p('L_k0_xn:'); p.extend(b)
    p('L_k0_end:\ns_endpgm')
    q = Prog()
    q(f'.globl {name}\n.p2align 8\n.type {name},@function\n{name}:')
    q.extend(p)
    return q, kernel_footer(name, 48, 0, 48), f'kernel={name} grid=(448,1,1) block=(256,1,1) lds=8192'

def k2(name='k2_kernel'):
    p = Prog()
    lane, wv = R('v', 1), R('v', 2)
    p('s_cmp_ge_u32 s2, 256\ns_cbranch_scc1 L_k2_end')
    p('s_load_dwordx2 s[4:5], s[0:1], 0')
    p('s_load_dwordx2 s[6:7], s[0:1], 104')
    p(f'v_and_b32 {lane}, 63, v0\nv_lshrrev_b32 {wv}, 6, v0')
    T = R('v', 8, 12); XR = R('v', 20, 8); V = R('v', 28, 16); xo, fo, vo = R('v', 3), R('v', 4), R('v', 5)
    PT = R('v', 44, 64); GA = R('v', 108, 16); SC = R('v', 124, 16); SH = R('v', 140, 16); A = R('v', 156, 16)
    ln_addr(p, lane, wv, xo, fo, vo, T)
    p('s_lshr_b32 s29, s2, 1\ns_lshl_b32 s29, s29, 14\ns_and_b32 s30, s2, 1\ns_lshl_b32 s30, s30, 7\ns_add_u32 s29, s29, s30')
    p(f's_add_u32 s30, s29, {WS_PART}')
    p('s_lshl_b32 s28, s2, 13')
    p('s_waitcnt lgkmcnt(0)')
    srd(p, 12, 's4', 's5', 0x200000)
    srd(p, 24, 's6', 's7', WS_END)
    for g in range(8):
        for i in range(2):
            p(f'buffer_load_dwordx4 {PT.sub(8*g+4*i,4)}, {fo}, s[24:27], s30 offen offset:{2048*i}')
        if g < 7: p(f's_add_u32 s30, s30, {2<<20}')
    load_x(p, XR, xo, 's[12:15]', 's28')
    for D, off in ((GA, MOD_GA), (SC, MOD_SC2), (SH, MOD_SH2)):
        p(f's_mov_b32 s31, {WS_MOD + off}')
        for i in range(2):
            for hh in range(2):
                p(f'buffer_load_dwordx4 {D.sub(8*i+4*hh,4)}, {vo}, s[24:27], s31 offen offset:{256*i + 16*hh}')
    p('s_mov_b32 s32, 0x00003f80\ns_mov_b32 s33, 0x3f800000')
    for g in range(8):
        p(f's_waitcnt vmcnt({16 + 2*(7-g)})')
        for k in range(8):
            if g == 0:
                p(f'v_lshlrev_b32 {A[2*k]}, 16, {PT[k]}')
                p(f'v_and_b32 {A[2*k+1]}, 0xffff0000, {PT[k]}')
            else:
                p(f'v_dot2_f32_bf16 {A[2*k]}, {PT[8*g+k]}, s32, {A[2*k]}')
                p(f'v_dot2_f32_bf16 {A[2*k+1]}, {PT[8*g+k]}, s33, {A[2*k+1]}')
    p('s_waitcnt vmcnt(8)')
    unpack(p, V, XR)
    for i in range(16): p(f'v_fmac_f32 {V[i]}, {GA[i]}, {A[i]}')
    for k in range(8): p(f'v_cvt_pk_bf16_f32 {XR[k]}, {V[2*k]}, {V[2*k+1]}')
    p(f's_add_u32 s30, s29, {WS_X1}')
    for i in range(2): p(f'buffer_store_dwordx4 {XR.sub(4*i,4)}, {fo}, s[24:27], s30 offen offset:{2048*i}')
    ln_stats(p, V, T, lane, wv)
    p('s_waitcnt vmcnt(2)')
    for i in range(16): p(f'v_fma_f32 {V[i]}, {V[i]}, {SC[i]}, {SH[i]}')
    for k in range(8): p(f'v_cvt_pk_bf16_f32 {PT[k]}, {V[2*k]}, {V[2*k+1]}')
    p(f's_add_u32 s30, s29, {WS_H2}')
    for i in range(2): p(f'buffer_store_dwordx4 {PT.sub(4*i,4)}, {fo}, s[24:27], s30 offen offset:{2048*i}')
    check_trace(p.lines, 'k2')
    p('L_k2_end:\ns_endpgm')
    q = Prog()
    q(f'.globl {name}\n.p2align 8\n.type {name},@function\n{name}:')
    q.extend(p)
    return q, kernel_footer(name, 172, 0, 48), f'kernel={name} grid=(256,1,1) block=(256,1,1) lds=98304'
```

```python
from gen_attn import *
from layout import *
from gen_tail import *
from gen_small import srd

def kf(name='kf_kernel', stamp=False, pf=True):
    r = AttnRegs()
    lane, wv = R('v', 0), R('v', 1)
    S_WQ = R('s', 40, 4); S_WS = R('s', 24, 4)
    S_QOFF = R('s', 31)
    S_PASS = R('s', 44); S_HOOK = R('s', 21)
    S_KB = R('s', 46, 2); S_VB = R('s', 48, 2); S_WOB = R('s', 50, 2)
    t = r.tmp
    def stampit(p, k):
        if stamp:
            if hasattr(p, 'wait_all'): p.wait_all(vm=False, ds=True)
            p(f's_waitcnt lgkmcnt(0)\ns_memtime s[96:97]\ns_memrealtime s[98:99]\ns_waitcnt lgkmcnt(0)\ns_mov_b32 s{64+2*k}, s96\ns_mov_b32 s{65+2*k}, s98')
    pro = Prog()
    pro(f's_cmp_ge_u32 s2, 256\ns_cbranch_scc1 L_k1_end')
    pro('s_load_dwordx8 s[4:11], s[0:1], 8')
    pro('s_load_dwordx2 s[20:21], s[0:1], 104')
    pro('s_load_dwordx4 s[92:95], s[0:1], 48\ns_load_dwordx2 s[90:91], s[0:1], 64')
    pro('s_load_dwordx2 s[52:53], s[0:1], 0\ns_load_dwordx2 s[56:57], s[0:1], 88')
    stampit(pro, 0)
    pro(f'v_lshrrev_b32 {wv}, 6, v0')
    pro(f'v_and_b32 v0, 63, v0')
    pro(f'v_readfirstlane_b32 {S_WAVE}, {wv}')
    if OPT.get('cpf', 1):
        pro('s_getpc_b64 s[40:41]')
        pro(f's_mov_b32 s42, L_k1_codeend-{name}-64\ns_mov_b32 s43, 0x20000')
        pro(f'v_and_b32 v254, 7, v0\nv_lshlrev_b32 v254, 6, v254\nv_lshl_add_u32 v254, {wv}, 9, v254')
        pro('s_lshr_b32 s3, s2, 3\ns_lshl_b32 s3, s3, 11')
        pro('buffer_load_dword v8, v254, s[40:43], s3 offen')
    pro('s_and_b32 s22, s2, 7')
    pro('s_lshr_b32 s3, s2, 3')
    pro('s_lshl_b32 s23, s22, 19')
    pro(f's_lshl_b32 {S_WLDS}, {S_WAVE}, 12')
    pro(f'v_lshlrev_b32 {r.ba[0]}, 4, {lane}')
    pro(f'v_lshrrev_b32 {t[1]}, 4, {lane}')
    pro(f'v_lshlrev_b32 {t[5]}, 5, {t[1]}')
    pro('s_waitcnt lgkmcnt(0)')
    pro(f's_mov_b32 s24, s20\ns_mov_b32 s25, s21\ns_mov_b32 s26, {WS_END}\ns_mov_b32 s27, 0x20000')
    X = r.ACC.sub(0, 64); SC = r.ACC.sub(64, 64)
    pro(f's_lshl_b32 s28, s3, 16\ns_add_u32 s28, s28, {S_WLDS}\ns_add_u32 s28, s28, {WS_XN}')
    pro(f's_lshl_b32 s29, {S_WAVE}, 9\ns_add_u32 s29, s29, {WS_MOD}')
    for s in range(4):
        for i in range(2):
            pro(f'buffer_load_dwordx4 {SC.sub(16*s+4*i,4)}, {t[5]}, {S_WS}, s29 offen offset:{MOD_SC1 + 128*s + 16*i}')
            pro(f'buffer_load_dwordx4 {SC.sub(16*s+8+4*i,4)}, {t[5]}, {S_WS}, s29 offen offset:{MOD_SH1 + 128*s + 16*i}')
    for rb in range(4):
        for s in range(4):
            pro(f'buffer_load_dwordx4 {X.sub(16*rb+4*s,4)}, {r.ba[0]}, {S_WS}, s28 offen offset:{s*1024}')
        if rb < 3: pro('s_add_u32 s28, s28, 16384')
    pro('s_mov_b32 s54, 0x200000\ns_mov_b32 s55, 0x20000\ns_mov_b32 s58, 0x200000\ns_mov_b32 s59, 0x20000')
    pro(f's_add_u32 {S_KB[0]}, s4, s23\ns_addc_u32 {S_KB[1]}, s5, 0')
    pro(f's_add_u32 {S_VB[0]}, s6, s23\ns_addc_u32 {S_VB[1]}, s7, 0')
    pro(f's_add_u32 {S_WOB[0]}, s10, s23\ns_addc_u32 {S_WOB[1]}, s11, 0')
    pro(f's_mov_b32 {S_WQ[0]}, s8\ns_mov_b32 {S_WQ[1]}, s9\ns_mov_b32 {S_WQ[2]}, 0x400000\ns_mov_b32 {S_WQ[3]}, 0x20000')
    PF = R('v', 254); PFD = R('v', 255)
    if pf:
        pro(f'v_and_b32 {t[0]}, 15, {lane}\nv_lshlrev_b32 {t[0]}, 6, {t[0]}\nv_lshl_add_u32 {PF}, {t[1]}, 13, {t[0]}')
        pro(f's_lshl_b32 s28, s3, 2\ns_add_u32 s28, s28, {S_WAVE}\ns_lshl_b32 s28, s28, 15\ns_lshl_b32 s29, s22, 10\ns_add_u32 s28, s28, s29')
        pro(f'buffer_load_dword {PFD}, {PF}, {S_WQ}, s28 offen')
    def set_kv_srd(p):
        p(f's_mov_b32 s8, {S_KB[0]}\ns_mov_b32 s9, {S_KB[1]}\ns_mov_b32 s10, 0x80000\ns_mov_b32 s11, 0x20000')
        p(f's_mov_b32 s12, {S_VB[0]}\ns_mov_b32 s13, {S_VB[1]}\ns_mov_b32 s14, 0x80000\ns_mov_b32 s15, 0x20000')
        p(f's_mov_b32 {S_STEP}, 16384\ns_mov_b32 {S_SOFF}, 0')
    set_kv_srd(pro)
    def w_voff(p, dst, stride_log2):
        p(f'v_and_b32 {t[0]}, 15, {lane}')
        p(f'v_lshrrev_b32 {t[1]}, 4, {lane}')
        p(f'v_lshlrev_b32 {t[2]}, 1, {t[1]}')
        p(f'v_xor_b32 {t[2]}, {t[0]}, {t[2]}')
        p(f'v_lshlrev_b32 {t[2]}, 4, {t[2]}')
        p(f'v_lshl_add_u32 {dst[0]}, {t[1]}, {stride_log2}, {t[2]}')
        st = 4 * (1 << stride_log2) - 1024
        p(f'v_xor_b32 {dst[1]}, 128, {dst[0]}')
        p(f'v_add_u32 {dst[1]}, {st}, {dst[1]}')
        p(f'v_add_u32 {dst[2]}, {2*st}, {dst[0]}')
        p(f'v_add_u32 {dst[3]}, {2*st}, {dst[1]}')
    w_voff(pro, r.dw, 13)
    pro(f's_lshl_b32 {S_QOFF}, s22, 2\ns_add_u32 {S_QOFF}, {S_QOFF}, {S_WAVE}\ns_lshl_b32 {S_QOFF}, {S_QOFF}, 8')
    qslot = lambda ks: (ks + 2) % 3
    def q_dma(h):
        ks, u = h >> 1, h & 1
        base = (VBASE if u else KBASE) + qslot(ks) * 16384
        if ks < 16:
            out = []
            for p in range(4):
                pre = [f's_add_u32 m0, {S_WLDS}, {base}'] if p == 0 else []
                if p == 0 and h > 0: pre = [f's_add_u32 {S_QOFF}, {S_QOFF}, {16*8192}'] + pre
                out.append((pre, f'buffer_load_dwordx4 {r.dw[p]}, {S_WQ}, {S_QOFF} offen offset:{1024*p} lds'))
            return out
        if ks < 18:
            d = dma_tile(r, ks - 16)[4*u:4*u+4]
            if ks == 17 and u == 0:
                d[0] = ([f's_add_u32 {S_SOFF}, {S_SOFF}, {S_STEP}'] + d[0][0], d[0][1])
            return d
        return []
    for h in range(6):
        for pre, ins in q_dma(h):
            for x in pre: pro(x)
            if pre: pro('s_nop 0')
            pro(ins)
    setup_dma_kv(pro, r, lane, wv)
    setup_addr(pro, r, lane, wv)
    pro(f'v_add_u32 {r.ba[1]}, {VBASE + 3*16384}, {r.ba[0]}')
    pro(f'v_lshrrev_b32 {t[2]}, 2, {lane}')
    pro(f'v_and_b32 {t[3]}, 7, {t[2]}')
    pro(f'v_lshlrev_b32 {t[3]}, 1, {t[3]}')
    pro(f'v_and_b32 {t[4]}, 3, {lane}')
    pro(f'v_xor_b32 {t[3]}, {t[3]}, {t[4]}')
    pro(f'v_lshlrev_b32 {t[3]}, 4, {t[3]}')
    pro(f'v_lshl_add_u32 {t[3]}, {t[2]}, 8, {t[3]}')
    pro(f'v_add_u32 {r.wa0[0]}, {S_WLDS}, {t[3]}')
    for nt in range(1, 8):
        pro(f'v_xor_b32 {r.wa0[nt]}, {64*(nt>>1) + 8*(nt&1)}, {r.wa0[0]}')
    for nt in range(8):
        pro(f'v_add_u32 {r.wa1q[nt]}, {VBASE}, {r.wa0[nt]}')
    def zero_ov(p):
        for i in range(128): p(f'v_accvgpr_write_b32 {r.O[i]}, 0')
        for i in range(64): p(f'v_accvgpr_write_b32 {r.Vf[i]}, 0')
    zero_ov(pro)
    pro(f's_mov_b32 {S_PASS}, 0\ns_mov_b32 {S_HOOK}, 0x1fe\ns_mov_b32 {S_TAG}, 1')
    wr = [R('v', 9), R('v', 10)]
    pro(f'v_add_u32 {wr[0]}, {S_WLDS}, {r.ba[0]}')
    pro(f'v_add_u32 {wr[1]}, {S_WLDS}, {r.ba[1]}')
    wr2 = R('v', 11)
    pro(f'v_add_u32 {wr2}, {S_WLDS}, {wr[1]}')
    def frag_write(s, rb, D):
        if s == 0: return f'ds_write_b128 {wr[0]}, {D} offset:{KBASE + 3*16384 + 1024*rb}'
        if s == 1: return f'ds_write_b128 {wr[1]}, {D} offset:{1024*rb}'
        return f'ds_write_b128 {wr2}, {D} offset:{16384 + (s-2)*4096 + 1024*rb}'
    T = r.B1
    for rb in range(4):
        pro(f's_waitcnt vmcnt({24 + (1 if pf else 0) + 4*(3-rb)})')
        for s in range(4):
            x = X.sub(16*rb+4*s, 4); tt = T.sub(8*(s&1), 8)
            for i in range(8):
                hi = i & 1
                pro(f'v_fma_mix_f32 {tt[i]}, {x[i>>1]}, {SC[16*s+i]}, {SC[16*s+8+i]} op_sel:[{hi},0,0] op_sel_hi:[1,0,0]')
            for i in range(4):
                pro(f'v_cvt_pk_bf16_f32 {x[i]}, {tt[2*i]}, {tt[2*i+1]}')
            pro(frag_write(s, rb, x))
    pro('s_waitcnt lgkmcnt(0)')
    pro('s_barrier')
    stampit(pro, 1)
    def q_finish(i):
        out = []
        for rb in range(4):
            for k in range(4):
                a = r.ACC.sub(16*(2*i + (k>>1)) + 4*rb, 4)
                out.append(f'v_cvt_pk_bf16_f32 {r.q(rb, i)[k]}, {a[2*(k&1)]}, {a[2*(k&1)+1]}')
        return out
    pro.extend(gemm(r, r.wa0, r.wa1q, qslot, q_dma, q_finish))
    pro(f's_add_u32 {S_SOFF}, {S_SOFF}, {S_STEP}')
    stampit(pro, 2)
    body = []; tails = None
    for j4 in (3, 0, 1, 2):
        ex = None
        if j4 == 0:
            ex = {96: [f's_bitcmp1_b32 {S_HOOK}, {S_CNT}'], 98: ['s_cbranch_scc1 L_k1_switch', 'L_k1_back:']}
        if j4 == 2:
            ex = {120: [f's_sub_u32 {S_CNT}, {S_CNT}, 1'], 122: [f's_cmp_lg_u32 {S_CNT}, 0']}
        if OPT.get('itst'):
            ex = dict(ex or {})
            idx = (3, 0, 1, 2).index(j4)
            ex[4] = ['s_memtime s[96:97]']
            ex[6] = [f's_lshl_b32 s98, {S_CNT}, 2', f's_sub_u32 s98, {32 + idx}, s98']
            ex[16] = [f'v_cmp_eq_u32 vcc, s98, v0', f'v_mov_b32 {t[5]}, s96', 's_nop 1', f'v_cndmask_b32 v8, v8, {t[5]}, vcc']
        o, tails = iteration(r, j4, ex)
        body += o
    pro('s_waitcnt vmcnt(8)')
    pro('s_barrier')
    kr = k_reads(r, 0)
    for d in kr[:15]: pro(d)
    pro('s_waitcnt lgkmcnt(11)')
    for qb in range(4):
        for ds in range(4):
            c = '0' if ds == 0 else r.s(qb, 0)
            pro(f'{MF} {r.s(qb, 0)}, {r.kf(0, ds)}, {r.q(qb, ds)}, {c}')
    for qb in range(4):
        s = r.s(qb, 0); x = r.nm(qb)
        if qb == 3: pro('s_nop 1')
        if qb == 2: pro('s_nop 0')
        pro(f'v_max3_f32 {x[0]}, {s[0]}, {s[1]}, {s[2]}')
        pro(f'v_max_f32 {x[0]}, {x[0]}, {s[3]}')
    ent = Prog()
    for qb in range(4): x = r.nm(qb); ent(f'v_mov_b32 {x[1]}, {x[0]}')
    for qb in range(4): x = r.nm(qb); ent(f'v_permlane32_swap_b32 {x[0]}, {x[1]}')
    for qb in range(4): x = r.nm(qb); ent(f'v_max_f32 {x[0]}, {x[0]}, {x[1]}')
    for qb in range(4): x = r.nm(qb); ent(f'v_mov_b32 {x[1]}, {x[0]}')
    for qb in range(4): x = r.nm(qb); ent(f'v_permlane16_swap_b32 {x[0]}, {x[1]}')
    for qb in range(4): x = r.nm(qb); ent(f'v_max_f32 {x[0]}, {x[0]}, {x[1]}')
    for qb in range(4):
        x = r.nm(qb)
        for i in (1, 2, 3, 0): ent(f'v_sub_f32 {x[i]}, 0, {x[0]}')
    exp_tail = {x.split()[1].rstrip(',') for x in tails if x.startswith('v_exp')}
    used = set()
    for x in tails:
        for tok in x.replace(',', ' ').split()[1:]: used.add(tok)
    for i in range(32, 64):
        if str(r.S[i]) in used:
            ent(f'v_mov_b32 {r.S[i]}, {"0xff800000" if str(r.S[i]) in exp_tail else "0"}')
    for i in range(16, 32): ent(f'v_mov_b32 {r.P[i]}, 0')
    for i in range(8): ent(f'v_mov_b32 {r.lm[i]}, 0')
    for i in range(4): ent(f'v_mov_b32 {r.la[i]}, 0')
    for i in range(4): ent(f'v_mov_b32 {r.ones[i]}, 0x3f803f80')
    ent(f's_mov_b32 {S_CNT}, 8')
    ent('s_waitcnt lgkmcnt(0)')
    S_T = R('s', 40, 4)
    S_U = 's60'
    XW = 's61'
    ST = r.B1
    def h_uidx(p):
        p(f's_lshl_b32 {S_U}, s3, 2\ns_add_u32 {S_U}, {S_U}, {S_WAVE}')
        p(f's_lshl_b32 {XW}, {S_WAVE}, 13\ns_add_u32 {XW}, {XW}, {XBASE}')
    def h_load_rows(p, lo, hi, nbytes, buf):
        p(f's_mov_b32 {S_T[0]}, {lo}\ns_mov_b32 {S_T[1]}, {hi}\ns_mov_b32 {S_T[2]}, {nbytes}')
        p(f'v_lshrrev_b32 {t[0]}, 3, {lane}\nv_and_b32 {t[1]}, 7, {lane}\nv_lshlrev_b32 {t[1]}, 4, {t[1]}\nv_lshl_add_u32 {t[0]}, {t[0]}, 10, {t[1]}')
        p(f's_lshr_b32 s28, {S_U}, 3\ns_lshl_b32 s28, s28, 15\ns_and_b32 s29, {S_U}, 7\ns_lshl_b32 s29, s29, 7\ns_add_u32 s28, s28, s29')
        p(f's_add_u32 m0, {XW}, {4096*buf}')
        for i in range(4):
            p('s_add_u32 s28, s28, 7168' if i else 's_nop 0')
            p(f'buffer_load_dwordx4 {t[0]}, {S_T}, s28 offen offset:{1024*i} lds')
    def h_read_rows(p, buf):
        p(f'v_lshrrev_b32 {t[0]}, 2, {lane}\nv_and_b32 {t[1]}, 3, {lane}\nv_lshlrev_b32 {t[1]}, 3, {t[1]}\nv_lshl_add_u32 {t[0]}, {t[0]}, 7, {t[1]}\nv_add_u32 {t[0]}, {XW}, {t[0]}')
        for n in range(4):
            for u in range(2):
                p(f'ds_read_b64_tr_b16 {ST.sub(4*n+2*u, 2)}, {t[0]} offset:{4096*buf + 32*n + 2048*u}')
    def h_store(p, n, so): p(f'buffer_store_dwordx4 {ST.sub(4*n, 4)}, {r.ba[0]}, {S_WS}, {so} offen sc1')
    def h_gbase(p):
        p(f's_bfe_u32 s29, {S_U}, 0x20001\ns_lshl_b32 s23, s22, 2\ns_add_u32 s29, s29, s23\ns_mul_i32 s29, s29, {WF_WAVE}\ns_add_u32 s29, s29, {WS_WF}')
        p(f's_and_b32 s23, {S_U}, 1')
    H = {}
    h = H[8] = Prog()
    h_uidx(h)
    h_load_rows(h, S_WOB[0], S_WOB[1], 0x80000, 0)
    h = H[7] = Prog()
    h_read_rows(h, 0)
    h_gbase(h)
    h(f's_lshl_b32 s23, s23, 16\ns_add_u32 s29, s29, s23')
    h(f's_lshr_b32 s23, {S_U}, 5\ns_lshl_b32 s23, s23, 13\ns_add_u32 s29, s29, s23')
    h(f's_bfe_u32 s23, {S_U}, 0x20003\ns_lshl_b32 s23, s23, 10\ns_add_u32 s29, s29, s23')
    h('s_waitcnt lgkmcnt(0)')
    for n in range(4):
        h_store(h, n, 's29')
        if n < 3: h(f's_add_u32 s29, s29, {4096 if n != 1 else 32768 - 4096}')
    h(f's_cmp_ge_u32 {S_U}, 112\ns_cbranch_scc1 L_k1_back')
    h(f'v_lshrrev_b32 {t[0]}, 2, {lane}\nv_mul_u32_u24 {t[0]}, 3584, {t[0]}\nv_and_b32 {t[1]}, 3, {lane}\nv_lshl_add_u32 {t[0]}, {t[1]}, 4, {t[0]}')
    h(f's_and_b32 s28, {S_U}, 15\ns_mul_i32 s28, s28, {32*3584}\ns_lshr_b32 s29, {S_U}, 4\ns_lshl_b32 s29, s29, 6\ns_add_u32 s28, s28, s29')
    h(f's_mul_i32 s29, s22, 448\ns_add_u32 s28, s28, s29\ns_add_u32 s29, s28, {16*3584 - 1024}')
    h(f's_mov_b32 {S_T[2]}, {512*3584}')
    for mtx in range(2):
        h(f's_add_u32 m0, {XW}, {4096 + 2048*mtx}')
        h(f's_mov_b32 {S_T[0]}, s{92+2*mtx}\ns_mov_b32 {S_T[1]}, s{93+2*mtx}')
        h(f'buffer_load_dwordx4 {t[0]}, {S_T}, s28 offen lds')
        h(f'buffer_load_dwordx4 {t[0]}, {S_T}, s29 offen offset:1024 lds')
    h = H[6] = Prog()
    h(f's_cmp_ge_u32 {S_U}, 112\ns_cbranch_scc1 L_k1_back')
    h(f'v_lshrrev_b32 {t[0]}, 2, {lane}\nv_lshlrev_b32 {t[0]}, 6, {t[0]}\nv_and_b32 {t[1]}, 1, {lane}\nv_lshl_add_u32 {t[0]}, {t[1]}, 3, {t[0]}')
    h(f'v_bfe_u32 {t[1]}, {lane}, 1, 1\nv_lshl_add_u32 {t[0]}, {t[1]}, 11, {t[0]}\nv_add_u32 {t[0]}, {XW}, {t[0]}')
    for n in range(4):
        for u in range(2):
            h(f'ds_read_b64_tr_b16 {ST.sub(4*n+2*u, 2)}, {t[0]} offset:{4096 + 16*n + 1024*u}')
    h(f's_mul_i32 s62, s22, {4*WF_WAVE}\ns_add_u32 s62, s62, {WS_WF + 128*1024}')
    h(f's_bfe_u32 s23, {S_U}, 0x20002\ns_mul_i32 s23, s23, {28*1024}\ns_add_u32 s62, s62, s23')
    h(f's_and_b32 s23, {S_U}, 3\ns_lshl_b32 s23, s23, 10\ns_add_u32 s62, s62, s23')
    h(f's_lshr_b32 s63, {S_U}, 4\ns_lshl_b32 s63, s63, 2')
    h('s_waitcnt lgkmcnt(0)')
    for n in range(4):
        h(f's_add_u32 s28, s63, {n}\ns_mul_i32 s29, s28, 37\ns_lshr_b32 s29, s29, 8\ns_mul_i32 s29, s29, {WF_WAVE - 28*1024}')
        h('s_lshl_b32 s28, s28, 12\ns_add_u32 s29, s29, s28\ns_add_u32 s29, s29, s62')
        h_store(h, n, 's29')
    h(f's_cmp_ge_u32 {S_U}, 56\ns_cbranch_scc1 L_k1_back')
    h(f's_mul_i32 s28, s22, {224*1024}\ns_add_u32 s62, s90, s28\ns_addc_u32 s63, s91, 0')
    h_load_rows(h, 's62', 's63', 224*1024, 0)
    h = H[5] = Prog()
    h(f's_cmp_ge_u32 {S_U}, 56\ns_cbranch_scc1 L_k1_back')
    h_read_rows(h, 0)
    h_gbase(h)
    h(f's_mul_i32 s23, s23, {28*1024}\ns_add_u32 s29, s29, s23')
    h(f's_lshr_b32 s23, {S_U}, 3\ns_add_u32 s23, s23, 240\ns_lshl_b32 s23, s23, 10\ns_add_u32 s29, s29, s23')
    h('s_waitcnt lgkmcnt(0)')
    for n in range(4):
        h_store(h, n, 's29')
        if n < 3: h(f's_add_u32 s29, s29, {7*1024}')
    h = H[4] = Prog()
    tail_setup(r, h)
    h(f's_lshl_b32 s28, s22, 7\ns_lshl_b32 s29, s3, 2\ns_add_u32 s28, s28, s29\ns_add_u32 s28, s28, {WS_PFLAG}')
    h(f'v_mov_b32 {t[0]}, {S_TAG}\nv_mov_b32 {t[1]}, 0')
    h(f'buffer_store_dword {t[0]}, {t[1]}, {S_WS}, s28 offen sc1')
    h = H[3] = Prog()
    h(f's_lshl_b32 s62, s22, 7\ns_add_u32 s62, s62, {WS_PFLAG}')
    h(f'buffer_load_dword {PFD}, v245, {S_WS}, s62 offen sc1')
    h = H[2] = Prog()
    h('s_mov_b32 s28, 0')
    h('L_k1_pchk:')
    h(f'v_cmp_ne_u32 vcc, {S_TAG}, {PFD}')
    h('s_add_u32 s28, s28, 1\ns_cmp_gt_u32 s28, 0x40000\ns_cbranch_scc1 L_k1_pok')
    h('s_cbranch_vccz L_k1_pok')
    h(f'buffer_load_dword {PFD}, v245, {S_WS}, s62 offen sc1')
    h('s_waitcnt vmcnt(0)')
    h('s_branch L_k1_pchk')
    h('L_k1_pok:')
    h(f'v_lshlrev_b32 {PF}, 6, {lane}')
    h(f's_mul_i32 s28, s22, {4*WF_WAVE}\ns_mul_i32 s29, {S_U}, {4*WF_WAVE//128}\ns_add_u32 s28, s28, s29\ns_add_u32 s28, s28, {WS_WF}')
    for i in range(3):
        h(f'buffer_load_dword {t[i]}, {PF}, {S_WS}, s28 offen {OPT["pfsc"]}')
        if i < 2: h(f's_add_u32 s28, s28, {4096 if i == 0 else 4*WF_WAVE//128 - 8192}')
    h = H[1] = Prog()
    for i in range(4): h(f'v_mov_b32 {r.dk[i]}, {r.ba[0]}\nv_mov_b32 {r.dv[i]}, {r.ba[0]}')
    h(f's_mov_b32 s8, s24\ns_mov_b32 s9, s25\ns_mov_b32 s10, {WS_END}')
    h(f's_add_u32 s12, s24, 4096\ns_addc_u32 s13, s25, 0\ns_mov_b32 s14, {WS_END - 4096}')
    h(f's_lshl_b32 {S_SOFF}, s22, 2\ns_add_u32 {S_SOFF}, {S_SOFF}, {S_WAVE}\ns_mul_i32 {S_SOFF}, {S_SOFF}, {WF_WAVE}\ns_add_u32 {S_SOFF}, {S_SOFF}, {WS_WF}')
    h(f's_mov_b32 {S_STEP}, 8192')
    epi = Prog()
    stampit(epi, 3)
    for x in tails:
        epi(x)
        if x.startswith('v_exp'): epi('s_nop 0')
    inv = [t[0], t[1], t[2], t[3]]
    va = []
    for pair in range(2):
        va.append(f'v_add_f32 {inv[2*pair]}, {r.la[2*pair]}, {r.la[2*pair+1]}')
    for pair in range(2): va.append(f'v_mov_b32 {t[4+pair]}, {inv[2*pair]}')
    va.append('s_nop 0')
    for pair in range(2): va.append(f'v_permlane32_swap_b32 {inv[2*pair]}, {t[4+pair]}')
    for pair in range(2): va.append(f'v_add_f32 {inv[2*pair]}, {inv[2*pair]}, {t[4+pair]}')
    for pair in range(2): va.append(f'v_mov_b32 {t[4+pair]}, {inv[2*pair]}')
    va.append('s_nop 0')
    for pair in range(2): va.append(f'v_permlane16_swap_b32 {inv[2*pair]}, {t[4+pair]}')
    for pair in range(2): va.append(f'v_add_f32 {inv[2*pair]}, {inv[2*pair]}, {t[4+pair]}')
    va.append(f'v_add_f32 {t[4]}, {inv[0]}, {inv[2]}')
    va.append(f'v_add_f32 {t[5]}, {r.lm[0]}, {r.lm[4]}')
    va.append(f'v_add_f32 {t[4]}, {t[4]}, {t[5]}')
    va.append(f'v_cmp_ngt_f32 vcc, 0x4e800000, {t[4]}')
    va.append(f'v_rcp_f32 {inv[0]}, {inv[0]}')
    va.append(f'v_rcp_f32 {inv[1]}, {r.lm[0]}')
    va.append(f's_cmp_lg_u64 vcc, 0')
    va.append(f's_cselect_b32 s28, 1, 0')
    va.append(f'v_and_b32 {t[4]}, 3, {lane}')
    va.append(f'v_lshlrev_b32 {t[4]}, 13, {t[4]}')
    va.append(f'v_lshl_add_u32 {t[4]}, {wv}, 2, {t[4]}')
    va.append(f'v_add_u32 {t[4]}, {XBASE}, {t[4]}')
    va.append(f'v_mov_b32 {t[5]}, s28')
    va.append(f'ds_write_b32 {t[4]}, {t[5]}')
    va.append(f'v_rcp_f32 {inv[2]}, {inv[2]}')
    va.append(f'v_rcp_f32 {inv[3]}, {r.lm[4]}')
    va.append(f'v_lshlrev_b32 {t[4]}, 13, {wv}')
    va.append(f'v_add_u32 {t[4]}, {XBASE}, {t[4]}')
    va.append('s_waitcnt lgkmcnt(0)')
    va.append('s_barrier')
    FL = r.B1.sub(0, 4)
    va.append(f'ds_read_b128 {FL}, {t[4]}')
    def norm(qb, s):
        T8 = r.S.sub(8 * ((qb * 4 + s) % 4), 8); D = r.S.sub(32 + 4 * ((qb * 4 + s) % 8), 4)
        o = []
        for i in range(8): o.append(f'v_accvgpr_read_b32 {T8[i]}, {r.O[32*qb + 8*s + i]}')
        for i in range(8): o.append(f'v_mul_f32 {T8[i]}, {T8[i]}, {inv[qb]}')
        for i in range(4): o.append(f'v_cvt_pk_bf16_f32 {D[i]}, {T8[2*i]}, {T8[2*i+1]}')
        o.append(frag_write(s, qb, D))
        return o
    va += norm(0, 0)
    va.append('s_waitcnt lgkmcnt(1)')
    va.append(f'v_or3_b32 {FL[0]}, {FL[0]}, {FL[1]}, {FL[2]}')
    va.append(f'v_or_b32 {FL[0]}, {FL[0]}, {FL[3]}')
    va.append('s_nop 0')
    va.append(f'v_readfirstlane_b32 s28, {FL[0]}')
    mf = [msum(r, 1, 0), msum(r, 1, 1)] + pv_mfmas(r, 1)
    epi('s_nop 0')
    for n, m in enumerate(mf):
        epi(m)
        k = 0
        while va and k < 2:
            x = va.pop(0); epi(x)
            k += 2 if x.startswith(('v_rcp', 'ds_')) else (0 if x.startswith('s_') else 1)
    for x in va: epi(x)
    epi('s_nop 1')
    epi(f's_andn2_b32 s28, s28, {S_PASS}')
    epi('s_cbranch_scc1 L_k1_fallback')
    e = Em(vq=['old'] * 8)
    st = AStream(a_regs(), r.ba[0])
    e(f's_add_u32 {S_AOFF}, {S_SOFF}, {-4096 & 0xffffffff}')
    st.skip(16)
    e(f'v_add_u32 {t[4]}, {VBASE}, {wr[0]}')
    e.wait(vm=['old'])
    for qb in range(4):
        for s in range(4):
            i = 4 * qb + s
            st.issue(e)
            nn = norm(qb, s) if (qb, s) != (0, 0) else []
            for x in nn[:10]: e(x)
            e(f'ds_read_b128 {st.regs[i]}, {t[4] if i & 4 else wr[0]} offset:{(i >> 3) * 16384 + (i & 3) * 1024}')
            e.seen.add(('A', i))
            for x in nn[10:]: e(x)
    e(f's_lshl_b32 s28, s22, 21\ns_lshl_b32 s29, s3, 16\ns_add_u32 s28, s28, s29\ns_add_u32 s28, s28, {S_WLDS}\ns_add_u32 s28, s28, {WS_PART}')
    for i in range(1, 4): e(f's_add_u32 s{32+i}, s28, {16384*i}')
    e('s_mov_b32 s32, s28')
    e('s_waitcnt lgkmcnt(0)')
    e('s_barrier')
    stampit(e, 4)
    tail(r, e, st, stampit)
    if stamp:
        e('s_waitcnt vmcnt(0)')
        stampit(e, 12)
        e(f's_lshl_b32 s28, s2, 9\ns_lshl_b32 s29, {S_WAVE}, 7\ns_add_u32 s28, s28, s29\ns_add_u32 s28, s28, {WS_STAMP}')
        if OPT.get('itst'):
            e(f's_lshl_b32 s30, s2, 10\ns_lshl_b32 s29, {S_WAVE}, 8\ns_add_u32 s30, s30, s29\ns_add_u32 s30, s30, {WS_STAMP + (1 << 18)}')
            e(f'v_lshlrev_b32 {t[0]}, 2, v0')
            e(f'buffer_store_dword v8, {t[0]}, {S_WS}, s30 offen')
        e(f'v_mov_b32 {t[0]}, 0')
        for k in range(13):
            e(f'v_mov_b32 {r.S[2*k]}, s{64+2*k}\nv_mov_b32 {r.S[2*k+1]}, s{65+2*k}')
            e(f'buffer_store_dwordx2 {r.S.sub(2*k,2)}, {t[0]}, {S_WS}, s28 offen offset:{8*k}')
    if OPT.get('dbg'):
        e(f's_cmp_lg_u32 s2, {OPT["dbg"] - 1}\ns_cbranch_scc1 L_k1_end')
        e('s_load_dwordx2 s[40:41], s[0:1], 96\ns_waitcnt lgkmcnt(0)')
        e(f's_sub_u32 s28, s40, 512\ns_subb_u32 s29, s41, 0\ns_mov_b32 s42, 256')
        e('s_load_dwordx2 s[30:31], s[28:29], 0\ns_waitcnt lgkmcnt(0)')
        e(f's_sub_u32 s31, s31, s30\nv_mov_b32 {t[1]}, s31')
        e(f'buffer_store_dword {t[1]}, {t[0]}, s[40:43], 0 offen offset:4')
        for k in range(13):
            e(f's_sub_u32 s28, s{65+2*k}, s30\nv_mov_b32 {t[1]}, s28')
            e(f'buffer_store_dword {t[1]}, {t[0]}, s[40:43], 0 offen offset:{8 + 4*k}')
            e('s_waitcnt vmcnt(0)')
        e(f's_sub_u32 s28, s70, s68\nv_mov_b32 {t[1]}, s28')
        e(f'buffer_store_dword {t[1]}, {t[0]}, s[40:43], 0 offen offset:60')
    epi.extend(e.out)
    fb = Prog()
    fb('s_waitcnt vmcnt(0) lgkmcnt(0)')
    fb('s_barrier')
    set_kv_srd(fb)
    setup_dma_kv(fb, r, lane, wv)
    for qb in range(4): fb(f'v_mov_b32 {r.nm(qb)[0]}, 0xff800000')
    fb(f's_mov_b32 {S_CNT}, 32')
    fl = Prog()
    for pre, ins in dma_tile(r, 0)[:4]:
        for x in pre: fl(x); fl('s_nop 0')
        fl(ins)
    fl(f's_add_u32 {S_SOFF}, {S_SOFF}, {S_STEP}')
    fl('s_waitcnt vmcnt(0)')
    fl('s_barrier')
    for d in kr[:8]: fl(d)
    fl('s_waitcnt lgkmcnt(0)')
    for d in kr[8:]: fl(d)
    fl('s_waitcnt lgkmcnt(0)')
    fl('s_barrier')
    for kb in range(4):
        for qb in range(4):
            for ds in range(4):
                c = '0' if ds == 0 else r.s(qb, kb)
                fl(f'{MF} {r.s(qb, kb)}, {r.kf(kb, ds)}, {r.q(qb, ds)}, {c}')
    fl('s_nop 7')
    for kb in range(4):
        for qb in range(4):
            s = r.s(qb, kb); x = r.nm(qb)[0]
            fl(f'v_max3_f32 {x}, {x}, {s[0]}, {s[1]}')
            fl(f'v_max3_f32 {x}, {x}, {s[2]}, {s[3]}')
    fl(f's_sub_u32 {S_CNT}, {S_CNT}, 1')
    fl(f's_cmp_lg_u32 {S_CNT}, 0')
    fe = Prog()
    fe(f's_mov_b32 {S_SOFF}, 0\ns_mov_b32 {S_PASS}, 1\ns_mov_b32 {S_HOOK}, 2')
    for tt in range(2):
        for pre, ins in dma_tile(r, tt):
            for x in pre: fe(x); fe('s_nop 0')
            fe(ins)
        fe(f's_add_u32 {S_SOFF}, {S_SOFF}, {S_STEP}')
    zero_ov(fe)
    fe('s_waitcnt vmcnt(8)')
    fe('s_barrier')
    for d in kr[:15]: fe(d)
    def with_hook(b, blk):
        i = b.index('L_k1_back:')
        return b[:i] + blk.lines + ['s_branch L_k1_back'] + b[i:]
    br = ['s_cbranch_scc1 L_k1_loop']
    tr = pro.lines + ent.lines
    for c in range(8, 0, -1): tr += with_hook(body, H[c]) + br
    check_trace(tr + epi.lines, 'kf main')
    i = epi.lines.index('s_cbranch_scc1 L_k1_fallback')
    check_trace(body + br + epi.lines[:i+1] + fb.lines + fl.lines + br + fl.lines + br + fe.lines + ['s_branch x'] + ent.lines + body, 'k1 fallback')
    p = Prog()
    p(f'.globl {name}\n.p2align 8\n.type {name},@function\n{name}:')
    p.extend(pro)
    p('L_k1_entry:')
    p.extend(ent)
    p('.p2align 6\nL_k1_loop:')
    p.extend(body)
    p('s_cbranch_scc1 L_k1_loop')
    p.extend(epi)
    p('L_k1_end:\ns_endpgm')
    p('L_k1_switch:')
    for c in range(8, 1, -1): p(f's_cmp_eq_u32 {S_CNT}, {c}\ns_cbranch_scc1 L_k1_h{c}')
    for c in range(1, 9):
        p(f'L_k1_h{c}:')
        p.extend(H[c])
        p('s_branch L_k1_back')
    p('L_k1_fallback:')
    p.extend(fb)
    p('L_k1_fbloop:')
    p.extend(fl)
    p('s_cbranch_scc1 L_k1_fbloop')
    p.extend(fe)
    p('s_branch L_k1_entry')
    p('L_k1_codeend:')
    return p, kernel_footer(name, 256, 256, 100), f'kernel={name} grid=(256,1,1) block=(256,1,1) lds=163840'
```

```python
from gen_attn import *
from layout import *
from gen_tail import *
from gen_small import srd

def kf(name='kf_kernel', stamp=False, pf=True):
    r = AttnRegs()
    lane, wv = R('v', 0), R('v', 1)
    S_WQ = R('s', 40, 4); S_WS = R('s', 24, 4)
    S_QOFF = R('s', 31)
    S_PASS = R('s', 44); S_HOOK = R('s', 21)
    S_KB = R('s', 46, 2); S_VB = R('s', 48, 2); S_WOB = R('s', 50, 2)
    t = r.tmp
    def stampit(p, k):
        if stamp:
            if hasattr(p, 'wait_all'): p.wait_all(vm=False, ds=True)
            p(f's_waitcnt lgkmcnt(0)\ns_memtime s[96:97]\ns_memrealtime s[98:99]\ns_waitcnt lgkmcnt(0)\ns_mov_b32 s{64+2*k}, s96\ns_mov_b32 s{65+2*k}, s98')
    pro = Prog()
    pro(f's_cmp_ge_u32 s2, 256\ns_cbranch_scc1 L_k1_end')
    pro('s_load_dwordx8 s[4:11], s[0:1], 8')
    pro('s_load_dwordx2 s[20:21], s[0:1], 104')
    pro('s_load_dwordx4 s[92:95], s[0:1], 48\ns_load_dwordx2 s[90:91], s[0:1], 64')
    pro('s_load_dwordx2 s[52:53], s[0:1], 0\ns_load_dwordx2 s[56:57], s[0:1], 88')
    stampit(pro, 0)
    pro(f'v_lshrrev_b32 {wv}, 6, v0')
    pro(f'v_and_b32 v0, 63, v0')
    pro(f'v_readfirstlane_b32 {S_WAVE}, {wv}')
    if OPT.get('cpf', 1):
        pro('s_getpc_b64 s[40:41]')
        pro(f's_mov_b32 s42, L_k1_codeend-{name}-64\ns_mov_b32 s43, 0x20000')
        pro(f'v_and_b32 v254, 7, v0\nv_lshlrev_b32 v254, 6, v254\nv_lshl_add_u32 v254, {wv}, 9, v254')
        pro('s_lshr_b32 s3, s2, 3\ns_lshl_b32 s3, s3, 11')
        pro('buffer_load_dword v8, v254, s[40:43], s3 offen')
    pro('s_and_b32 s22, s2, 7')
    pro('s_lshr_b32 s3, s2, 3')
    pro('s_lshl_b32 s23, s22, 19')
    pro(f's_lshl_b32 {S_WLDS}, {S_WAVE}, 12')
    pro(f'v_lshlrev_b32 {r.ba[0]}, 4, {lane}')
    pro(f'v_lshrrev_b32 {t[1]}, 4, {lane}')
    pro(f'v_lshlrev_b32 {t[5]}, 5, {t[1]}')
    pro('s_waitcnt lgkmcnt(0)')
    pro(f's_mov_b32 s24, s20\ns_mov_b32 s25, s21\ns_mov_b32 s26, {WS_END}\ns_mov_b32 s27, 0x20000')
    X = r.ACC.sub(0, 64); SC = r.ACC.sub(64, 64)
    pro(f's_lshl_b32 s28, s3, 16\ns_add_u32 s28, s28, {S_WLDS}\ns_add_u32 s28, s28, {WS_XN}')
    pro(f's_lshl_b32 s29, {S_WAVE}, 9\ns_add_u32 s29, s29, {WS_MOD}')
    for s in range(4):
        for i in range(2):
            pro(f'buffer_load_dwordx4 {SC.sub(16*s+4*i,4)}, {t[5]}, {S_WS}, s29 offen offset:{MOD_SC1 + 128*s + 16*i}')
            pro(f'buffer_load_dwordx4 {SC.sub(16*s+8+4*i,4)}, {t[5]}, {S_WS}, s29 offen offset:{MOD_SH1 + 128*s + 16*i}')
    for rb in range(4):
        for s in range(4):
            pro(f'buffer_load_dwordx4 {X.sub(16*rb+4*s,4)}, {r.ba[0]}, {S_WS}, s28 offen offset:{s*1024}')
        if rb < 3: pro('s_add_u32 s28, s28, 16384')
    pro('s_mov_b32 s54, 0x200000\ns_mov_b32 s55, 0x20000\ns_mov_b32 s58, 0x200000\ns_mov_b32 s59, 0x20000')
    pro(f's_add_u32 {S_KB[0]}, s4, s23\ns_addc_u32 {S_KB[1]}, s5, 0')
    pro(f's_add_u32 {S_VB[0]}, s6, s23\ns_addc_u32 {S_VB[1]}, s7, 0')
    pro(f's_add_u32 {S_WOB[0]}, s10, s23\ns_addc_u32 {S_WOB[1]}, s11, 0')
    pro(f's_mov_b32 {S_WQ[0]}, s8\ns_mov_b32 {S_WQ[1]}, s9\ns_mov_b32 {S_WQ[2]}, 0x400000\ns_mov_b32 {S_WQ[3]}, 0x20000')
    PF = R('v', 254); PFD = R('v', 255)
    if pf:
        pro(f'v_and_b32 {t[0]}, 15, {lane}\nv_lshlrev_b32 {t[0]}, 6, {t[0]}\nv_lshl_add_u32 {PF}, {t[1]}, 13, {t[0]}')
        pro(f's_lshl_b32 s28, s3, 2\ns_add_u32 s28, s28, {S_WAVE}\ns_lshl_b32 s28, s28, 15\ns_lshl_b32 s29, s22, 10\ns_add_u32 s28, s28, s29')
        pro(f'buffer_load_dword {PFD}, {PF}, {S_WQ}, s28 offen')
    def set_kv_srd(p):
        p(f's_mov_b32 s8, {S_KB[0]}\ns_mov_b32 s9, {S_KB[1]}\ns_mov_b32 s10, 0x80000\ns_mov_b32 s11, 0x20000')
        p(f's_mov_b32 s12, {S_VB[0]}\ns_mov_b32 s13, {S_VB[1]}\ns_mov_b32 s14, 0x80000\ns_mov_b32 s15, 0x20000')
        p(f's_mov_b32 {S_STEP}, 16384\ns_mov_b32 {S_SOFF}, 0')
    set_kv_srd(pro)
    def w_voff(p, dst, stride_log2):
        p(f'v_and_b32 {t[0]}, 15, {lane}')
        p(f'v_lshrrev_b32 {t[1]}, 4, {lane}')
        p(f'v_lshlrev_b32 {t[2]}, 1, {t[1]}')
        p(f'v_xor_b32 {t[2]}, {t[0]}, {t[2]}')
        p(f'v_lshlrev_b32 {t[2]}, 4, {t[2]}')
        p(f'v_lshl_add_u32 {dst[0]}, {t[1]}, {stride_log2}, {t[2]}')
        st = 4 * (1 << stride_log2) - 1024
        p(f'v_xor_b32 {dst[1]}, 128, {dst[0]}')
        p(f'v_add_u32 {dst[1]}, {st}, {dst[1]}')
        p(f'v_add_u32 {dst[2]}, {2*st}, {dst[0]}')
        p(f'v_add_u32 {dst[3]}, {2*st}, {dst[1]}')
    w_voff(pro, r.dw, 13)
    pro(f's_lshl_b32 {S_QOFF}, s22, 2\ns_add_u32 {S_QOFF}, {S_QOFF}, {S_WAVE}\ns_lshl_b32 {S_QOFF}, {S_QOFF}, 8')
    qslot = lambda ks: (ks + 2) % 3
    def q_dma(h):
        ks, u = h >> 1, h & 1
        base = (VBASE if u else KBASE) + qslot(ks) * 16384
        if ks < 16:
            out = []
            for p in range(4):
                pre = [f's_add_u32 m0, {S_WLDS}, {base}'] if p == 0 else []
                if p == 0 and h > 0: pre = [f's_add_u32 {S_QOFF}, {S_QOFF}, {16*8192}'] + pre
                out.append((pre, f'buffer_load_dwordx4 {r.dw[p]}, {S_WQ}, {S_QOFF} offen offset:{1024*p} lds'))
            return out
        if ks < 18:
            d = dma_tile(r, ks - 16)[4*u:4*u+4]
            if ks == 17 and u == 0:
                d[0] = ([f's_add_u32 {S_SOFF}, {S_SOFF}, {S_STEP}'] + d[0][0], d[0][1])
            return d
        return []
    for h in range(6):
        for pre, ins in q_dma(h):
            for x in pre: pro(x)
            if pre: pro('s_nop 0')
            pro(ins)
    setup_dma_kv(pro, r, lane, wv)
    setup_addr(pro, r, lane, wv)
    pro(f'v_add_u32 {r.ba[1]}, {VBASE + 3*16384}, {r.ba[0]}')
    pro(f'v_lshrrev_b32 {t[2]}, 2, {lane}')
    pro(f'v_and_b32 {t[3]}, 7, {t[2]}')
    pro(f'v_lshlrev_b32 {t[3]}, 1, {t[3]}')
    pro(f'v_and_b32 {t[4]}, 3, {lane}')
    pro(f'v_xor_b32 {t[3]}, {t[3]}, {t[4]}')
    pro(f'v_lshlrev_b32 {t[3]}, 4, {t[3]}')
    pro(f'v_lshl_add_u32 {t[3]}, {t[2]}, 8, {t[3]}')
    pro(f'v_add_u32 {r.wa0[0]}, {S_WLDS}, {t[3]}')
    for nt in range(1, 8):
        pro(f'v_xor_b32 {r.wa0[nt]}, {64*(nt>>1) + 8*(nt&1)}, {r.wa0[0]}')
    for nt in range(8):
        pro(f'v_add_u32 {r.wa1q[nt]}, {VBASE}, {r.wa0[nt]}')
    def zero_ov(p):
        for i in range(128): p(f'v_accvgpr_write_b32 {r.O[i]}, 0')
        for i in range(64): p(f'v_accvgpr_write_b32 {r.Vf[i]}, 0')
    zero_ov(pro)
    pro(f's_mov_b32 {S_PASS}, 0\ns_mov_b32 {S_HOOK}, 0x1fe\ns_mov_b32 {S_TAG}, 1')
    wr = [R('v', 9), R('v', 10)]
    pro(f'v_add_u32 {wr[0]}, {S_WLDS}, {r.ba[0]}')
    pro(f'v_add_u32 {wr[1]}, {S_WLDS}, {r.ba[1]}')
    wr2 = R('v', 11)
    pro(f'v_add_u32 {wr2}, {S_WLDS}, {wr[1]}')
    def frag_write(s, rb, D):
        if s == 0: return f'ds_write_b128 {wr[0]}, {D} offset:{KBASE + 3*16384 + 1024*rb}'
        if s == 1: return f'ds_write_b128 {wr[1]}, {D} offset:{1024*rb}'
        return f'ds_write_b128 {wr2}, {D} offset:{16384 + (s-2)*4096 + 1024*rb}'
    T = r.B1
    for rb in range(4):
        pro(f's_waitcnt vmcnt({24 + (1 if pf else 0) + 4*(3-rb)})')
        for s in range(4):
            x = X.sub(16*rb+4*s, 4); tt = T.sub(8*(s&1), 8)
            for i in range(8):
                hi = i & 1
                pro(f'v_fma_mix_f32 {tt[i]}, {x[i>>1]}, {SC[16*s+i]}, {SC[16*s+8+i]} op_sel:[{hi},0,0] op_sel_hi:[1,0,0]')
            for i in range(4):
                pro(f'v_cvt_pk_bf16_f32 {x[i]}, {tt[2*i]}, {tt[2*i+1]}')
            pro(frag_write(s, rb, x))
    pro('s_waitcnt lgkmcnt(0)')
    pro('s_barrier')
    stampit(pro, 1)
    def q_finish(i):
        out = []
        for rb in range(4):
            for k in range(4):
                a = r.ACC.sub(16*(2*i + (k>>1)) + 4*rb, 4)
                out.append(f'v_cvt_pk_bf16_f32 {r.q(rb, i)[k]}, {a[2*(k&1)]}, {a[2*(k&1)+1]}')
        return out
    pro.extend(gemm(r, r.wa0, r.wa1q, qslot, q_dma, q_finish))
    pro(f's_add_u32 {S_SOFF}, {S_SOFF}, {S_STEP}')
    stampit(pro, 2)
    body = []; tails = None
    for j4 in (3, 0, 1, 2):
        ex = None
        if j4 == 0:
            ex = {96: [f's_bitcmp1_b32 {S_HOOK}, {S_CNT}'], 98: ['s_cbranch_scc1 L_k1_switch', 'L_k1_back:']}
        if j4 == 2:
            ex = {120: [f's_sub_u32 {S_CNT}, {S_CNT}, 1'], 122: [f's_cmp_lg_u32 {S_CNT}, 0']}
        if OPT.get('itst'):
            ex = dict(ex or {})
            idx = (3, 0, 1, 2).index(j4)
            ex[4] = ['s_memtime s[96:97]']
            ex[6] = [f's_lshl_b32 s98, {S_CNT}, 2', f's_sub_u32 s98, {32 + idx}, s98']
            ex[16] = [f'v_cmp_eq_u32 vcc, s98, v0', f'v_mov_b32 {t[5]}, s96', 's_nop 1', f'v_cndmask_b32 v8, v8, {t[5]}, vcc']
        o, tails = iteration(r, j4, ex)
        body += o
    pro('s_waitcnt vmcnt(8)')
    pro('s_barrier')
    kr = k_reads(r, 0)
    for d in kr[:15]: pro(d)
    pro('s_waitcnt lgkmcnt(11)')
    for qb in range(4):
        for ds in range(4):
            c = '0' if ds == 0 else r.s(qb, 0)
            pro(f'{MF} {r.s(qb, 0)}, {r.kf(0, ds)}, {r.q(qb, ds)}, {c}')
    for qb in range(4):
        s = r.s(qb, 0); x = r.nm(qb)
        if qb == 3: pro('s_nop 1')
        if qb == 2: pro('s_nop 0')
        pro(f'v_max3_f32 {x[0]}, {s[0]}, {s[1]}, {s[2]}')
        pro(f'v_max_f32 {x[0]}, {x[0]}, {s[3]}')
    ent = Prog()
    for qb in range(4): x = r.nm(qb); ent(f'v_mov_b32 {x[1]}, {x[0]}')
    for qb in range(4): x = r.nm(qb); ent(f'v_permlane32_swap_b32 {x[0]}, {x[1]}')
    for qb in range(4): x = r.nm(qb); ent(f'v_max_f32 {x[0]}, {x[0]}, {x[1]}')
    for qb in range(4): x = r.nm(qb); ent(f'v_mov_b32 {x[1]}, {x[0]}')
    for qb in range(4): x = r.nm(qb); ent(f'v_permlane16_swap_b32 {x[0]}, {x[1]}')
    for qb in range(4): x = r.nm(qb); ent(f'v_max_f32 {x[0]}, {x[0]}, {x[1]}')
    for qb in range(4):
        x = r.nm(qb)
        for i in (1, 2, 3, 0): ent(f'v_sub_f32 {x[i]}, 0, {x[0]}')
    exp_tail = {x.split()[1].rstrip(',') for x in tails if x.startswith('v_exp')}
    used = set()
    for x in tails:
        for tok in x.replace(',', ' ').split()[1:]: used.add(tok)
    for i in range(32, 64):
        if str(r.S[i]) in used:
            ent(f'v_mov_b32 {r.S[i]}, {"0xff800000" if str(r.S[i]) in exp_tail else "0"}')
    for i in range(16, 32): ent(f'v_mov_b32 {r.P[i]}, 0')
    for i in range(8): ent(f'v_mov_b32 {r.lm[i]}, 0')
    for i in range(4): ent(f'v_mov_b32 {r.la[i]}, 0')
    for i in range(4): ent(f'v_mov_b32 {r.ones[i]}, 0x3f803f80')
    ent(f's_mov_b32 {S_CNT}, 8')
    ent('s_waitcnt lgkmcnt(0)')
    S_T = R('s', 40, 4)
    S_U = 's60'
    XW = 's61'
    ST = r.B1
    def h_uidx(p):
        p(f's_lshl_b32 {S_U}, s3, 2\ns_add_u32 {S_U}, {S_U}, {S_WAVE}')
        p(f's_lshl_b32 {XW}, {S_WAVE}, 13\ns_add_u32 {XW}, {XW}, {XBASE}')
    def h_load_rows(p, lo, hi, nbytes, buf):
        p(f's_mov_b32 {S_T[0]}, {lo}\ns_mov_b32 {S_T[1]}, {hi}\ns_mov_b32 {S_T[2]}, {nbytes}')
        p(f'v_lshrrev_b32 {t[0]}, 3, {lane}\nv_and_b32 {t[1]}, 7, {lane}\nv_lshlrev_b32 {t[1]}, 4, {t[1]}\nv_lshl_add_u32 {t[0]}, {t[0]}, 10, {t[1]}')
        p(f's_lshr_b32 s28, {S_U}, 3\ns_lshl_b32 s28, s28, 15\ns_and_b32 s29, {S_U}, 7\ns_lshl_b32 s29, s29, 7\ns_add_u32 s28, s28, s29')
        p(f's_add_u32 m0, {XW}, {4096*buf}')
        for i in range(4):
            p('s_add_u32 s28, s28, 7168' if i else 's_nop 0')
            p(f'buffer_load_dwordx4 {t[0]}, {S_T}, s28 offen offset:{1024*i} lds')
    def h_read_rows(p, buf):
        p(f'v_lshrrev_b32 {t[0]}, 2, {lane}\nv_and_b32 {t[1]}, 3, {lane}\nv_lshlrev_b32 {t[1]}, 3, {t[1]}\nv_lshl_add_u32 {t[0]}, {t[0]}, 7, {t[1]}\nv_add_u32 {t[0]}, {XW}, {t[0]}')
        for n in range(4):
            for u in range(2):
                p(f'ds_read_b64_tr_b16 {ST.sub(4*n+2*u, 2)}, {t[0]} offset:{4096*buf + 32*n + 2048*u}')
    def h_store(p, n, so): p(f'buffer_store_dwordx4 {ST.sub(4*n, 4)}, {r.ba[0]}, {S_WS}, {so} offen sc1')
    def h_gbase(p):
        p(f's_bfe_u32 s29, {S_U}, 0x20001\ns_lshl_b32 s23, s22, 2\ns_add_u32 s29, s29, s23\ns_mul_i32 s29, s29, {WF_WAVE}\ns_add_u32 s29, s29, {WS_WF}')
        p(f's_and_b32 s23, {S_U}, 1')
    H = {}
    h = H[8] = Prog()
    h_uidx(h)
    h_load_rows(h, S_WOB[0], S_WOB[1], 0x80000, 0)
    h = H[7] = Prog()
    h_read_rows(h, 0)
    h_gbase(h)
    h(f's_lshl_b32 s23, s23, 16\ns_add_u32 s29, s29, s23')
    h(f's_lshr_b32 s23, {S_U}, 5\ns_lshl_b32 s23, s23, 13\ns_add_u32 s29, s29, s23')
    h(f's_bfe_u32 s23, {S_U}, 0x20003\ns_lshl_b32 s23, s23, 10\ns_add_u32 s29, s29, s23')
    h('s_waitcnt lgkmcnt(0)')
    for n in range(4):
        h_store(h, n, 's29')
        if n < 3: h(f's_add_u32 s29, s29, {4096 if n != 1 else 32768 - 4096}')
    h(f's_cmp_ge_u32 {S_U}, 112\ns_cbranch_scc1 L_k1_back')
    h(f'v_lshrrev_b32 {t[0]}, 2, {lane}\nv_mul_u32_u24 {t[0]}, 3584, {t[0]}\nv_and_b32 {t[1]}, 3, {lane}\nv_lshl_add_u32 {t[0]}, {t[1]}, 4, {t[0]}')
    h(f's_and_b32 s28, {S_U}, 15\ns_mul_i32 s28, s28, {32*3584}\ns_lshr_b32 s29, {S_U}, 4\ns_lshl_b32 s29, s29, 6\ns_add_u32 s28, s28, s29')
    h(f's_mul_i32 s29, s22, 448\ns_add_u32 s28, s28, s29\ns_add_u32 s29, s28, {16*3584 - 1024}')
    h(f's_mov_b32 {S_T[2]}, {512*3584}')
    for mtx in range(2):
        h(f's_add_u32 m0, {XW}, {4096 + 2048*mtx}')
        h(f's_mov_b32 {S_T[0]}, s{92+2*mtx}\ns_mov_b32 {S_T[1]}, s{93+2*mtx}')
        h(f'buffer_load_dwordx4 {t[0]}, {S_T}, s28 offen lds')
        h(f'buffer_load_dwordx4 {t[0]}, {S_T}, s29 offen offset:1024 lds')
    h = H[6] = Prog()
    h(f's_cmp_ge_u32 {S_U}, 112\ns_cbranch_scc1 L_k1_back')
    h(f'v_lshrrev_b32 {t[0]}, 2, {lane}\nv_lshlrev_b32 {t[0]}, 6, {t[0]}\nv_and_b32 {t[1]}, 1, {lane}\nv_lshl_add_u32 {t[0]}, {t[1]}, 3, {t[0]}')
    h(f'v_bfe_u32 {t[1]}, {lane}, 1, 1\nv_lshl_add_u32 {t[0]}, {t[1]}, 11, {t[0]}\nv_add_u32 {t[0]}, {XW}, {t[0]}')
    for n in range(4):
        for u in range(2):
            h(f'ds_read_b64_tr_b16 {ST.sub(4*n+2*u, 2)}, {t[0]} offset:{4096 + 16*n + 1024*u}')
    h(f's_mul_i32 s62, s22, {4*WF_WAVE}\ns_add_u32 s62, s62, {WS_WF + 128*1024}')
    h(f's_bfe_u32 s23, {S_U}, 0x20002\ns_mul_i32 s23, s23, {28*1024}\ns_add_u32 s62, s62, s23')
    h(f's_and_b32 s23, {S_U}, 3\ns_lshl_b32 s23, s23, 10\ns_add_u32 s62, s62, s23')
    h(f's_lshr_b32 s63, {S_U}, 4\ns_lshl_b32 s63, s63, 2')
    h('s_waitcnt lgkmcnt(0)')
    for n in range(4):
        h(f's_add_u32 s28, s63, {n}\ns_mul_i32 s29, s28, 37\ns_lshr_b32 s29, s29, 8\ns_mul_i32 s29, s29, {WF_WAVE - 28*1024}')
        h('s_lshl_b32 s28, s28, 12\ns_add_u32 s29, s29, s28\ns_add_u32 s29, s29, s62')
        h_store(h, n, 's29')
    h(f's_cmp_ge_u32 {S_U}, 56\ns_cbranch_scc1 L_k1_back')
    h(f's_mul_i32 s28, s22, {224*1024}\ns_add_u32 s62, s90, s28\ns_addc_u32 s63, s91, 0')
    h_load_rows(h, 's62', 's63', 224*1024, 0)
    h = H[5] = Prog()
    h(f's_cmp_ge_u32 {S_U}, 56\ns_cbranch_scc1 L_k1_back')
    h_read_rows(h, 0)
    h_gbase(h)
    h(f's_mul_i32 s23, s23, {28*1024}\ns_add_u32 s29, s29, s23')
    h(f's_lshr_b32 s23, {S_U}, 3\ns_add_u32 s23, s23, 240\ns_lshl_b32 s23, s23, 10\ns_add_u32 s29, s29, s23')
    h('s_waitcnt lgkmcnt(0)')
    for n in range(4):
        h_store(h, n, 's29')
        if n < 3: h(f's_add_u32 s29, s29, {7*1024}')
    h = H[4] = Prog()
    tail_setup(r, h)
    h(f's_lshl_b32 s28, s22, 7\ns_lshl_b32 s29, s3, 2\ns_add_u32 s28, s28, s29\ns_add_u32 s28, s28, {WS_PFLAG}')
    h(f'v_mov_b32 {t[0]}, {S_TAG}\nv_mov_b32 {t[1]}, 0')
    h(f'buffer_store_dword {t[0]}, {t[1]}, {S_WS}, s28 offen sc1')
    h = H[3] = Prog()
    h(f's_lshl_b32 s62, s22, 7\ns_add_u32 s62, s62, {WS_PFLAG}')
    h(f'buffer_load_dword {PFD}, v245, {S_WS}, s62 offen sc1')
    h = H[2] = Prog()
    h('s_mov_b32 s28, 0')
    h('L_k1_pchk:')
    h(f'v_cmp_ne_u32 vcc, {S_TAG}, {PFD}')
    h('s_add_u32 s28, s28, 1\ns_cmp_gt_u32 s28, 0x40000\ns_cbranch_scc1 L_k1_pok')
    h('s_cbranch_vccz L_k1_pok')
    h(f'buffer_load_dword {PFD}, v245, {S_WS}, s62 offen sc1')
    h('s_waitcnt vmcnt(0)')
    h('s_branch L_k1_pchk')
    h('L_k1_pok:')
    h(f'v_lshlrev_b32 {PF}, 6, {lane}')
    h(f's_mul_i32 s28, s22, {4*WF_WAVE}\ns_mul_i32 s29, {S_U}, {4*WF_WAVE//128}\ns_add_u32 s28, s28, s29\ns_add_u32 s28, s28, {WS_WF}')
    for i in range(3):
        h(f'buffer_load_dword {t[i]}, {PF}, {S_WS}, s28 offen {OPT["pfsc"]}')
        if i < 2: h(f's_add_u32 s28, s28, {4096 if i == 0 else 4*WF_WAVE//128 - 8192}')
    h = H[1] = Prog()
    for i in range(4): h(f'v_mov_b32 {r.dk[i]}, {r.ba[0]}\nv_mov_b32 {r.dv[i]}, {r.ba[0]}')
    h(f's_mov_b32 s8, s24\ns_mov_b32 s9, s25\ns_mov_b32 s10, {WS_END}')
    h(f's_add_u32 s12, s24, 4096\ns_addc_u32 s13, s25, 0\ns_mov_b32 s14, {WS_END - 4096}')
    h(f's_lshl_b32 {S_SOFF}, s22, 2\ns_add_u32 {S_SOFF}, {S_SOFF}, {S_WAVE}\ns_mul_i32 {S_SOFF}, {S_SOFF}, {WF_WAVE}\ns_add_u32 {S_SOFF}, {S_SOFF}, {WS_WF}')
    h(f's_mov_b32 {S_STEP}, 8192')
    epi = Prog()
    stampit(epi, 3)
    for x in tails:
        epi(x)
        if x.startswith('v_exp'): epi('s_nop 0')
    inv = [t[0], t[1], t[2], t[3]]
    va = []
    for pair in range(2):
        va.append(f'v_add_f32 {inv[2*pair]}, {r.la[2*pair]}, {r.la[2*pair+1]}')
    for pair in range(2): va.append(f'v_mov_b32 {t[4+pair]}, {inv[2*pair]}')
    va.append('s_nop 0')
    for pair in range(2): va.append(f'v_permlane32_swap_b32 {inv[2*pair]}, {t[4+pair]}')
    for pair in range(2): va.append(f'v_add_f32 {inv[2*pair]}, {inv[2*pair]}, {t[4+pair]}')
    for pair in range(2): va.append(f'v_mov_b32 {t[4+pair]}, {inv[2*pair]}')
    va.append('s_nop 0')
    for pair in range(2): va.append(f'v_permlane16_swap_b32 {inv[2*pair]}, {t[4+pair]}')
    for pair in range(2): va.append(f'v_add_f32 {inv[2*pair]}, {inv[2*pair]}, {t[4+pair]}')
    va.append(f'v_add_f32 {t[4]}, {inv[0]}, {inv[2]}')
    va.append(f'v_add_f32 {t[5]}, {r.lm[0]}, {r.lm[4]}')
    va.append(f'v_add_f32 {t[4]}, {t[4]}, {t[5]}')
    va.append(f'v_cmp_ngt_f32 vcc, 0x4e800000, {t[4]}')
    va.append(f'v_rcp_f32 {inv[0]}, {inv[0]}')
    va.append(f'v_rcp_f32 {inv[1]}, {r.lm[0]}')
    va.append(f's_cmp_lg_u64 vcc, 0')
    va.append(f's_cselect_b32 s28, 1, 0')
    va.append(f'v_and_b32 {t[4]}, 3, {lane}')
    va.append(f'v_lshlrev_b32 {t[4]}, 13, {t[4]}')
    va.append(f'v_lshl_add_u32 {t[4]}, {wv}, 2, {t[4]}')
    va.append(f'v_add_u32 {t[4]}, {XBASE}, {t[4]}')
    va.append(f'v_mov_b32 {t[5]}, s28')
    va.append(f'ds_write_b32 {t[4]}, {t[5]}')
    va.append(f'v_rcp_f32 {inv[2]}, {inv[2]}')
    va.append(f'v_rcp_f32 {inv[3]}, {r.lm[4]}')
    va.append(f'v_lshlrev_b32 {t[4]}, 13, {wv}')
    va.append(f'v_add_u32 {t[4]}, {XBASE}, {t[4]}')
    va.append('s_waitcnt lgkmcnt(0)')
    va.append('s_barrier')
    FL = r.B1.sub(0, 4)
    va.append(f'ds_read_b128 {FL}, {t[4]}')
    def norm(qb, s):
        T8 = r.S.sub(8 * ((qb * 4 + s) % 4), 8); D = r.S.sub(32 + 4 * ((qb * 4 + s) % 8), 4)
        o = []
        for i in range(8): o.append(f'v_accvgpr_read_b32 {T8[i]}, {r.O[32*qb + 8*s + i]}')
        for i in range(8): o.append(f'v_mul_f32 {T8[i]}, {T8[i]}, {inv[qb]}')
        for i in range(4): o.append(f'v_cvt_pk_bf16_f32 {D[i]}, {T8[2*i]}, {T8[2*i+1]}')
        o.append(frag_write(s, qb, D))
        return o
    va += norm(0, 0)
    va.append('s_waitcnt lgkmcnt(1)')
    va.append(f'v_or3_b32 {FL[0]}, {FL[0]}, {FL[1]}, {FL[2]}')
    va.append(f'v_or_b32 {FL[0]}, {FL[0]}, {FL[3]}')
    va.append('s_nop 0')
    va.append(f'v_readfirstlane_b32 s28, {FL[0]}')
    mf = [msum(r, 1, 0), msum(r, 1, 1)] + pv_mfmas(r, 1)
    epi('s_nop 0')
    for n, m in enumerate(mf):
        epi(m)
        k = 0
        while va and k < 2:
            x = va.pop(0); epi(x)
            k += 2 if x.startswith(('v_rcp', 'ds_')) else (0 if x.startswith('s_') else 1)
    for x in va: epi(x)
    epi('s_nop 1')
    epi(f's_andn2_b32 s28, s28, {S_PASS}')
    epi('s_cbranch_scc1 L_k1_fallback')
    e = Em(vq=['old'] * 8)
    st = AStream(a_regs(), r.ba[0])
    e(f's_add_u32 {S_AOFF}, {S_SOFF}, {-4096 & 0xffffffff}')
    st.skip(16)
    e(f'v_add_u32 {t[4]}, {VBASE}, {wr[0]}')
    e.wait(vm=['old'])
    for qb in range(4):
        for s in range(4):
            i = 4 * qb + s
            st.issue(e)
            nn = norm(qb, s) if (qb, s) != (0, 0) else []
            for x in nn[:10]: e(x)
            e(f'ds_read_b128 {st.regs[i]}, {t[4] if i & 4 else wr[0]} offset:{(i >> 3) * 16384 + (i & 3) * 1024}')
            e.seen.add(('A', i))
            for x in nn[10:]: e(x)
    e(f's_lshl_b32 s28, s22, 21\ns_lshl_b32 s29, s3, 16\ns_add_u32 s28, s28, s29\ns_add_u32 s28, s28, {S_WLDS}\ns_add_u32 s28, s28, {WS_PART}')
    for i in range(1, 4): e(f's_add_u32 s{32+i}, s28, {16384*i}')
    e('s_mov_b32 s32, s28')
    e('s_waitcnt lgkmcnt(0)')
    e('s_barrier')
    stampit(e, 4)
    tail(r, e, st, stampit)
    if stamp:
        e('s_waitcnt vmcnt(0)')
        stampit(e, 12)
        e(f's_lshl_b32 s28, s2, 9\ns_lshl_b32 s29, {S_WAVE}, 7\ns_add_u32 s28, s28, s29\ns_add_u32 s28, s28, {WS_STAMP}')
        if OPT.get('itst'):
            e(f's_lshl_b32 s30, s2, 10\ns_lshl_b32 s29, {S_WAVE}, 8\ns_add_u32 s30, s30, s29\ns_add_u32 s30, s30, {WS_STAMP + (1 << 18)}')
            e(f'v_lshlrev_b32 {t[0]}, 2, v0')
            e(f'buffer_store_dword v8, {t[0]}, {S_WS}, s30 offen')
        e(f'v_mov_b32 {t[0]}, 0')
        for k in range(13):
            e(f'v_mov_b32 {r.S[2*k]}, s{64+2*k}\nv_mov_b32 {r.S[2*k+1]}, s{65+2*k}')
            e(f'buffer_store_dwordx2 {r.S.sub(2*k,2)}, {t[0]}, {S_WS}, s28 offen offset:{8*k}')
    if OPT.get('dbg'):
        e(f's_cmp_lg_u32 s2, {OPT["dbg"] - 1}\ns_cbranch_scc1 L_k1_end')
        e('s_load_dwordx2 s[40:41], s[0:1], 96\ns_waitcnt lgkmcnt(0)')
        e(f's_sub_u32 s28, s40, 512\ns_subb_u32 s29, s41, 0\ns_mov_b32 s42, 256')
        e('s_load_dwordx2 s[30:31], s[28:29], 0\ns_waitcnt lgkmcnt(0)')
        e(f's_sub_u32 s31, s31, s30\nv_mov_b32 {t[1]}, s31')
        e(f'buffer_store_dword {t[1]}, {t[0]}, s[40:43], 0 offen offset:4')
        for k in range(13):
            e(f's_sub_u32 s28, s{65+2*k}, s30\nv_mov_b32 {t[1]}, s28')
            e(f'buffer_store_dword {t[1]}, {t[0]}, s[40:43], 0 offen offset:{8 + 4*k}')
            e('s_waitcnt vmcnt(0)')
        e(f's_sub_u32 s28, s70, s68\nv_mov_b32 {t[1]}, s28')
        e(f'buffer_store_dword {t[1]}, {t[0]}, s[40:43], 0 offen offset:60')
        if OPT.get('spin'):
            a_, b_ = OPT['spin'].split('_')
            ra = 's30' if a_ == 'k' else f's{65+2*int(a_)}'
            rb_ = 's30' if b_ == 'k' else f's{65+2*int(b_)}'
            e(f's_sub_u32 s28, {rb_}, {ra}\ns_add_u32 s28, s28, 15000\ns_add_u32 s28, s28, s30')
            e('L_spin:\ns_memrealtime s[96:97]\ns_waitcnt lgkmcnt(0)\ns_sub_u32 s29, s96, s28\ns_cmp_lt_i32 s29, 0\ns_cbranch_scc1 L_spin')
    epi.extend(e.out)
    fb = Prog()
    fb('s_waitcnt vmcnt(0) lgkmcnt(0)')
    fb('s_barrier')
    set_kv_srd(fb)
    setup_dma_kv(fb, r, lane, wv)
    for qb in range(4): fb(f'v_mov_b32 {r.nm(qb)[0]}, 0xff800000')
    fb(f's_mov_b32 {S_CNT}, 32')
    fl = Prog()
    for pre, ins in dma_tile(r, 0)[:4]:
        for x in pre: fl(x); fl('s_nop 0')
        fl(ins)
    fl(f's_add_u32 {S_SOFF}, {S_SOFF}, {S_STEP}')
    fl('s_waitcnt vmcnt(0)')
    fl('s_barrier')
    for d in kr[:8]: fl(d)
    fl('s_waitcnt lgkmcnt(0)')
    for d in kr[8:]: fl(d)
    fl('s_waitcnt lgkmcnt(0)')
    fl('s_barrier')
    for kb in range(4):
        for qb in range(4):
            for ds in range(4):
                c = '0' if ds == 0 else r.s(qb, kb)
                fl(f'{MF} {r.s(qb, kb)}, {r.kf(kb, ds)}, {r.q(qb, ds)}, {c}')
    fl('s_nop 7')
    for kb in range(4):
        for qb in range(4):
            s = r.s(qb, kb); x = r.nm(qb)[0]
            fl(f'v_max3_f32 {x}, {x}, {s[0]}, {s[1]}')
            fl(f'v_max3_f32 {x}, {x}, {s[2]}, {s[3]}')
    fl(f's_sub_u32 {S_CNT}, {S_CNT}, 1')
    fl(f's_cmp_lg_u32 {S_CNT}, 0')
    fe = Prog()
    fe(f's_mov_b32 {S_SOFF}, 0\ns_mov_b32 {S_PASS}, 1\ns_mov_b32 {S_HOOK}, 2')
    for tt in range(2):
        for pre, ins in dma_tile(r, tt):
            for x in pre: fe(x); fe('s_nop 0')
            fe(ins)
        fe(f's_add_u32 {S_SOFF}, {S_SOFF}, {S_STEP}')
    zero_ov(fe)
    fe('s_waitcnt vmcnt(8)')
    fe('s_barrier')
    for d in kr[:15]: fe(d)
    def with_hook(b, blk):
        i = b.index('L_k1_back:')
        return b[:i] + blk.lines + ['s_branch L_k1_back'] + b[i:]
    br = ['s_cbranch_scc1 L_k1_loop']
    tr = pro.lines + ent.lines
    for c in range(8, 0, -1): tr += with_hook(body, H[c]) + br
    check_trace(tr + epi.lines, 'kf main')
    i = epi.lines.index('s_cbranch_scc1 L_k1_fallback')
    check_trace(body + br + epi.lines[:i+1] + fb.lines + fl.lines + br + fl.lines + br + fe.lines + ['s_branch x'] + ent.lines + body, 'k1 fallback')
    p = Prog()
    p(f'.globl {name}\n.p2align 8\n.type {name},@function\n{name}:')
    p.extend(pro)
    p('L_k1_entry:')
    p.extend(ent)
    p('.p2align 6\nL_k1_loop:')
    p.extend(body)
    p('s_cbranch_scc1 L_k1_loop')
    p.extend(epi)
    p('L_k1_end:\ns_endpgm')
    p('L_k1_switch:')
    for c in range(8, 1, -1): p(f's_cmp_eq_u32 {S_CNT}, {c}\ns_cbranch_scc1 L_k1_h{c}')
    for c in range(1, 9):
        p(f'L_k1_h{c}:')
        p.extend(H[c])
        p('s_branch L_k1_back')
    p('L_k1_fallback:')
    p.extend(fb)
    p('L_k1_fbloop:')
    p.extend(fl)
    p('s_cbranch_scc1 L_k1_fbloop')
    p.extend(fe)
    p('s_branch L_k1_entry')
    p('L_k1_codeend:')
    return p, kernel_footer(name, 256, 256, 100), f'kernel={name} grid=(256,1,1) block=(256,1,1) lds=163840'
```

```python
from asmlib import *

MF = 'v_mfma_f32_16x16x32_bf16'
KBASE = 0
VBASE = 65536
XBASE = 131072

class AttnRegs:
    def __init__(self):
        v = Alloc('v', 1, 256); a = Alloc('a', 0, 256)
        self.v, self.a = v, a
        self.O = a(128, 4)
        self.Kf = a(64, 4)
        self.Vf = a(64, 4)
        self.tmp = v(7)
        self.Q = v(64, 4)
        self.S = v(64, 4)
        self.P = v(32, 4)
        self.negm = v(16, 4)
        self.ones = v(4, 4)
        self.lm = v(8, 4)
        self.la = v(4)
        self.kaddr = v(4)
        self.vaddr = v(8)
        self.dk = v(4)
        self.dv = v(4)
        self.B1 = v(16, 4)
        self.wa0 = v(8)
        self.dw = v(4)
        self.ba = v(2)
        self.ACC = R('v', self.S.b, 128)
        assert self.la.b + 4 == self.S.b + 128
        self.B0 = self.Q.sub(0, 16)
        self.wa1q = self.Q.sub(16, 8)
    def o(self, qb, db): return self.O.sub(32 * qb + 4 * db, 4)
    def kf(self, kb, ds): return self.Kf.sub(16 * kb + 4 * ds, 4)
    def vf(self, ks, db): return self.Vf.sub(32 * ks + 4 * db, 4)
    def q(self, qb, ds): return self.Q.sub(16 * qb + 4 * ds, 4)
    def s(self, qb, kb): return self.S.sub(32 * (qb >> 1) + 8 * kb + 4 * (qb & 1), 4)
    def p(self, qb, ks): return self.P.sub(8 * qb + 4 * ks, 4)
    def nm(self, qb): return self.negm.sub(4 * qb, 4)

S_KSRD = R('s', 8, 4)
S_VSRD = R('s', 12, 4)
S_SOFF = R('s', 16)
S_WLDS = R('s', 17)
S_CNT = R('s', 18)
S_WAVE = R('s', 19)
S_STEP = R('s', 30)

def qk_mfmas(r, pair):
    out = []
    for kb in range(4):
        for q1 in range(2):
            qb = 2 * pair + q1
            for ds in range(4):
                c = r.nm(qb) if ds == 0 else r.s(qb, kb)
                out.append(f'{MF} {r.s(qb, kb)}, {r.kf(kb, ds)}, {r.q(qb, ds)}, {c}')
    return out

def pv_mfmas(r, pair):
    out = []
    for db in range(8):
        for (ks, q1) in ((0, 0), (1, 0), (1, 1), (0, 1)):
            qb = 2 * pair + q1
            out.append(f'{MF} {r.o(qb, db)}, {r.vf(ks, db)}, {r.p(qb, ks)}, {r.o(qb, db)}')
    return out

def msum(r, pair, ks):
    l = r.lm.sub(4 * pair, 4)
    return f'{MF} {l}, {r.ones}, {r.p(2 * pair + 1, ks)}, {l}'

def softmax_ops(r, pair):
    exps, others = [], []
    for kb in range(4):
        for q1 in range(2):
            qb = 2 * pair + q1
            s = r.s(qb, kb)
            pp = r.p(qb, kb >> 1)
            for i in range(4):
                exps.append(f'v_exp_f32 {s[i]}, {s[i]}')
                n = len(exps) - 1
                if q1 == 0:
                    la = r.la[2 * pair + (i & 1)]
                    others.append((n, f'v_add_f32 {la}, {la}, {s[i]}'))
                if i & 1:
                    others.append((n, f'v_cvt_pk_bf16_f32 {pp[2 * (kb & 1) + (i >> 1)]}, {s[i-1]}, {s[i]}'))
    return exps, others

def k_reads(r, slot):
    return [f'ds_read_b128 {r.kf(kb, ds)}, {r.kaddr[ds]} offset:{slot * 16384 + kb * 4096}' for kb in range(4) for ds in range(4)]

def v_reads(r, slot):
    out = []
    for db in range(8):
        for ks in range(2):
            for u in range(2):
                out.append(f'ds_read_b64_tr_b16 {r.vf(ks, db).sub(2 * u, 2)}, {r.vaddr[db]} offset:{slot * 16384 + (32 * ks + 16 * u) * 256}')
    return out

def dma_tile(r, slot):
    out = []
    for p in range(4):
        pre = [f's_add_u32 m0, {S_WLDS}, {KBASE + slot * 16384}'] if p == 0 else []
        out.append((pre, f'buffer_load_dwordx4 {r.dk[p]}, {S_KSRD}, {S_SOFF} offen offset:{1024 * p} lds'))
    for p in range(4):
        pre = [f's_add_u32 m0, {S_WLDS}, {VBASE + slot * 16384}'] if p == 0 else []
        out.append((pre, f'buffer_load_dwordx4 {r.dv[p]}, {S_VSRD}, {S_SOFF} offen offset:{1024 * p} lds'))
    return out

ESTART = 8

def iteration(r, j4, extra_salu=None, x33=None, x97=None, vmn=8, over=None):
    mf = qk_mfmas(r, 0) + pv_mfmas(r, 1) + qk_mfmas(r, 1) + pv_mfmas(r, 0)
    N = 128
    gaps = [dict(pre=[], mem=None, valu=[], exp=None, post=[]) for _ in range(N)]
    ea, oa = softmax_ops(r, 0)
    eb, ob = softmax_ops(r, 1)
    pend = []
    for (ex, ot, base) in ((ea, oa, ESTART), (eb, ob, 64 + ESTART)):
        for n, e in enumerate(ex):
            gaps[(base + 2 * n) % N]['exp'] = e
        for n, ins in ot:
            pend.append((base + 2 * n + 1, ins))
    vr_ = v_reads(r, (j4 + 1) % 4)
    for n, d in enumerate(vr_):
        gaps[32 + 3 + 2 * n]['mem'] = d
    kr_cur = k_reads(r, (j4 + 2) % 4)
    for n, d in enumerate(kr_cur[:15]):
        gaps[96 + 3 + 2 * n]['mem'] = d
    gaps[1]['mem'] = k_reads(r, (j4 + 1) % 4)[15]
    for n, (pre, d) in enumerate(dma_tile(r, (j4 + 3) % 4)):
        g = 3 + 4 * n
        gaps[g]['mem'] = d
        gaps[g - 1]['pre'] += pre
    gaps[32]['pre'].append(f's_add_u32 {S_SOFF}, {S_SOFF}, {S_STEP}')
    extra = {33: [msum(r, 1, 0), msum(r, 1, 1)], 97: [msum(r, 0, 0), msum(r, 0, 1)]}
    gaps[94]['pre'].append('s_waitcnt lgkmcnt(6)')
    gaps[96 + 22]['pre'].append('s_waitcnt lgkmcnt(10)')
    gaps[126]['pre'].append('s_waitcnt lgkmcnt(6)')
    gaps[14]['pre'].append('s_waitcnt lgkmcnt(0)')
    def cap(g):
        G = gaps[g]
        if G['exp']: return 0
        if G['mem'] is None: return 2
        return 0 if 'lds' in G['mem'] else 1
    xslots = {g: [[], []] for g in extra}
    pend.sort(key=lambda x: x[0])
    queue = []
    placed = {}
    seq = [(g + N * per, ins) for per in range(3) for (g, ins) in pend]
    seq.sort(key=lambda x: x[0])
    qi = 0
    res = {}
    for t in range(0, 3 * N):
        while qi < len(seq) and seq[qi][0] <= t:
            queue.append(seq[qi][1]); qi += 1
        g = t % N
        c = cap(g)
        take = queue[:c]; queue = queue[c:]
        xs = []
        if g in extra:
            for _ in extra[g]:
                c2 = 0 if (x33 is not None) else 2
                xs.append(queue[:c2]); queue = queue[c2:]
        res[t] = (take, xs)
    for g in range(N):
        assert res[N + g] == res[2 * N + g], g
    for g in range(N):
        for ins in res[N + g][0] + sum(res[N + g][1], []):
            if ins in [x[1] for x in oa]: assert ESTART <= g < 94, (g, ins)
            if ins in [x[1] for x in ob]: assert g >= 64 + ESTART or g < 30, (g, ins)
    out = []
    for g in range(N):
        G = gaps[g]
        out.append(mf[g])
        out += G['pre']
        if extra_salu and g in extra_salu: out += extra_salu[g]
        if over and g in over: out += over[g]
        if G['mem']: out.append(G['mem'])
        if G['exp']: out.append(G['exp'])
        out += res[N + g][0]
        if g in extra:
            for k, m in enumerate(extra[g]):
                out.append(m)
                if g == 97 and k == 0:
                    out.append(f's_waitcnt vmcnt({vmn})')
                if g == 97 and k == 1:
                    out.append('s_barrier')
                if g == 33 and x33: out += x33[k]
                if g == 97 and x97: out += x97[k]
                out += res[N + g][1][k]
    tail = []
    for g in range(0, 40):
        G = gaps[g]
        if G['exp'] and G['exp'] in eb: tail.append(G['exp'])
        for ins in res[N + g][0] + sum(res[N + g][1], []):
            if ins in [x[1] for x in ob]: tail.append(ins)
    return out, tail

def setup_addr(p, r, lane, wave_v):
    t = r.tmp
    m, G = t[0], t[1]
    p(f'v_and_b32 {m}, 15, {lane}')
    p(f'v_lshrrev_b32 {G}, 4, {lane}')
    p(f'v_xor_b32 {t[2]}, {G}, {m}')
    p(f'v_lshlrev_b32 {t[2]}, 4, {t[2]}')
    p(f'v_lshl_add_u32 {r.kaddr[0]}, {m}, 8, {t[2]}')
    for ds in range(1, 4):
        p(f'v_xor_b32 {r.kaddr[ds]}, {64 * ds}, {r.kaddr[0]}')
    p(f'v_lshrrev_b32 {t[2]}, 2, {lane}')
    p(f'v_and_b32 {t[3]}, 7, {t[2]}')
    p(f'v_lshlrev_b32 {t[3]}, 5, {t[3]}')
    p(f'v_lshl_add_u32 {t[3]}, {t[2]}, 8, {t[3]}')
    p(f'v_and_b32 {t[4]}, 3, {lane}')
    p(f'v_lshl_add_u32 {t[3]}, {t[4]}, 3, {t[3]}')
    p(f'v_add_u32 {r.vaddr[0]}, {VBASE}, {t[3]}')
    for db in range(1, 8):
        p(f'v_xor_b32 {r.vaddr[db]}, {32 * db}, {r.vaddr[0]}')

def setup_dma_kv(p, r, lane, wave_v):
    t = r.tmp
    m, G = t[0], t[1]
    p(f'v_and_b32 {m}, 15, {lane}')
    p(f'v_lshrrev_b32 {G}, 4, {lane}')
    p(f'v_lshl_add_u32 {t[2]}, {wave_v}, 4, {G}')
    p(f'v_lshlrev_b32 {t[2]}, 8, {t[2]}')
    p(f'v_xor_b32 {t[3]}, {m}, {G}')
    p(f'v_lshl_add_u32 {r.dk[0]}, {t[3]}, 4, {t[2]}')
    for q in range(1, 4):
        p(f'v_xor_b32 {r.dk[q]}, {64 * q}, {r.dk[0]}')
    p(f'v_lshlrev_b32 {t[3]}, 1, {G}')
    p(f'v_xor_b32 {t[3]}, {m}, {t[3]}')
    p(f'v_lshl_add_u32 {r.dv[0]}, {t[3]}, 4, {t[2]}')
    p(f'v_xor_b32 {r.dv[1]}, 128, {r.dv[0]}')
    p(f'v_mov_b32 {r.dv[2]}, {r.dv[0]}')
    p(f'v_mov_b32 {r.dv[3]}, {r.dv[1]}')

def allreduce_G(p, x, t, op):
    p(f'v_mov_b32 {t}, {x}')
    p('s_nop 1')
    p(f'v_permlane32_swap_b32 {x}, {t}')
    p(f'{op} {x}, {x}, {t}')
    p(f'v_mov_b32 {t}, {x}')
    p('s_nop 1')
    p(f'v_permlane16_swap_b32 {x}, {t}')
    p(f'{op} {x}, {x}, {t}')

def bfrag_loc(ks):
    w, s = ks >> 2, ks & 3
    if s == 0: return 0, KBASE + 3 * 16384 + 4096 * w
    if s == 1: return 1, 4096 * w
    return 1, 16384 + 8192 * w + (s - 2) * 4096

def gemm(r, wa0, wa1, slot_of, dma_half, finish, valu=None):
    acc = lambda nt, rb: r.ACC.sub(16 * nt + 4 * rb, 4)
    A = lambda ks, nt: r.Kf.sub(32 * (ks & 1) + 4 * nt, 4)
    B = lambda ks, rb: (r.B1 if ks & 1 else r.B0).sub(4 * rb, 4)
    def a_reads(ks, u):
        wa = wa1 if u else wa0
        return [f'ds_read_b64_tr_b16 {A(ks, nt).sub(2 * u, 2)}, {wa[nt]} offset:{slot_of(ks) * 16384}' for nt in range(8)]
    def b_reads(ks, u):
        ri, off = bfrag_loc(ks)
        return [f'ds_read_b128 {B(ks, rb)}, {r.ba[ri]} offset:{off + 1024 * rb}' for rb in (2 * u, 2 * u + 1)]
    out = []
    issued = [6]
    nout = {}
    order = list(range(6))
    for h in range(6): nout[h] = 4
    def vm_wait(h):
        n = sum(nout[x] for x in order if x > h)
        return f's_waitcnt vmcnt({n})'
    out.append(vm_wait(0))
    out += a_reads(0, 0) + b_reads(0, 0)
    out.append(vm_wait(1))
    out += a_reads(0, 1)[:4]
    out.append('s_waitcnt lgkmcnt(6)')
    d = dma_half(6); nout[6] = len(d); order.append(6)
    for pre, ins in d:
        for x in pre: out += [x, 's_nop 0']
        out.append(ins)
    out += a_reads(0, 1)[4:] + b_reads(0, 1)
    out.append('s_waitcnt lgkmcnt(0)')
    fin_q = []
    for ks in range(16):
        for u in range(2):
            mem = {}
            pre = {g: [] for g in range(16)}
            if ks < 15:
                rd = b_reads(ks + 1, u) + a_reads(ks + 1, u)
                gs = [0, 1, 3, 4, 5, 7, 8, 9, 11, 12]
                for g, x in zip(gs, rd): mem[g] = x
            h = 2 * ks + u + 7
            d = dma_half(h)
            for g, (pp, ins) in zip((2, 6, 10, 14), d):
                mem[g] = ins
                pre[g - 1] += pp
            for g in range(16):
                n = 16 * u + g
                nt, rb = n >> 2, n & 3
                c = '0' if ks == 0 else acc(nt, rb)
                out.append(f'{MF} {acc(nt, rb)}, {A(ks, nt)}, {B(ks, rb)}, {c}')
                if g == 0 and ks < 15:
                    out.append(vm_wait(2 * (ks + 1) + u))
                if g == 1 and (ks, u) != (0, 0) and (ks, u) != (15, 1):
                    out.append('s_waitcnt lgkmcnt(1)' if ks < 15 else 's_waitcnt lgkmcnt(0)')
                out += pre[g]
                if g == 2:
                    nout[h] = len(d); order.append(h)
                if g in mem: out.append(mem[g])
                if valu and ks < 15:
                    for _ in range(2 if g not in mem else (0 if 'lds' in mem[g] else 1)):
                        if valu: out.append(valu.pop(0))
                if g == 15 and ks < 15 and u == 1:
                    out.append('s_waitcnt lgkmcnt(4)')
                if ks == 15:
                    if n >= 12 and (n - 12) % 8 == 0:
                        fin_q += finish((n - 12) // 8)
                    k = 0
                    while fin_q and k < 2 and g not in mem:
                        x = fin_q.pop(0); out.append(x)
                        k += 2 if x.startswith('buffer') else 1
    assert not valu
    out += fin_q
    out.append('s_nop 7')
    out += finish(3)
    return out
```

```python
from gen_attn import *
from layout import *
from gen_tail import *
from gen_small import srd, f32, CQ
import math
IDLE = 0x80000000

def kmain(name, stamp=False):
    NG = OPT.get('ng', 1)
    r = AttnRegs()
    lane, wv = R('v', 0), R('v', 1)
    S_WQ = R('s', 40, 4); S_PA = S_WQ; S_PB = R('s', 60, 4)
    S_QOFF = R('s', 31); S_HW = 's20'
    S_PASS = R('s', 44)
    S_KB = R('s', 46, 2); S_VB = R('s', 48, 2)
    t = r.tmp
    PF = R('v', 254); PFD = R('v', 255); STV = R('v', 8); PFX = r.B1[15]
    def stampit(p, k):
        if stamp:
            if hasattr(p, 'wait_all'): p.wait_all(vm=False, ds=True)
            p(f's_waitcnt lgkmcnt(0)\ns_memtime s[96:97]\ns_memrealtime s[98:99]\ns_waitcnt lgkmcnt(0)\nv_writelane_b32 {STV}, s96, {32+2*k}\nv_writelane_b32 {STV}, s98, {33+2*k}')
    def xs(p, nm):
        if OPT.get('s14') == nm: stampit(p, 14)
        if OPT.get('s15') == nm: stampit(p, 15)
    pro = Prog()
    pro(f's_cmp_ge_u32 s2, 256\ns_cbranch_scc1 L_end')
    stampit(pro, 0)
    pro('s_load_dwordx4 s[84:87], s[0:1], 72')
    pro('s_load_dwordx2 s[24:25], s[0:1], 104')
    pro('s_load_dwordx2 s[52:53], s[0:1], 0')
    pro('s_load_dwordx8 s[4:11], s[0:1], 8')
    pro('s_load_dwordx4 s[92:95], s[0:1], 48\ns_load_dwordx2 s[90:91], s[0:1], 64')
    pro('s_load_dwordx2 s[56:57], s[0:1], 88')
    pro(f'v_mov_b32 {t[5]}, v0')
    pro(f'v_lshrrev_b32 {wv}, 6, v0')
    pro(f'v_and_b32 v0, 63, v0')
    pro(f'v_readfirstlane_b32 {S_WAVE}, {wv}')
    pro('s_getpc_b64 s[88:89]')
    def code_pf(p, dst):
        p(f's_mov_b32 s40, s88\ns_mov_b32 s41, s89\ns_mov_b32 s42, L_codeend-{name}-128\ns_mov_b32 s43, 0x20000')
        p(f'v_and_b32 {PF}, 7, v0\nv_lshlrev_b32 {PF}, 6, {PF}\nv_lshl_add_u32 {PF}, {wv}, 9, {PF}')
        p(f's_lshr_b32 s28, {S_HW}, 3\ns_lshl_b32 s28, s28, 11')
        p(f'buffer_load_dword {dst}, {PF}, s[40:43], s28 offen')
    pro(f's_mov_b32 {S_HW}, s2')
    code_pf(pro, PFD)
    if NG == 1:
        pro('s_and_b32 s22, s2, 7\ns_lshr_b32 s3, s2, 3')
    else:
        pro('s_and_b32 s22, s2, 6\ns_bfe_u32 s28, s2, 0x10003\ns_add_u32 s22, s22, s28')
        pro('s_and_b32 s3, s2, 1\ns_lshl_b32 s3, s3, 4\ns_lshr_b32 s28, s2, 4\ns_add_u32 s3, s3, s28')
        pro('s_lshl_b32 s2, s3, 3\ns_add_u32 s2, s2, s22')
    pro(f's_lshl_b32 {S_WLDS}, {S_WAVE}, 12')
    pro(f'v_lshlrev_b32 {r.ba[0]}, 4, {lane}')
    MW = r.ACC.sub(0, 16); MC = r.ACC.sub(16, 4); MA = r.ACC.sub(20, 8); MU = r.ACC.sub(28, 8); MT = r.ACC.sub(36, 4)
    S_C = 's82'
    pro(f's_lshr_b32 s28, {S_HW}, 5\ns_lshl_b32 s28, s28, 3\ns_and_b32 s29, {S_HW}, 7\ns_add_u32 s28, s28, s29\ns_lshl_b32 s28, s28, 2\ns_bfe_u32 s29, {S_HW}, 0x20003\ns_add_u32 {S_C}, s28, s29')
    pro(f'v_lshrrev_b32 {MT[0]}, 3, {t[5]}')
    pro(f'v_lshlrev_b32 {MT[1]}, 3, {MT[0]}')
    pro(f'v_mul_u32_u24 {MT[2]}, {4*6144}, {MT[0]}')
    pro(f'v_and_b32 {MT[3]}, 7, {t[5]}')
    pro(f'v_lshl_add_u32 {MT[2]}, {MT[3]}, 4, {MT[2]}')
    pro(f's_and_b32 s32, {S_C}, 3\ns_lshl_b32 s33, s32, 8\ns_mul_i32 s32, s32, {128*6144}\ns_lshr_b32 s28, {S_C}, 2\ns_lshl_b32 s28, s28, 7\ns_add_u32 s32, s32, s28')
    pro(f'v_and_b32 {t[0]}, 15, {lane}\nv_lshrrev_b32 {t[1]}, 4, {lane}\nv_lshlrev_b32 {PFX}, 10, {t[0]}\nv_lshl_add_u32 {PFX}, {t[1]}, 4, {PFX}')
    pro(f's_lshl_b32 s21, s3, 16\ns_lshl_b32 s28, {S_WAVE}, 8\ns_add_u32 s21, s21, s28')
    pro('s_waitcnt lgkmcnt(0)')
    xs(pro, 'karg')
    pro(f's_load_dword {S_TAG}, s[24:25], {WS_EPOCH}')
    pro(f's_mov_b32 s26, {WS_END}\ns_mov_b32 s27, 0x20000')
    pro('s_mov_b32 s54, 0x200000\ns_mov_b32 s55, 0x20000\ns_mov_b32 s58, 0x200000\ns_mov_b32 s59, 0x20000')
    srd(pro, 60, 's84', 's85', 1024)
    srd(pro, 40, 's86', 's87', 512 * 6144)
    pm1 = Prog()
    for i in range(4):
        pm1(f'buffer_load_dwordx4 {MW.sub(4*i,4)}, {MT[2]}, s[40:43], s32 offen')
        if i < 3: pm1(f's_add_u32 s32, s32, 6144')
    pm1(f'buffer_load_dwordx2 {MC.sub(2,2)}, {MT[1]}, s[60:63], s33 offen')
    pm1('s_barrier')
    p2 = Prog()
    X = r.Q
    XA = R('v', 251)
    def xload(p, rb):
        for s in range(4):
            p(f'buffer_load_dwordx4 {X.sub(16*rb+4*s,4)}, {PFX}, {S_XS}, s21 offen offset:{64*s}')
        if rb < 3: p('s_add_u32 s21, s21, 16384')
    XF = 3
    xload(p2, 0)
    xs(p2, 'x12')
    p2('s_lshl_b32 s23, s22, 19')
    p2(f's_add_u32 {S_KB[0]}, s4, s23\ns_addc_u32 {S_KB[1]}, s5, 0')
    p2(f's_add_u32 {S_VB[0]}, s6, s23\ns_addc_u32 {S_VB[1]}, s7, 0')
    p2(f's_add_u32 s50, s10, s23\ns_addc_u32 s51, s11, 0')
    p2(f's_mov_b32 {S_WQ[0]}, s8\ns_mov_b32 {S_WQ[1]}, s9\ns_mov_b32 {S_WQ[2]}, 0x400000')
    p2(f'v_lshlrev_b32 {t[0]}, 6, {t[0]}\nv_lshl_add_u32 {PF}, {t[1]}, 13, {t[0]}')
    p2(f's_and_b32 s28, s3, {32 // NG - 1}\ns_lshl_b32 s28, s28, 2\ns_add_u32 s28, s28, {S_WAVE}\ns_lshl_b32 s28, s28, {15 + NG - 1}\ns_lshl_b32 s29, s22, 10\ns_add_u32 s36, s28, s29')
    p2(f's_lshr_b32 s28, s28, 2\ns_add_u32 s28, s28, s29')
    p2(f'v_lshrrev_b32 {t[2]}, {4 + NG - 1}, {lane}\nv_lshl_add_u32 {t[2]}, {t[2]}, 24, {PF}')
    p2(f'buffer_load_dword {r.B1[14]}, {t[2]}, {S_WQ}, s28 offen')
    xload(p2, 1)
    tagfix = f's_waitcnt lgkmcnt(0)\ns_add_u32 {S_TAG}, {S_TAG}, 0x9e3779b9'
    def set_kv_srd(p):
        p(f's_mov_b32 s8, {S_KB[0]}\ns_mov_b32 s9, {S_KB[1]}\ns_mov_b32 s10, 0x80000\ns_mov_b32 s11, 0x20000')
        p(f's_mov_b32 s12, {S_VB[0]}\ns_mov_b32 s13, {S_VB[1]}\ns_mov_b32 s14, 0x80000\ns_mov_b32 s15, 0x20000')
        p(f's_mov_b32 {S_STEP}, 16384\ns_mov_b32 {S_SOFF}, 0')
    set_kv_srd(p2)
    p2(f'v_and_b32 {t[0]}, 15, {lane}')
    p2(f'v_lshlrev_b32 {t[2]}, 1, {t[1]}\nv_xor_b32 {t[2]}, {t[0]}, {t[2]}\nv_lshlrev_b32 {t[2]}, 4, {t[2]}')
    p2(f'v_lshl_add_u32 {r.dw[0]}, {t[1]}, 13, {t[2]}')
    stq = 8 * 8192 - 1024
    p2(f'v_xor_b32 {r.dw[1]}, 128, {r.dw[0]}\nv_add_u32 {r.dw[1]}, {stq}, {r.dw[1]}')
    p2(f'v_add_u32 {r.dw[2]}, {2*stq}, {r.dw[0]}\nv_add_u32 {r.dw[3]}, {2*stq}, {r.dw[1]}')
    p2(f's_lshl_b32 {S_QOFF}, s22, 2\ns_add_u32 {S_QOFF}, {S_QOFF}, {S_WAVE}\ns_lshl_b32 {S_QOFF}, {S_QOFF}, 8')
    p2(f's_mov_b32 {S_PASS}, 0')
    pm2 = Prog()
    NY = 9
    RED = KBASE + 3 * 16384
    pm2(f's_lshr_b32 s29, {S_C}, 5')
    pm2('s_cmp_eq_u32 s29, 1\ns_cselect_b32 s32, 1.0, 0')
    pm2('s_cmp_eq_u32 s29, 4\ns_cselect_b32 s32, 1.0, s32')
    pm2(f's_and_b32 s28, {S_C}, 3\ns_cselect_b32 s32, 0, s32')
    pm2(f's_cmp_lt_u32 s29, 2\ns_cselect_b32 s33, {f32(CQ)}, 1.0')
    pm2(f's_lshl_b32 s28, s28, 13\ns_lshr_b32 s29, {S_C}, 2')
    pm2(f's_lshl_b32 s34, s29, 9\ns_add_u32 s34, s34, s28\ns_add_u32 s34, s34, {WS_GR}')
    pm2(f's_lshl_b32 s35, s29, 8\ns_add_u32 s35, s35, s28\ns_add_u32 s35, s35, {WS_MODP - 4096}')
    pm2(f's_cmp_lt_u32 {S_C}, 64\ns_cselect_b32 s34, s34, {IDLE}\ns_cselect_b32 s35, {IDLE}, s35')
    pm2(f's_cmp_eq_u32 {S_WAVE}, 0\ns_cselect_b32 s34, s34, {IDLE}\ns_cselect_b32 s35, s35, {IDLE}')
    pm2(f'v_lshrrev_b32 {MT[0]}, 4, {lane}\nv_lshlrev_b32 {MT[2]}, 5, {MT[3]}\nv_lshl_add_u32 {MT[2]}, {MT[0]}, 3, {MT[2]}\nv_lshl_add_u32 {MT[2]}, {wv}, 8, {MT[2]}')
    pm2(f'v_and_b32 {MT[3]}, 35, {lane}\nv_bfe_u32 {MT[0]}, {lane}, 2, 2\nv_lshl_add_u32 {MT[3]}, {MT[0]}, 3, {MT[3]}\nv_bfe_u32 {MT[0]}, {lane}, 4, 1\nv_lshl_add_u32 {MT[3]}, {MT[0]}, 2, {MT[3]}\nv_lshlrev_b32 {MT[3]}, 2, {MT[3]}')
    pm2(f'v_lshlrev_b32 {MT[1]}, 3, {lane}\nv_lshlrev_b32 {MT[0]}, 2, {lane}\nv_add_u32 {MT[0]}, {RED}, {MT[0]}')
    xs(pm2, 'w0')
    pm2(f's_waitcnt vmcnt({NY})')
    xs(pm2, 'w1')
    xload(pm2, 2)
    pm2(tagfix)
    pn2 = Prog()
    xload(pn2, 2)
    pn2(tagfix)
    pm2(f'v_lshlrev_b32 {MC[0]}, 16, {MC[2]}\nv_and_b32 {MC[1]}, 0xffff0000, {MC[2]}\nv_lshlrev_b32 {MC[2]}, 16, {MC[3]}\nv_and_b32 {MC[3]}, 0xffff0000, {MC[3]}')
    for i in range(4): pm2(f'v_mul_f32 {MU[i]}, {f32(-math.log2(math.e))}, {MC[i]}')
    for i in range(4): pm2(f'v_exp_f32 {MU[i]}, {MU[i]}')
    for i in range(4): pm2(f'v_add_f32 {MU[i]}, 1.0, {MU[i]}')
    for i in range(4): pm2(f'v_rcp_f32 {MU[i]}, {MU[i]}')
    for i in range(4): pm2(f'v_mul_f32 {MC[i]}, {MC[i]}, {MU[i]}')
    for i in range(4):
        for k in range(4):
            pm2(f'v_lshlrev_b32 {MU[2*k]}, 16, {MW[4*i+k]}')
            pm2(f'v_and_b32 {MU[2*k+1]}, 0xffff0000, {MW[4*i+k]}')
        for e_ in range(8):
            pm2(f'v_mul_f32 {MA[e_]}, {MU[e_]}, {MC[i]}' if i == 0 else f'v_fmac_f32 {MA[e_]}, {MU[e_]}, {MC[i]}')
    for e_ in range(4): pm2(f'v_permlane32_swap_b32 {MA[e_]}, {MA[e_+4]}')
    for e_ in range(4): pm2(f'v_add_f32 {MA[e_]}, {MA[e_]}, {MA[e_+4]}')
    pm2('s_nop 0')
    for e_ in range(2): pm2(f'v_permlane16_swap_b32 {MA[e_]}, {MA[e_+2]}')
    for e_ in range(2): pm2(f'v_add_f32 {MA[e_]}, {MA[e_]}, {MA[e_+2]}')
    pm2('s_nop 0')
    for e_ in range(2): pm2(f'v_add_f32_dpp {MA[e_]}, {MA[e_]}, {MA[e_]} row_ror:8 row_mask:0xf bank_mask:0xf')
    pm2(f'ds_write_b64 {MT[2]}, {MA.sub(0,2)} offset:{RED}')
    xs(pm2, 'w2')
    pm2('s_waitcnt lgkmcnt(0)\ns_barrier')
    pm2(f'ds_read2_b32 {MU.sub(0,2)}, {MT[0]} offset0:0 offset1:64\nds_read2_b32 {MU.sub(2,2)}, {MT[0]} offset0:128 offset1:192')
    pm2('s_waitcnt lgkmcnt(0)')
    pm2(f'v_add_f32 {MU[0]}, {MU[0]}, {MU[1]}\nv_add_f32 {MU[2]}, {MU[2]}, {MU[3]}\nv_add_f32 {MU[0]}, {MU[0]}, {MU[2]}')
    pm2(f'v_mov_b32 {MU[1]}, {S_TAG}')
    pm2(f'v_add_f32 {MU[0]}, s32, {MU[0]}\nv_mul_f32 {MU[0]}, s33, {MU[0]}')
    pm2(f'buffer_store_dwordx2 {MU.sub(0,2)}, {MT[1]}, {S_WS}, s34 offen sc1')
    pm2(f'buffer_store_dword {MU[0]}, {MT[3]}, {S_WS}, s35 offen sc1')
    p3 = Prog()
    xs(p3, 'pub')
    qslot = lambda ks: (ks + 2) % 3
    def q_dma(h):
        ks, u = h >> 1, h & 1
        base = (VBASE if u else KBASE) + qslot(ks) * 16384
        if ks < 16:
            out = []
            for p in range(4):
                pre = [f's_add_u32 m0, {S_WLDS}, {base}'] if p == 0 else []
                if p == 0 and h > 0: pre = [f's_add_u32 {S_QOFF}, {S_QOFF}, {(4 if u else 28)*8192}'] + pre
                out.append((pre, f'buffer_load_dwordx4 {r.dw[p]}, {S_WQ}, {S_QOFF} offen offset:{1024*p} lds'))
            return out
        if ks < 18:
            d = dma_tile(r, ks - 16)[4*u:4*u+4]
            if ks == 17 and u == 0:
                d[0] = ([f's_add_u32 {S_SOFF}, {S_SOFF}, {S_STEP}'] + d[0][0], d[0][1])
            return d
        return []
    def zero_ov():
        return [f'v_accvgpr_write_b32 {r.O[i]}, 0' for i in range(128)] + [f'v_accvgpr_write_b32 {r.Vf[i]}, 0' for i in range(64)]
    fill = Prog()
    late = Prog()
    setup_dma_kv(late, r, lane, wv)
    setup_addr(late, r, lane, wv)
    fill(f'v_add_u32 {r.ba[1]}, {VBASE + 3*16384}, {r.ba[0]}')
    fill(f'v_lshrrev_b32 {t[2]}, 2, {lane}\nv_and_b32 {t[3]}, 7, {t[2]}\nv_lshlrev_b32 {t[3]}, 1, {t[3]}\nv_and_b32 {t[4]}, 3, {lane}')
    fill(f'v_xor_b32 {t[3]}, {t[3]}, {t[4]}\nv_lshlrev_b32 {t[3]}, 4, {t[3]}\nv_lshl_add_u32 {t[3]}, {t[2]}, 8, {t[3]}')
    fill(f'v_add_u32 {r.wa0[0]}, {S_WLDS}, {t[3]}')
    for nt in range(1, 8): fill(f'v_xor_b32 {r.wa0[nt]}, {64*(nt>>1) + 8*(nt&1)}, {r.wa0[0]}')
    wr = [R('v', 9), R('v', 10)]; wr2 = R('v', 11)
    fill(f'v_add_u32 {wr[0]}, {S_WLDS}, {r.ba[0]}\nv_add_u32 {wr[1]}, {S_WLDS}, {r.ba[1]}\nv_add_u32 {wr2}, {S_WLDS}, {wr[1]}')
    p2.extend(fill)
    def frag_write(s, rb, D):
        if s == 0: return f'ds_write_b128 {wr[0]}, {D} offset:{KBASE + 3*16384 + 1024*rb}'
        if s == 1: return f'ds_write_b128 {wr[1]}, {D} offset:{1024*rb}'
        return f'ds_write_b128 {wr2}, {D} offset:{16384 + (s-2)*4096 + 1024*rb}'
    XN = r.ACC
    e3 = Em(vq=['x0'] * 4 + ['pf0'] + [f'x{rb}' for rb in range(1, XF) for _ in range(4)])
    for rb in range(XF, 4):
        for s in range(4):
            e3.vm(f'buffer_load_dwordx4 {X.sub(16*rb+4*s,4)}, {PFX}, {S_XS}, s21 offen offset:{64*s}', f'x{rb}')
        if rb < 3: e3('s_add_u32 s21, s21, 16384')
    xs(e3, 'dma')
    dq = [(pre, ins) for h in range(6) for pre, ins in q_dma(h)]
    def dma_some(n):
        for _ in range(n):
            if not dq: return
            pre, ins = dq.pop(0)
            for x in pre: e3(x)
            if pre: e3('s_nop 0')
            e3.vm(ins, 'dma')
    DM = [int(c) for c in str(OPT.get('dm', '11002211'))[-8:]]
    Z4 = r.B1.sub(0, 4)
    RS = r.B1.sub(4, 4)
    GR = X.sub(0, 32)
    e3('s_mov_b32 s28, 0x3f803f80')
    e3(f'v_lshl_add_u32 {t[2]}, {wv}, 2, {r.ba[0]}\nv_add_u32 {t[2]}, {XBASE + 2048}, {t[2]}')
    e3(f'v_and_b32 {t[3]}, 15, {lane}\nv_lshlrev_b32 {t[3]}, 4, {t[3]}\nv_lshl_add_u32 {t[3]}, {wv}, 13, {t[3]}\nv_add_u32 {t[3]}, {XBASE + 2048}, {t[3]}')
    e3(f's_lshl_b32 s29, {S_WAVE}, 10\ns_add_u32 s29, s29, {WS_GR}')
    poll = []
    for i in range(8):
        poll += [f's_add_u32 s32, s29, {4096*i}', f'buffer_load_dwordx4 {GR.sub(4*i,4)}, {r.ba[0]}, {S_WS}, s32 offen sc1']
    def unpk(rb, k0, k1):
        for k in range(k0, k1):
            e3(f'v_lshlrev_b32 {XN[32*rb+2*k]}, 16, {X[16*rb+k]}\nv_and_b32 {XN[32*rb+2*k+1]}, 0xffff0000, {X[16*rb+k]}')
    for stg in range(2):
        for q in range(2):
            rb = 2 * stg + q
            e3.wait(vm=[f'x{rb}'])
            xs(e3, f'a{rb}')
            if rb == OPT.get('pollat', 2):
                for x in poll:
                    if x.startswith('s_'): e3(x)
                    else: e3.vm(x, 'gr')
            if rb == OPT.get('pfat', 2):
                for i in range(NG):
                    if i: e3('s_add_u32 s36, s36, 32768')
                    e3.vm(f'buffer_load_dword {PF if i else PFD}, {PF}, {S_WQ}, s36 offen', 'pf')
            for k in range(16):
                x = X[16*rb + k]
                a, b = (Z4[q], Z4[2+q]) if k % 2 == 0 else (t[0], t[1])
                e3(f'v_dot2_f32_bf16 {a}, {x}, s28, {a if k > 1 else 0}')
                e3(f'v_dot2_f32_bf16 {b}, {x}, {x}, {b if k > 1 else 0}')
                if k % 4 == 3: dma_some(DM[rb])
            unpk(rb, 0, 2 if q else 16)
            e3(f'v_add_f32 {Z4[q]}, {Z4[q]}, {t[0]}\nv_add_f32 {Z4[2+q]}, {Z4[2+q]}, {t[1]}')
        rb = 2 * stg + 1
        if stg: xs(e3, 'xin')
        unpk(rb, 2, 3)
        e3(f'v_permlane32_swap_b32 {Z4[0]}, {Z4[2]}\nv_permlane32_swap_b32 {Z4[1]}, {Z4[3]}')
        e3(f'v_add_f32 {Z4[0]}, {Z4[0]}, {Z4[2]}\nv_add_f32 {Z4[1]}, {Z4[1]}, {Z4[3]}')
        unpk(rb, 3, 4)
        e3(f'v_permlane16_swap_b32 {Z4[0]}, {Z4[1]}')
        e3(f'v_add_f32 {Z4[0]}, {Z4[0]}, {Z4[1]}')
        for c in range(4): e3(f'ds_write_b32 {t[2]}, {Z4[0]} offset:{8192*c + 1024*stg}')
        unpk(rb, 4, 8)
        e3('s_waitcnt lgkmcnt(0)\ns_barrier')
        ZZ = X.sub(32*stg, 16)
        for q in range(4): e3(f'ds_read_b128 {ZZ.sub(4*q, 4)}, {t[3]} offset:{256*q + 1024*stg}')
        dma_some(DM[4 + stg])
        unpk(rb, 8, 16)
        e3('s_waitcnt lgkmcnt(0)')
        for q in range(4): e3(f'v_add_f32 {ZZ[4*q]}, {ZZ[4*q]}, {ZZ[4*q+1]}\nv_add_f32 {ZZ[4*q+2]}, {ZZ[4*q+2]}, {ZZ[4*q+3]}')
        for q in range(4): e3(f'v_add_f32 {ZZ[4*q]}, {ZZ[4*q]}, {ZZ[4*q+2]}')
        for q in range(4): e3(f'v_mul_f32 {ZZ[4*q]}, {f32(1/512)}, {ZZ[4*q]}')
        for q in range(2): e3(f'v_fma_f32 {ZZ[8+4*q]}, -{ZZ[4*q]}, {ZZ[4*q]}, {ZZ[8+4*q]}')
        for q in range(2): e3(f'v_max_f32 {ZZ[8+4*q]}, 0, {ZZ[8+4*q]}')
        for q in range(2): e3(f'v_add_f32 {ZZ[8+4*q]}, {f32(1e-5)}, {ZZ[8+4*q]}')
        for q in range(2): e3(f'v_rsq_f32 {RS[2*q]}, {ZZ[8+4*q]}')
        e3('s_nop 0')
        for q in range(2): e3(f'v_mul_f32 {RS[2*q+1]}, -{ZZ[4*q]}, {RS[2*q]}')
        for q in range(2):
            for k in range(16):
                z = XN.sub(32*(2*stg+q) + 2*k, 2)
                e3(f'v_pk_fma_f32 {z}, {z}, {RS.sub(2*q, 2)}, {RS.sub(2*q, 2)} op_sel:[0,0,1] op_sel_hi:[1,0,1]')
            dma_some(DM[6 + stg])
    e3(f'v_lshlrev_b32 {t[2]}, 3, {lane}\nv_lshl_add_u32 {t[2]}, {wv}, 13, {t[2]}\nv_add_u32 {t[2]}, {XBASE}, {t[2]}')
    e3(f'v_lshrrev_b32 {t[3]}, 4, {lane}\nv_lshlrev_b32 {t[3]}, 5, {t[3]}\nv_lshl_add_u32 {t[3]}, {wv}, 13, {t[3]}\nv_add_u32 {t[3]}, {XBASE}, {t[3]}')
    xs(e3, 'norm')
    e3('s_mov_b32 s28, 0')
    e3.wait(vm=['gr'])
    p3.extend(e3.out)
    pl = Prog()
    pl(f'v_xor_b32 {t[0]}, {S_TAG}, {GR[1]}')
    for i in range(3, 32, 2): pl(f'v_bitop3_b32 {t[0]}, {t[0]}, {GR[i]}, {S_TAG} bitop3:0xf6')
    pl(f'v_cmp_ne_u32 vcc, 0, {t[0]}')
    pl('s_add_u32 s28, s28, 1\ns_cmp_gt_u32 s28, 0x40000\ns_cbranch_scc1 L_gok')
    pl('s_cbranch_vccz L_gok')
    pl2 = Prog()
    for x in poll: pl2(x)
    pl2('s_waitcnt vmcnt(0)')
    pl2('s_branch L_gpoll')
    p4 = Prog()
    stampit(p4, 13)
    for j in (0, 2, 4, 6): p4(f'v_add_f32 {GR[j]}, {GR[j]}, {GR[8+j]}\nv_add_f32 {GR[16+j]}, {GR[16+j]}, {GR[24+j]}')
    for j in (0, 4): p4(f'v_add_f32 {GR[j]}, {GR[j]}, {GR[16+j]}\nv_add_f32 {GR[j+1]}, {GR[j+2]}, {GR[18+j]}')
    p4(f'ds_write_b64 {t[2]}, {GR.sub(0,2)}\nds_write_b64 {t[2]}, {GR.sub(4,2)} offset:512')
    SC = X
    p4('s_waitcnt lgkmcnt(0)')
    for s in range(4):
        for i in range(2):
            p4(f'ds_read_b128 {SC.sub(16*s+4*i,4)}, {t[3]} offset:{512 + 128*s + 16*i}')
            p4(f'ds_read_b128 {SC.sub(16*s+8+4*i,4)}, {t[3]} offset:{128*s + 16*i}')
        if s == 2: p4('s_waitcnt lgkmcnt(8)')
    for s in range(4):
        if s == 1: p4('s_waitcnt lgkmcnt(4)')
        for rb in range(4):
            z = XN.sub(32*rb + 8*s, 8)
            for k in range(4): p4(f'v_pk_fma_f32 {z.sub(2*k,2)}, {z.sub(2*k,2)}, {SC.sub(16*s+2*k,2)}, {SC.sub(16*s+8+2*k,2)}')
            for k in range(4): p4(f'v_cvt_pk_bf16_f32 {z[k]}, {z[2*k]}, {z[2*k+1]}')
            p4(frag_write(s, rb, z.sub(0, 4)))
            for _ in range(min(len(dq), 2 if len(dq) > 16 - 4*s - rb else 1)):
                pre, ins = dq.pop(0)
                for x in pre: p4(x)
                if pre: p4('s_nop 0')
                p4(ins)
    assert not dq
    for nt in range(8): p4(f'v_add_u32 {r.wa1q[nt]}, {VBASE}, {r.wa0[nt]}')
    p4('s_waitcnt lgkmcnt(0)')
    p4('s_barrier')
    stampit(p4, 1)
    def q_finish(i):
        out = []
        for rb in range(4):
            for k in range(4):
                a = r.ACC.sub(16*(2*i + (k>>1)) + 4*rb, 4)
                out.append(f'v_cvt_pk_bf16_f32 {r.q(rb, i)[k]}, {a[2*(k&1)]}, {a[2*(k&1)+1]}')
        return out
    p4.extend(gemm(r, r.wa0, r.wa1q, qslot, q_dma, q_finish, late.lines + zero_ov()))
    p4(f's_add_u32 {S_SOFF}, {S_SOFF}, {S_STEP}')
    stampit(p4, 2)
    STG = r.B1.sub(0, 4); VF = r.B1.sub(4, 4)
    vB0, vC1, vRow, vCh, vR, vD, vTag, vOne = [r.B1[8 + i] for i in range(8)]
    N1A, N1B, N1R, N2R, N2A, N2B = 's[64:65]', 's[66:67]', 's68', 's69', 's[70:71]', 's[72:73]'
    SS, S0, S1, S2, S3, SD, SL1, SMB, SF, SFB, SA1, SA2, SX = 's74', 's75', 's76', 's77', 's83', 's78', 's79', 's80', 's81', 's84', 's85', 's86', 's87'
    S_U = 's82'
    su = Prog()
    su(f's_lshl_b32 {S_U}, s3, 2\ns_add_u32 {S_U}, {S_U}, {S_WAVE}')
    su(f's_lshl_b32 {SMB}, {S_WAVE}, 13\ns_add_u32 {SMB}, {SMB}, {XBASE}')
    su(f's_lshr_b32 s28, {S_U}, 3\ns_lshl_b32 s28, s28, 15\ns_and_b32 s29, {S_U}, 7\ns_lshl_b32 s29, s29, 7\ns_add_u32 s28, s28, s29')
    su(f's_add_u32 s40, s50, s28\ns_addc_u32 s41, s51, 0\ns_mov_b32 s42, {32*1024 - 896}')
    su(f's_add_u32 s60, s40, 64\ns_addc_u32 s61, s41, 0\ns_mov_b32 s62, {32*1024 - 896}')
    su(f's_mul_i32 s29, s22, {224*1024}\ns_add_u32 s28, s28, s29')
    su(f's_cmp_lt_u32 {S_U}, 56\ns_cselect_b32 s28, s28, 0\ns_cselect_b32 {N1R}, {32*1024 - 896}, 0')
    su('s_add_u32 s64, s90, s28\ns_addc_u32 s65, s91, 0\ns_add_u32 s66, s64, 64\ns_addc_u32 s67, s65, 0')
    su(f's_and_b32 s28, {S_U}, 15\ns_mul_i32 s28, s28, {32*3584}\ns_lshr_b32 s29, {S_U}, 4\ns_lshl_b32 s29, s29, 6\ns_add_u32 s28, s28, s29')
    su(f's_mul_i32 s29, s22, 448\ns_add_u32 s28, s28, s29')
    su(f's_cmp_lt_u32 {S_U}, 112\ns_cselect_b32 s28, s28, 0\ns_cselect_b32 {N2R}, {31*3584 + 64}, 0')
    su('s_add_u32 s70, s92, s28\ns_addc_u32 s71, s93, 0\ns_add_u32 s72, s94, s28\ns_addc_u32 s73, s95, 0')
    su(f's_mul_i32 s23, s22, {WF_G}\ns_add_u32 s23, s23, {WS_WF}')
    su(f's_mov_b32 {SS}, {IDLE}\ns_mov_b32 {S0}, {IDLE}\ns_mov_b32 {SD}, 0')
    su(f's_and_b32 s28, {S_U}, 7\ns_lshr_b32 s29, {S_U}, 3\ns_lshl_b32 s29, s29, 10\ns_add_u32 s29, s29, s23')
    su(f's_lshl_b32 {S1}, s28, 16\ns_add_u32 {S1}, {S1}, s29')
    su(f's_mul_i32 {S2}, s28, {28*1024}\ns_add_u32 {S2}, {S2}, s29\ns_add_u32 {S2}, {S2}, {960*1024}')
    su(f's_cmp_lt_u32 {S_U}, 56\ns_cselect_b32 {S2}, {S2}, {IDLE}')
    su(f's_lshr_b32 s28, {S_U}, 4\ns_lshl_b32 s28, s28, 16\ns_and_b32 s29, {S_U}, 15\ns_lshl_b32 s29, s29, 10\ns_add_u32 {S3}, s28, s29')
    su(f's_add_u32 {S3}, {S3}, s23\ns_add_u32 {S3}, {S3}, {512*1024}')
    su(f's_cmp_lt_u32 {S_U}, 112\ns_cselect_b32 {S3}, {S3}, {IDLE}')
    su(f's_mov_b32 {SL1}, 16384\ns_mov_b32 {SA1}, 32\ns_mov_b32 {SA2}, 2016')
    su(f's_lshl_b32 {SFB}, s2, 2\ns_add_u32 {SFB}, {SFB}, {WS_PFLAG}')
    su(f's_cmp_eq_u32 {S_WAVE}, 0\ns_cselect_b32 {SFB}, {SFB}, {IDLE}\ns_mov_b32 s21, {WS_PFLAG}')
    vu = Prog()
    vu(f'v_lshrrev_b32 {vRow}, 2, {lane}\nv_and_b32 {vCh}, 3, {lane}\nv_lshrrev_b32 {vC1}, 1, {vCh}\nv_lshlrev_b32 {vCh}, 4, {vCh}')
    vu(f'v_and_b32 {vB0}, 1, {lane}\nv_lshlrev_b32 {vB0}, 3, {vB0}\nv_lshl_add_u32 {vB0}, {vRow}, 6, {vB0}\nv_add_u32 {vB0}, {SMB}, {vB0}')
    vu(f'v_xor_b32 {vB0}, 4096, {vB0}')
    vu(f'v_mov_b32 {vR}, {vB0}\nv_lshl_add_u32 {vD}, {vRow}, 10, {vCh}\nv_mov_b32 {vTag}, {S_TAG}\nv_min_u32 {vOne}, 1, {lane}\nv_lshlrev_b32 {vOne}, 30, {vOne}')
    tail_setup(r, vu)
    body = []; tails = None
    for idx, j4 in enumerate((3, 0, 1, 2)):
        ex = {}
        srdx = S_PA if idx < 2 else S_PB
        x33 = [[f's_add_u32 m0, {SMB}, {1024*idx}', f'buffer_store_dwordx4 {STG}, {r.ba[0]}, {S_WS}, {SS} offen sc1'],
               [f'buffer_load_dwordx4 {vD}, {srdx}, {SL1 if idx & 1 else 0} offen lds']]
        x97 = [[f'ds_read_b64_tr_b16 {STG.sub(0,2)}, {vR}'], [f'ds_read_b64_tr_b16 {STG.sub(2,2)}, {vR} offset:1024']]
        sal = []
        over = None
        if idx == 0:
            sal = [f's_mov_b32 {SS}, {S0}', f's_mov_b32 {S0}, {S1}', f's_mov_b32 {S1}, {S2}', f's_mov_b32 {S2}, {S3}', f's_mov_b32 {S3}, {IDLE}',
                   f's_cmp_eq_u32 {S_CNT}, 6', f's_cselect_b32 {SD}, 7, 16', f's_lshl_b32 {SD}, {SD}, 10',
                   f's_cmp_eq_u32 {S_CNT}, 3', f's_cselect_b32 {SF}, {SFB}, {IDLE}', f's_cmp_eq_u32 {S_CNT}, 2', f's_cselect_b32 s50, s21, {IDLE}']
            x97[0].append(f'v_xor_b32 {vB0}, 4096, {vB0}')
            x97[1].append(f'v_add_u32 {vR}, {SA1}, {vR}')
        else:
            sal = [f's_add_u32 {SS}, {SS}, {SD}']
        if idx == 1:
            x97[1].append(f'v_add_u32 {vR}, {SA2}, {vR}')
            over = {9: [f'buffer_store_dword {vTag}, {vOne}, {S_WS}, {SF} offen sc1']}
            ex.update({96: [f's_cmp_eq_u32 {S_CNT}, 1'], 98: ['s_cbranch_scc1 L_hook', 'L_back:']})
        if idx == 2:
            x97[1].append(f'v_add_u32 {vR}, {SA1}, {vR}')
            over = {9: [f'buffer_load_dwordx4 {VF}, {r.ba[0]}, {S_WS}, s50 offen sc1']}
        if idx == 3:
            sal += [f's_mov_b64 s[40:41], {N1A}', f's_mov_b64 s[60:61], {N1B}', f's_mov_b32 s42, {N1R}', f's_mov_b32 s62, {N1R}',
                    f's_mov_b64 {N1A}, {N2A}', f's_mov_b64 {N1B}, {N2B}', f's_mov_b32 {N1R}, {N2R}', f's_mov_b32 {N2R}, 0',
                    f's_xor_b32 {SMB}, {SMB}, 4096',
                    f's_cmp_eq_u32 {S_CNT}, 7', 's_cselect_b32 s51, 7, 2', 's_lshl_b32 s51, s51, 9', f's_lshl_b32 {SL1}, s51, 4',
                    f's_cmp_eq_u32 {S_CNT}, 6', f's_cselect_b32 {SX}, 2048, 16', f's_cselect_b32 {SA1}, 16, 32', f's_cselect_b32 {SA2}, 16, 2016']
            x97[0].append(f'v_mad_u32_u24 {vD}, {vRow}, s51, {vCh}')
            x97[1].append(f'v_mad_u32_u24 {vR}, {vC1}, {SX}, {vB0}')
            ex.update({120: [f's_sub_u32 {S_CNT}, {S_CNT}, 1'], 122: [f's_cmp_lg_u32 {S_CNT}, 0']})
        for k, x in enumerate(sal): ex[36 + 2*k] = [x]
        vmn = (10, 13, 13, 12)[idx]
        if OPT.get('itst'):
            ex[4] = ['s_memtime s[96:97]']
            ex[6] = [f's_lshl_b32 s98, {S_CNT}, 2', f's_sub_u32 s98, {32 + idx}, s98']
            ex[16] = [f'v_cmp_eq_u32 vcc, s98, v0', f'v_mov_b32 v250, s96', 's_nop 1', f'v_cndmask_b32 v8, v8, v250, vcc']
        o, tails = iteration(r, j4, ex, x33, x97, vmn, over)
        body += o
    p4.extend(su)
    p4('s_waitcnt vmcnt(8)')
    p4('s_barrier')
    kr = k_reads(r, 0)
    for d in kr[:15]: p4(d)
    vul = list(vu.lines)
    for x in vul[:16]: p4(x)
    vul = vul[16:]
    p4('s_waitcnt lgkmcnt(11)')
    for qb in range(4):
        for ds in range(4):
            c = '0' if ds == 0 else r.s(qb, 0)
            p4(f'{MF} {r.s(qb, 0)}, {r.kf(0, ds)}, {r.q(qb, ds)}, {c}')
            for x in vul[:2]: p4(x)
            vul = vul[2:]
    for x in vul: p4(x)
    for qb in range(4):
        s = r.s(qb, 0); x = r.nm(qb)
        if qb == 3: p4('s_nop 1')
        p4(f'v_max3_f32 {x[0]}, {s[0]}, {s[1]}, {s[2]}')
        p4(f'v_max_f32 {x[0]}, {x[0]}, {s[3]}')
    ent = Prog()
    for qb in range(4): x = r.nm(qb); ent(f'v_mov_b32 {x[1]}, {x[0]}')
    for qb in range(4): x = r.nm(qb); ent(f'v_permlane32_swap_b32 {x[0]}, {x[1]}')
    for qb in range(4): x = r.nm(qb); ent(f'v_max_f32 {x[0]}, {x[0]}, {x[1]}')
    for qb in range(4): x = r.nm(qb); ent(f'v_mov_b32 {x[1]}, {x[0]}')
    for qb in range(4): x = r.nm(qb); ent(f'v_permlane16_swap_b32 {x[0]}, {x[1]}')
    for qb in range(4): x = r.nm(qb); ent(f'v_max_f32 {x[0]}, {x[0]}, {x[1]}')
    for qb in range(4):
        x = r.nm(qb)
        for i in (1, 2, 3, 0): ent(f'v_sub_f32 {x[i]}, 0, {x[0]}')
    exp_tail = {x.split()[1].rstrip(',') for x in tails if x.startswith('v_exp')}
    used = set()
    for x in tails:
        for tok in x.replace(',', ' ').split()[1:]: used.add(tok)
    for i in range(32, 64):
        if str(r.S[i]) in used:
            ent(f'v_mov_b32 {r.S[i]}, {"0xff800000" if str(r.S[i]) in exp_tail else "0"}')
    for i in range(16, 32): ent(f'v_mov_b32 {r.P[i]}, 0')
    for i in range(8): ent(f'v_mov_b32 {r.lm[i]}, 0')
    for i in range(4): ent(f'v_mov_b32 {r.la[i]}, 0')
    for i in range(4): ent(f'v_mov_b32 {r.ones[i]}, 0x3f803f80')
    ent(f's_mov_b32 {S_CNT}, 8')
    ent('s_waitcnt lgkmcnt(0)')
    h = Prog()
    h('s_mov_b32 s28, 0')
    h('L_pchk:')
    h(f'v_xor_b32 {t[0]}, {VF[0]}, {VF[1]}\nv_xor_b32 {t[1]}, {VF[2]}, {VF[3]}\nv_xor_b32 {t[2]}, {VF[0]}, {VF[2]}')
    h(f'v_or3_b32 {t[0]}, {t[0]}, {t[1]}, {t[2]}\nv_xor_b32 {t[1]}, {vTag}, {VF[0]}\nv_or_b32 {t[0]}, {t[0]}, {t[1]}')
    h(f'v_cmp_ne_u32 vcc, 0, {t[0]}')
    h('s_add_u32 s28, s28, 1\ns_cmp_gt_u32 s28, 0x40000\ns_cbranch_scc1 L_pok')
    h('s_cbranch_vccz L_pok')
    h(f'buffer_load_dwordx4 {VF}, {r.ba[0]}, {S_WS}, s21 offen sc1')
    h('s_waitcnt vmcnt(0)')
    h('s_branch L_pchk')
    h('L_pok:')
    h(f's_mov_b32 s28, {WS_EPOCH}\ns_cmp_eq_u32 s2, 0\ns_cselect_b32 s28, s28, {IDLE}')
    h(f'buffer_store_dword {vTag}, {vOne}, {S_WS}, s28 offen sc1')
    share = WF_G // (128 // NG)
    h(f's_mul_i32 s23, s22, {WF_G}\ns_add_u32 s23, s23, {WS_WF}')
    pfs = OPT.get('pfs', 6)
    h(f'v_lshlrev_b32 {t[3]}, {pfs}, {lane}')
    h(f's_and_b32 s29, {S_U}, {128 // NG - 1}\ns_mul_i32 s29, s29, {share}\ns_add_u32 s28, s23, s29')
    span = 64 << pfs
    npf = (share + span - 1) // span
    pfd = [t[0], t[1], t[2], PFD, t[4]]
    for i in range(npf):
        h(f'buffer_load_dword {pfd[i]}, {t[3]}, {S_WS}, s28 offen sc1')
        if i < npf - 1: h(f's_add_u32 s28, s28, {span if i < npf - 2 else share - (npf - 1) * span}')
    h('s_mov_b64 s[4:5], s[40:41]\ns_mov_b32 s6, s42')
    code_pf(h, t[5])
    h('s_mov_b64 s[40:41], s[4:5]\ns_mov_b32 s42, s6')
    for i in range(4): h(f'v_mov_b32 {r.dk[i]}, {r.ba[0]}\nv_mov_b32 {r.dv[i]}, {r.ba[0]}')
    h(f's_mov_b32 s8, s24\ns_mov_b32 s9, s25\ns_mov_b32 s10, {WS_END}')
    h(f's_add_u32 s12, s24, 16384\ns_addc_u32 s13, s25, 0\ns_mov_b32 s14, {WS_END - 16384}')
    h(f's_lshl_b32 {S_SOFF}, {S_WAVE}, 17\ns_add_u32 {S_SOFF}, {S_SOFF}, s23')
    h(f's_mov_b32 {S_STEP}, 4096')
    epi = Prog()
    stampit(epi, 3)
    for x in tails:
        epi(x)
        if x.startswith('v_exp'): epi('s_nop 0')
    inv = [t[0], t[1], t[2], t[3]]
    va = []
    for pair in range(2): va.append(f'v_add_f32 {inv[2*pair]}, {r.la[2*pair]}, {r.la[2*pair+1]}')
    for pair in range(2): va.append(f'v_mov_b32 {t[4+pair]}, {inv[2*pair]}')
    va.append('s_nop 0')
    for pair in range(2): va.append(f'v_permlane32_swap_b32 {inv[2*pair]}, {t[4+pair]}')
    for pair in range(2): va.append(f'v_add_f32 {inv[2*pair]}, {inv[2*pair]}, {t[4+pair]}')
    for pair in range(2): va.append(f'v_mov_b32 {t[4+pair]}, {inv[2*pair]}')
    va.append('s_nop 0')
    for pair in range(2): va.append(f'v_permlane16_swap_b32 {inv[2*pair]}, {t[4+pair]}')
    for pair in range(2): va.append(f'v_add_f32 {inv[2*pair]}, {inv[2*pair]}, {t[4+pair]}')
    va.append(f'v_add_f32 {t[4]}, {inv[0]}, {inv[2]}')
    va.append(f'v_add_f32 {t[5]}, {r.lm[0]}, {r.lm[4]}')
    va.append(f'v_add_f32 {t[4]}, {t[4]}, {t[5]}')
    va.append(f'v_cmp_ngt_f32 vcc, 0x4e800000, {t[4]}')
    va.append(f'v_rcp_f32 {inv[0]}, {inv[0]}')
    va.append(f'v_rcp_f32 {inv[1]}, {r.lm[0]}')
    va.append(f's_cmp_lg_u64 vcc, 0')
    va.append(f's_cselect_b32 s28, 1, 0')
    va.append(f'v_and_b32 {t[4]}, 3, {lane}')
    va.append(f'v_lshlrev_b32 {t[4]}, 12, {t[4]}')
    va.append(f'v_lshl_add_u32 {t[4]}, {wv}, 2, {t[4]}')
    va.append(f'v_mov_b32 {t[5]}, s28')
    va.append(f'ds_write_b32 {t[4]}, {t[5]} offset:{KBASE + 2*16384}')
    va.append(f'v_rcp_f32 {inv[2]}, {inv[2]}')
    va.append(f'v_rcp_f32 {inv[3]}, {r.lm[4]}')
    va.append(f'v_lshlrev_b32 {t[4]}, 12, {wv}')
    va.append('s_waitcnt vmcnt(0) lgkmcnt(0)')
    va.append('s_barrier')
    FL = r.B1.sub(0, 4)
    va.append(f'ds_read_b128 {FL}, {t[4]} offset:{KBASE + 2*16384}')
    def norm(qb, s):
        T8 = r.S.sub(8 * ((qb * 4 + s) % 4), 8); D = r.S.sub(32 + 4 * ((qb * 4 + s) % 8), 4)
        o = []
        for i in range(8): o.append(f'v_accvgpr_read_b32 {T8[i]}, {r.O[32*qb + 8*s + i]}')
        for i in range(8): o.append(f'v_mul_f32 {T8[i]}, {T8[i]}, {inv[qb]}')
        for i in range(4): o.append(f'v_cvt_pk_bf16_f32 {D[i]}, {T8[2*i]}, {T8[2*i+1]}')
        o.append(frag_write(s, qb, D))
        return o
    va += norm(0, 0)
    va.append('s_waitcnt lgkmcnt(1)')
    va.append(f'v_or3_b32 {FL[0]}, {FL[0]}, {FL[1]}, {FL[2]}')
    va.append(f'v_or_b32 {FL[0]}, {FL[0]}, {FL[3]}')
    va.append('s_nop 0')
    va.append(f'v_readfirstlane_b32 s28, {FL[0]}')
    mf = [msum(r, 1, 0), msum(r, 1, 1)] + pv_mfmas(r, 1)
    epi('s_nop 0')
    for n, m in enumerate(mf):
        epi(m)
        k = 0
        while va and k < 2:
            x = va.pop(0); epi(x)
            k += 2 if x.startswith(('v_rcp', 'ds_')) else (0 if x.startswith('s_') else 1)
    for x in va: epi(x)
    epi('s_nop 1')
    epi(f's_andn2_b32 s28, s28, {S_PASS}')
    epi('s_cbranch_scc1 L_fallback')
    e = Em()
    st = AStream(a_regs(), r.ba[0])
    e(f's_mul_i32 s23, s22, {WF_G}\ns_add_u32 s23, s23, {WS_WF}')
    e(f's_lshl_b32 {S_BW}, {S_WAVE}, 17\ns_add_u32 {S_BW}, {S_BW}, s23')
    e(f's_mul_i32 {S_BG}, {S_WAVE}, {7*16*1024}\ns_add_u32 {S_BG}, {S_BG}, s23\ns_add_u32 {S_BG}, {S_BG}, {512*1024}')
    e(f's_mul_i32 {S_BD}, {S_WAVE}, {56*1024}\ns_add_u32 {S_BD}, {S_BD}, s23\ns_add_u32 {S_BD}, {S_BD}, {960*1024}')
    st.skip(16)
    e(f'v_add_u32 {t[4]}, {VBASE}, {wr[0]}')
    for qb in range(4):
        for s in range(4):
            i = 4 * qb + s
            st.issue(e)
            nn = norm(qb, s) if (qb, s) != (0, 0) else []
            for x in nn[:10]: e(x)
            e(f'ds_read_b128 {st.regs[i]}, {t[4] if i & 4 else wr[0]} offset:{(i >> 3) * 16384 + (i & 3) * 1024}')
            e.seen.add(('A', i))
            for x in nn[10:]: e(x)
    e(f's_lshl_b32 s28, s22, 21\ns_lshl_b32 s29, s3, 16\ns_add_u32 s28, s28, s29\ns_add_u32 s28, s28, {S_WLDS}\ns_add_u32 s28, s28, {WS_PART}')
    for i in range(1, 4): e(f's_add_u32 s{32+i}, s28, {16384*i}')
    e('s_mov_b32 s32, s28')
    e('s_waitcnt lgkmcnt(0)')
    e('s_barrier')
    stampit(e, 4)
    tail(r, e, st, stampit)
    if stamp:
        e('s_waitcnt vmcnt(0)')
        stampit(e, 12)
        e(f's_lshl_b32 s30, {S_HW}, 10\ns_lshl_b32 s29, {S_WAVE}, 8\ns_add_u32 s30, s30, s29\ns_add_u32 s30, s30, {WS_STAMP}')
        e(f'v_lshlrev_b32 {t[0]}, 2, v0')
        e(f'buffer_store_dword {STV}, {t[0]}, {S_WS}, s30 offen')
    if OPT.get('spin'):
        a_, b_ = OPT['spin'].split('_')
        e(f's_cmp_lg_u32 {S_HW}, {OPT.get("spinwg", 100)}\ns_cbranch_scc1 L_end')
        e(f'v_readlane_b32 s4, {STV}, {33+2*int(a_)}\nv_readlane_b32 s5, {STV}, {33+2*int(b_)}\nv_readlane_b32 s6, {STV}, 33\ns_nop 3')
        e(f's_sub_u32 s28, s5, s4\ns_mul_i32 s28, s28, {OPT.get("spinx", 1)}\ns_add_u32 s28, s28, 15000\ns_add_u32 s28, s28, s6')
        e('L_spin:\ns_memrealtime s[96:97]\ns_waitcnt lgkmcnt(0)\ns_sub_u32 s29, s96, s28\ns_cmp_lt_i32 s29, 0\ns_cbranch_scc1 L_spin')
    epi.extend(e.out)
    fb = Prog()
    fb('s_waitcnt vmcnt(0) lgkmcnt(0)')
    fb('s_barrier')
    set_kv_srd(fb)
    setup_dma_kv(fb, r, lane, wv)
    for qb in range(4): fb(f'v_mov_b32 {r.nm(qb)[0]}, 0xff800000')
    fb(f's_mov_b32 {S_CNT}, 32')
    fl = Prog()
    for pre, ins in dma_tile(r, 0)[:4]:
        for x in pre: fl(x); fl('s_nop 0')
        fl(ins)
    fl(f's_add_u32 {S_SOFF}, {S_SOFF}, {S_STEP}')
    fl('s_waitcnt vmcnt(0)')
    fl('s_barrier')
    for d in kr[:8]: fl(d)
    fl('s_waitcnt lgkmcnt(0)')
    for d in kr[8:]: fl(d)
    fl('s_waitcnt lgkmcnt(0)')
    fl('s_barrier')
    for kb in range(4):
        for qb in range(4):
            for ds in range(4):
                c = '0' if ds == 0 else r.s(qb, kb)
                fl(f'{MF} {r.s(qb, kb)}, {r.kf(kb, ds)}, {r.q(qb, ds)}, {c}')
    fl('s_nop 7')
    for kb in range(4):
        for qb in range(4):
            s = r.s(qb, kb); x = r.nm(qb)[0]
            fl(f'v_max3_f32 {x}, {x}, {s[0]}, {s[1]}')
            fl(f'v_max3_f32 {x}, {x}, {s[2]}, {s[3]}')
    fl(f's_sub_u32 {S_CNT}, {S_CNT}, 1')
    fl(f's_cmp_lg_u32 {S_CNT}, 0')
    fe = Prog()
    fe(f's_mov_b32 {S_SOFF}, 0\ns_mov_b32 {S_PASS}, 1')
    for tt in range(2):
        for pre, ins in dma_tile(r, tt):
            for x in pre: fe(x); fe('s_nop 0')
            fe(ins)
        fe(f's_add_u32 {S_SOFF}, {S_SOFF}, {S_STEP}')
    fe.extend(zero_ov())
    fe('s_waitcnt vmcnt(8)')
    fe('s_barrier')
    for d in kr[:15]: fe(d)
    def with_hook(b, blk):
        i = b.index('L_back:')
        return b[:i] + blk.lines + ['s_branch L_back'] + b[i:]
    br = ['s_cbranch_scc1 L_loop']
    bp = [f's_cmp_ge_u32 {S_HW}, 192', 's_cbranch_scc1 x']
    rest = p3.lines + pl.lines + pl2.lines + pl.lines + p4.lines + ent.lines + body + br
    check_trace(pro.lines + bp + pm1.lines + p2.lines + bp + pm2.lines + rest + body + br + with_hook(body, h) + br + epi.lines, 'main')
    check_trace(pro.lines + bp + p2.lines + bp + pn2.lines + p3.lines + pl.lines + p4.lines + ent.lines + body, 'nonproducer')
    i = epi.lines.index('s_cbranch_scc1 L_fallback')
    check_trace(body + br + epi.lines[:i+1] + fb.lines + fl.lines + br + fl.lines + br + fe.lines + ['s_branch x'] + ent.lines + body, 'fallback')
    p = Prog()
    p(f'.globl {name}\n.p2align 8\n.type {name},@function\n{name}:')
    p.extend(pro)
    p(f's_cmp_ge_u32 {S_HW}, 192\ns_cbranch_scc1 L_np1')
    p.extend(pm1)
    p('L_np1:')
    p.extend(p2)
    p(f's_cmp_ge_u32 {S_HW}, 192\ns_cbranch_scc1 L_np2')
    p.extend(pm2)
    p('s_branch L_np3\nL_np2:')
    p.extend(pn2)
    p('L_np3:')
    p.extend(p3)
    p('L_gpoll:')
    p.extend(pl); p.extend(pl2)
    p('L_gok:')
    p.extend(p4)
    p('L_entry:')
    p.extend(ent)
    p('.p2align 6\nL_loop:')
    p.extend(body)
    p('s_cbranch_scc1 L_loop')
    p.extend(epi)
    p('L_end:\ns_endpgm')
    p('L_hook:')
    p.extend(h)
    p('s_branch L_back')
    p('L_fallback:')
    p.extend(fb)
    p('L_fbloop:')
    p.extend(fl)
    p('s_cbranch_scc1 L_fbloop')
    p.extend(fe)
    p('s_branch L_entry')
    p('L_codeend:')
    return p, kernel_footer(name, 256, 256, 100)
```

```python
from gen_attn import *
from layout import *
from sched import Em
from gen_small import ln_stats, ln_addr, unpack, f32

S_WS = R('s', 24, 4)
S_AOFF = R('s', 31)
S_TAG = R('s', 45)
S_XS = R('s', 52, 4)
S_OS = R('s', 56, 4)
OPT = dict(opace=4.25, gpace=4.6, dpace=4.5, pre1=8, pre2=12, asc='sc1', pfsc='sc1', nostore=False)
H2B, ACTB, LNB, MODB = 0, 65536, 98304, 99328
ACTA = [220, 221, 222, 223, 249, 250, 251]

S_BW, S_BG, S_BD = R('s', 64), R('s', 65), R('s', 66)
def a_off(i):
    if i < 128:
        p, kg, tile, k = i >> 5, (i >> 3) & 3, (i >> 2) & 1, i & 3
        return S_BW, ((2 * p + tile) * 16 + 4 * kg + k) * 1024
    if i < 240:
        j = i - 128
        kg, ti, k = j // 28, (j % 28) >> 2, j & 3
        return S_BG, (ti * 16 + 4 * kg + k) * 1024
    return S_BD, (i - 240) * 1024

class AStream:
    def __init__(self, regs, l16):
        self.regs, self.n, self.l16, self.cur = regs, 0, l16, None
    def more(self): return self.n < len(self.regs)
    def skip(self, k):
        self.n += k
    def issue(self, e):
        i = self.n
        b, off = a_off(i)
        if self.cur is None or self.cur[0] != str(b) or not (0 <= off - self.cur[1] < 4096):
            e(f's_add_u32 {S_AOFF}, {b}, {off}')
            self.cur = (str(b), off)
        e.vm(f'buffer_load_dwordx4 {self.regs[i]}, {self.l16}, {S_WS}, {S_AOFF} offen offset:{off - self.cur[1]} sc1', ('A', i))
        self.n += 1

def a_regs():
    wo_ring = [R('v', 12 + 4 * i, 4) for i in range(16)] + [R('v', 140 + 4 * i, 4) for i in range(16)]
    ffn_ring = [R('a', 4 * i, 4) for i in range(32)] + [R('v', 140 + 4 * i, 4) for i in range(20)]
    return [wo_ring[i % 32] for i in range(128)] + [ffn_ring[i % 52] for i in range(168)]

def signal_and_poll(e, seam, lab, fa, pa, tmp, s_grp, s_own, pre=None):
    if pre: pre(e)
    e.wait(vm=['st'])
    e('s_barrier')
    e(f's_cmp_lg_u32 {S_WAVE}, 0')
    e(f's_cbranch_scc1 L_pout{lab}')
    e(f'v_mov_b32 {tmp[0]}, {S_TAG}')
    e(f'buffer_store_dword {tmp[0]}, {fa}, {S_WS}, {s_grp} offen offset:{128 * seam} sc1')
    e('s_mov_b32 s28, 0')
    e(f'L_poll{lab}:')
    e(f'buffer_load_dword {tmp[1]}, {pa}, {S_WS}, {s_own} offen offset:{128 * seam} sc1')
    e('s_add_u32 s28, s28, 1')
    e('s_cmp_gt_u32 s28, 0x40000')
    e('s_waitcnt vmcnt(0)')
    e(f's_cbranch_scc1 L_pout{lab}')
    e(f'v_cmp_ne_u32 vcc, {S_TAG}, {tmp[1]}')
    e('s_nop 0')
    e(f's_cbranch_vccnz L_poll{lab}')
    e(f'L_pout{lab}:')
    e('s_barrier')

class Pacer:
    def __init__(self, pace): self.pace, self.t = pace, -1e9
    def ok(self, n): return n >= self.t + self.pace
    def use(self, n): self.t = max(self.t + self.pace, n - 0.99)

def npass_gemm(e, bt, st, abase, nks, B, accb, D, s_st, l16, group, bread=None, late=None, a_ahead=None, pace=5, lead=20):
    ng = nks // group
    seq = []
    for p in range(4):
        for kg in range(ng):
            for tile in range(2):
                for rb in range(4):
                    for k in range(group):
                        ai = abase + p * 2 * nks + kg * 2 * group + tile * group + k
                        seq.append((p, kg, tile, rb, k, ai))
    acc = lambda p, tile, rb: accb.sub(32 * (p & 1) + 16 * tile + 4 * rb, 4)
    last_use, first_use = {}, {}
    for n, x in enumerate(seq):
        last_use[x[5]] = n; first_use.setdefault(x[5], n)
    pc = Pacer(pace)
    def fin(p):
        o = []
        for rb in range(4):
            d = D.sub(4 * rb, 4)
            for k in range(4):
                a = acc(p, k >> 1, rb)
                o.append(f'v_cvt_pk_bf16_f32 {d[k]}, {a[2*(k&1)]}, {a[2*(k&1)+1]}')
            o.append(f'buffer_store_dwordx4 {d}, {l16}, {S_WS}, {s_st[rb]} offen offset:{1024 * p} sc1')
        return o
    finq = []
    bread = list(bread or [])
    per = 8 * nks
    for n, (p, kg, tile, rb, k, ai) in enumerate(seq):
        if rb == 0 and k == 0:
            e.wait(vm=[('A', ai + j) for j in range(group)])
        if p == 0 and tile == 0:
            e.wait(ds=[(bt, kg * group + k, rb)])
        c = '0' if (kg == 0 and k == 0) else acc(p, tile, rb)
        e(f'{MF} {acc(p, tile, rb)}, {st.regs[ai]}, {B(kg * group + k, rb)}, {c}')
        if p > 0 and n % per == 4: finq += fin(p - 1)
        done = False
        if pc.ok(n):
            if finq and finq[0].startswith('buffer'):
                e.vm(finq.pop(0), 'st'); done = True
            elif st.more() and a_ahead(st.n, n, last_use):
                assert first_use.get(st.n, 1 << 30) - n >= lead, (st.n, n)
                st.issue(e); done = True
            elif late:
                f = late(n)
                if f: f(e); done = True
            if done: pc.use(n)
        if not done and bread:
            ins, tag = bread.pop(0); e.ds(ins, tag); done = True
        if not done:
            kk = 0
            while finq and kk < 2 and not finq[0].startswith('buffer'):
                e(finq.pop(0)); kk += 1
    assert not finq and not bread
    e('s_nop 4')
    for x in fin(3):
        if x.startswith('buffer'): e.vm(x, 'st')
        else: e(x)

def gather_sum(e, PT, A, fo, s_off, after=None, mid=None):
    for g in range(8):
        for i in range(2):
            e.vm(f'buffer_load_dwordx4 {PT.sub(8*g+4*i,4)}, {fo}, {S_WS}, {s_off} offen offset:{2048*i} sc1', ('pt', g))
        if g < 7: e(f's_add_u32 {s_off}, {s_off}, {2<<20}')
    if after: after(e)
    e('s_mov_b32 s28, 0x00003f80\ns_mov_b32 s29, 0x3f800000')
    for g in range(8):
        if mid: mid(e, g)
        e.wait(vm=[('pt', g)])
        for k in range(8):
            if g == 0:
                e(f'v_lshlrev_b32 {A[2*k]}, 16, {PT[k]}')
                e(f'v_and_b32 {A[2*k+1]}, 0xffff0000, {PT[k]}')
            else:
                e(f'v_dot2_f32_bf16 {A[2*k]}, {PT[8*g+k]}, s28, {A[2*k]}')
                e(f'v_dot2_f32_bf16 {A[2*k+1]}, {PT[8*g+k]}, s29, {A[2*k+1]}')

def tail(r, e, st, stampit):
    lane, wv = R('v', 0), R('v', 1)
    t = r.tmp
    l16 = r.ba[0]
    xo, fo, vo, fa, pa8, pa32 = [R('v', 240 + i) for i in range(6)]
    hb, aw0, ab = R('v', 246), R('v', 247), R('v', 248)
    S_GRP, S_OWN, S_ROW = R('s', 36), R('s', 37), R('s', 38)
    Bo = lambda ks, rb: R('a', 16 * ks + 4 * rb, 4)
    br = []
    for ks4 in range(4):
        for rb in range(4):
            for k in range(4):
                ks = 4 * ks4 + k
                ri, off = bfrag_loc(ks)
                br.append((f'ds_read_b128 {Bo(ks, rb)}, {r.ba[ri]} offset:{off + 1024 * rb}', ('Bo', ks, rb)))
    for ins, tag in br[:10]: e.ds(ins, tag)
    PT = R('v', 12, 64); A = R('v', 76, 16); T = R('v', 92, 12); X1 = R('v', 124, 16)
    MP = R('v', 92, 32); XR = R('v', 204, 8); GA = R('v', 140, 16); SC = R('v', 156, 16); SH = R('v', 172, 16)
    lateq = []
    for i in range(2):
        for u in range(2):
            lateq.append((0, f'buffer_load_dwordx2 {XR.sub(4*i+2*u, 2)}, {xo}, {S_XS}, s39 offen offset:{128*i + 32*u}', 'x'))
    def a_ahead(i, n, last_use):
        if i < 128: return i < 32 or last_use[i - 32] <= n
        return False
    def late(n):
        if n >= 384 and lateq:
            _, ins, tag = lateq.pop(0)
            return lambda e: e.vm(ins, tag)
        return None
    npass_gemm(e, 'Bo', st, 0, 16, Bo, R('v', 76, 64), r.B1, [f's{32+i}' for i in range(4)], l16, 4, br[10:], None, a_ahead, pace=OPT['opace'])
    assert st.n == 128
    stampit(e, 5)
    def pre1(e):
        for _, ins, tag in lateq: e.vm(ins, tag)
        e(f's_lshl_b32 s29, {S_WAVE}, 11\ns_add_u32 s29, s29, {WS_MODP}')
        for q in range(4):
            for i in range(2):
                e.vm(f'buffer_load_dwordx4 {MP.sub(8*q+4*i,4)}, {l16}, {S_WS}, s29 offen offset:{1024*i} sc1', 'mv')
            if q < 3: e('s_add_u32 s29, s29, 8192')
        for _ in range(OPT['pre1']): st.issue(e)
    signal_and_poll(e, 0, 'a', fa, pa8, t, S_GRP, S_OWN, pre1)
    stampit(e, 6)
    e(f's_add_u32 s30, {S_ROW}, {WS_PART}')
    def after1(e):
        e.wait(vm=['x', 'mv'])
        for i in range(8): e(f'v_add_f32 {MP[i]}, {MP[i]}, {MP[8+i]}\nv_add_f32 {MP[16+i]}, {MP[16+i]}, {MP[24+i]}')
        for i in range(8): e(f'v_add_f32 {MP[i]}, {MP[i]}, {MP[16+i]}')
        e(f'v_lshl_add_u32 {t[0]}, {wv}, 11, {l16}\nv_add_u32 {t[0]}, {MODB}, {t[0]}')
        for i in range(2): e(f'ds_write_b128 {t[0]}, {MP.sub(4*i,4)} offset:{1024*i}')
        unpack(e, X1, XR)
        e('s_waitcnt lgkmcnt(0)\ns_barrier')
        for D_, off in ((GA, 0), (SH, 2048), (SC, 4096)):
            for i in range(2):
                for hh in range(2):
                    e.ds(f'ds_read_b128 {D_.sub(8*i+4*hh,4)}, {vo} offset:{off + 256*i + 16*hh}', 'mv2')
    def mid1(e, g):
        for _ in range(4):
            if st.n < 160: st.issue(e)
    gather_sum(e, PT, A, fo, 's30', after1, mid1)
    assert st.n == 160
    V = R('v', 104, 16)
    e.wait(ds=['mv2'])
    for i in range(16): e(f'v_fmac_f32 {X1[i]}, {GA[i]}, {A[i]}')
    for i in range(16): e(f'v_mov_b32 {V[i]}, {X1[i]}')
    ln_stats(e, V, T, lane, wv, LNB)
    for i in range(16): e(f'v_fma_f32 {V[i]}, {V[i]}, {SC[i]}, {SH[i]}')
    for k in range(8): e(f'v_cvt_pk_bf16_f32 {PT[k]}, {V[2*k]}, {V[2*k+1]}')
    e(f's_add_u32 s30, {S_ROW}, {WS_H2}')
    for i in range(2): e.vm(f'buffer_store_dwordx4 {PT.sub(4*i,4)}, {fo}, {S_WS}, s30 offen offset:{2048*i} sc1', 'st')
    stampit(e, 7)
    def pre2(e):
        for _ in range(OPT['pre2']): st.issue(e)
        act_addr(r, e)
    signal_and_poll(e, 1, 'b', fa, pa8, t, S_GRP, S_OWN, pre2)
    stampit(e, 8)
    e(f's_lshl_b32 s30, s3, 2\ns_add_u32 s30, s30, {S_WAVE}\ns_lshl_b32 s30, s30, 14\ns_add_u32 s30, s30, {WS_H2}')
    e(f's_lshl_b32 s29, {S_WAVE}, 10')
    for ks in range(16):
        e(f's_add_u32 m0, s29, {H2B + ks * 4096}')
        if ks: e('s_add_u32 s30, s30, 1024')
        else: e('s_nop 0')
        e.vm(f'buffer_load_dwordx4 {l16}, {S_WS}, s30 offen sc1 lds', ('h', ks >> 2))
    Bf = lambda kg, k, rb: R('a', 128 + 64 * (kg & 1) + 16 * k + 4 * rb, 4)
    ACC = R('v', 12, 112)
    acc = lambda i, rb: ACC.sub(16 * i + 4 * rb, 4)
    def hreads(kg):
        return [(f'ds_read_b128 {Bf(kg, k, rb)}, {l16} offset:{H2B + (4*kg+k)*4096 + rb*1024}', ('Bh', kg, rb, k)) for rb in range(4) for k in range(4)]
    e.wait(vm=[('h', 0)])
    e('s_barrier')
    hq = hreads(0)
    for ins, tag in hq[:12]: e.ds(ins, tag)
    hq = hq[12:]
    TT = r.B1
    def act_fin(i):
        o = []
        for pr in range(2):
            X, Y = acc(i, 2 * pr), acc(i, 2 * pr + 1)
            for k in range(4): o.append(f'v_permlane32_swap_b32 {X[k]}, {Y[k]}')
            for k in range(4): o.append(f'v_max_f32 {X[k]}, 0, {X[k]}')
            for k in range(4): o.append(f'v_mul_f32 {X[k]}, {X[k]}, {Y[k]}')
            d = TT.sub(4 * (i & 1) + 2 * pr, 2)
            for k in range(2): o.append(f'v_cvt_pk_bf16_f32 {d[k]}, {X[2*k]}, {X[2*k+1]}')
            o.append(f'ds_write_b64 v{ACTA[i]}, {d} offset:{2048 * pr}')
        return o
    seq = [(kg, i, rb, k) for kg in range(4) for i in range(7) for rb in range(4) for k in range(4)]
    aidx = lambda kg, i, k: 128 + kg * 28 + i * 4 + k
    last, first = {}, {}
    for n, (kg, i, rb, k) in enumerate(seq):
        last[aidx(kg, i, k)] = n; first.setdefault(aidx(kg, i, k), n)
    pc = Pacer(OPT['gpace'])
    finq = []
    for n, (kg, i, rb, k) in enumerate(seq):
        m = n % 112
        if rb == 0 and k == 0: e.wait(vm=[('A', aidx(kg, i, j)) for j in range(4)])
        if i == 0 and k == 0: e.wait(ds=[('Bh', kg, rb, j) for j in range(4)])
        c = '0' if (kg == 0 and k == 0) else acc(i, rb)
        e(f'{MF} {acc(i, rb)}, {st.regs[aidx(kg, i, k)]}, {Bf(kg, k, rb)}, {c}')
        if m == 56 and kg < 3:
            e.wait(vm=[('h', kg + 1)])
            e('s_barrier')
            hq += hreads(kg + 1)
            continue
        if kg == 3 and m >= 20 and (m - 20) % 16 == 0: finq += act_fin((m - 20) // 16)
        if pc.ok(n) and st.more() and (st.n - 52 < 128 or last.get(st.n - 52, 1 << 30) <= n):
            assert first.get(st.n, 1 << 30) - n >= 20
            st.issue(e); pc.use(n); continue
        if hq and (n % 2 == 0 or kg == 0):
            ins, tag = hq.pop(0); e.ds(ins, tag); continue
        kk = 0
        while finq and kk < 2:
            x = finq[0]
            if x.startswith('ds_'):
                if kk: break
                e.ds(x, 'aw'); kk = 1
            else:
                e(x); kk += 1
            finq.pop(0)
    rest = finq + ['s_nop 1'] + act_fin(6)
    for x in rest:
        if x.startswith('ds_'): e.ds(x, 'aw')
        else: e(x)
    e.wait_all(vm=False, ds=True)
    e('s_barrier')
    stampit(e, 9)
    Bd = lambda ks, rb: R('a', 128 + 16 * ks + 4 * rb, 4)
    br = [(f'ds_read_b128 {Bd(ks, rb)}, {ab} offset:{ks*4096 + rb*1024}', ('Bd', ks, rb)) for rb in range(4) for ks in range(7)]
    for ins, tag in br[:10]: e.ds(ins, tag)
    for i in range(4): e(f's_add_u32 s{32+i}, s{32+i}, {WS_PART2 - WS_PART}')
    GBv = R('v', 92, 16)
    br += [(f'ds_read_b128 {GBv.sub(8*i+4*hh,4)}, {vo} offset:{6144 + 256*i + 16*hh}', 'gb') for i in range(2) for hh in range(2)]
    def a_ahead2(i, n, last_use):
        return (i - 52) < 240 or last_use[i - 52] <= n
    npass_gemm(e, 'Bd', st, 240, 7, Bd, R('v', 12, 64), R('v', 76, 16), [f's{32+i}' for i in range(4)], l16, 7, br[10:], None, a_ahead2, pace=OPT['dpace'])
    assert not st.more()
    stampit(e, 10)
    signal_and_poll(e, 2, 'c', fa, pa8, t, S_GRP, S_OWN)
    stampit(e, 11)
    e(f's_add_u32 s30, {S_ROW}, {WS_PART2}')
    gather_sum(e, PT, A, fo, 's30')
    e('s_waitcnt lgkmcnt(0)')
    for i in range(16): e(f'v_fmac_f32 {X1[i]}, {GBv[i]}, {A[i]}')
    for k in range(8): e(f'v_cvt_pk_bf16_f32 {PT[k]}, {X1[2*k]}, {X1[2*k+1]}')
    for i in range(2):
        for u in range(2):
            e.vm(f'buffer_store_dwordx2 {PT.sub(4*i+2*u, 2)}, {xo}, {S_OS}, s39 offen offset:{128*i + 32*u}', 'st')

def tail_setup(r, p):
    lane, wv = R('v', 0), R('v', 1)
    t = r.tmp
    xo, fo, vo, fa, pa8, pa32 = [R('v', 240 + i) for i in range(6)]
    ab = R('v', 248)
    ln_addr(p, lane, wv, xo, fo, vo, t)
    p(f'v_add_u32 {vo}, {MODB}, {vo}')
    p(f'v_and_b32 {t[0]}, 7, {lane}\nv_lshlrev_b32 {fa}, 9, {t[0]}\nv_lshrrev_b32 {t[1]}, 3, {lane}\nv_lshl_add_u32 {fa}, {t[1]}, 26, {fa}')
    p(f'v_lshlrev_b32 {pa8}, 2, {t[0]}')
    p(f'v_and_b32 {t[0]}, 31, {lane}\nv_lshlrev_b32 {pa32}, 2, {t[0]}')
    p(f'v_add_u32 {ab}, {ACTB}, {r.ba[0]}')
    p(f's_lshl_b32 s36, s22, 2\ns_lshl_b32 s28, s3, 12\ns_add_u32 s36, s36, s28\ns_add_u32 s36, s36, {WS_FLAG}')
    p(f's_lshl_b32 s37, s2, 9\ns_add_u32 s37, s37, {WS_FLAG}')
    p('s_lshr_b32 s38, s2, 1\ns_lshl_b32 s38, s38, 14\ns_and_b32 s28, s2, 1\ns_lshl_b32 s28, s28, 7\ns_add_u32 s38, s38, s28')
    p('s_lshl_b32 s39, s2, 13')

def act_addr(r, p):
    lane, wv = R('v', 0), R('v', 1)
    t = r.tmp
    p(f'v_lshrrev_b32 {t[0]}, 5, {lane}\nv_lshlrev_b32 {t[0]}, 10, {t[0]}')
    p(f'v_and_b32 {t[1]}, 31, {lane}\nv_lshl_add_u32 {t[0]}, {t[1]}, 4, {t[0]}')
    p(f's_mul_i32 s29, {S_WAVE}, 7')
    for i in range(7):
        p(f's_add_u32 s28, s29, {i}')
        p('s_lshr_b32 s30, s28, 2\ns_lshl_b32 s30, s30, 12')
        p('s_bfe_u32 s23, s28, 0x10001\ns_lshl_b32 s23, s23, 3\ns_add_u32 s30, s30, s23')
        p('s_and_b32 s23, s28, 1\ns_lshl_b32 s23, s23, 9\ns_add_u32 s30, s30, s23')
        p(f's_add_u32 s30, s30, {ACTB}')
        p(f'v_add_u32 v{ACTA[i]}, s30, {t[0]}')
```

```python
WS_MOD = 0
MOD_SH1, MOD_SC1 = 0, 2048
MOD_GA, MOD_SH2, MOD_SC2, MOD_GB = 4096, 6144, 8192, 10240
WS_FLAG = 1 << 16
WS_PFLAG = WS_FLAG + 256 * 1024
WS_FLAG_END = WS_PFLAG + 1024
WS_XN = 1 << 20
WS_PART = 4 << 20
WS_X1 = 20 << 20
WS_H2 = 22 << 20
WS_ACT = 24 << 20
WS_STAMP = 32 << 20
WS_PART2 = 34 << 20
WS_WF = 50 << 20
WF_WAVE = 296 * 1024
WF_G = 1184 * 1024
WS_GR = 1 << 19
WS_EPOCH = (1 << 19) + 65536
WS_MODP = (1 << 19) + 32768
WS_END = 60 << 20
```

```python
import sys
import gen_tail
for a in sys.argv[2:]:
    if '=' in a:
        k, v = a.split('=')
        gen_tail.OPT[k] = int(v) if v.lstrip('-').isdigit() else (float(v) if v.replace('.','').isdigit() else v)
from gen_main import kmain
from build import HEADER
KN = 'adaLN_cond__gqa_block_cached__glu_gated_reglu__prompt_kernel'
p, foot = kmain(KN, stamp='stamp' in sys.argv)
s = HEADER
if 'list' in sys.argv: s += f'; @launch kernel={KN} grid=(256,1,1) block=(256,1,1) lds=163840\n'
else: s += '; @launch grid=(256,1,1) block=(256,1,1) lds=163840\n'
s += '.amdgcn_target "amdgcn-amd-amdhsa--gfx950"\n.text\n' + p.text() + '.section .rodata,"a"\n.p2align 6\n' + foot
open(sys.argv[1], 'w').write(s)
```

```python
from asmlib import *

MF = 'v_mfma_f32_16x16x32_bf16'
KBASE = 0
VBASE = 65536
XBASE = 131072

class AttnRegs:
    def __init__(self):
        v = Alloc('v', 1, 256); a = Alloc('a', 0, 256)
        self.v, self.a = v, a
        self.O = a(128, 4)
        self.Kf = a(64, 4)
        self.Vf = a(64, 4)
        self.tmp = v(7)
        self.Q = v(64, 4)
        self.S = v(64, 4)
        self.P = v(32, 4)
        self.negm = v(16, 4)
        self.ones = v(4, 4)
        self.lm = v(8, 4)
        self.la = v(4)
        self.kaddr = v(4)
        self.vaddr = v(8)
        self.dk = v(4)
        self.dv = v(4)
        self.B1 = v(16, 4)
        self.wa0 = v(8)
        self.dw = v(4)
        self.ba = v(2)
        self.ACC = R('v', self.S.b, 128)
        assert self.la.b + 4 == self.S.b + 128
        self.B0 = self.Q.sub(0, 16)
        self.wa1q = self.Q.sub(16, 8)
    def o(self, qb, db): return self.O.sub(32 * qb + 4 * db, 4)
    def kf(self, kb, ds): return self.Kf.sub(16 * kb + 4 * ds, 4)
    def vf(self, ks, db): return self.Vf.sub(32 * ks + 4 * db, 4)
    def q(self, qb, ds): return self.Q.sub(16 * qb + 4 * ds, 4)
    def s(self, qb, kb): return self.S.sub(32 * (qb >> 1) + 8 * kb + 4 * (qb & 1), 4)
    def p(self, qb, ks): return self.P.sub(8 * qb + 4 * ks, 4)
    def nm(self, qb): return self.negm.sub(4 * qb, 4)

S_KSRD = R('s', 8, 4)
S_VSRD = R('s', 12, 4)
S_SOFF = R('s', 16)
S_WLDS = R('s', 17)
S_CNT = R('s', 18)
S_WAVE = R('s', 19)
S_STEP = R('s', 30)

def qk_mfmas(r, pair):
    out = []
    for kb in range(4):
        for q1 in range(2):
            qb = 2 * pair + q1
            for ds in range(4):
                c = r.nm(qb) if ds == 0 else r.s(qb, kb)
                out.append(f'{MF} {r.s(qb, kb)}, {r.kf(kb, ds)}, {r.q(qb, ds)}, {c}')
    return out

def pv_mfmas(r, pair):
    out = []
    for db in range(8):
        for (ks, q1) in ((0, 0), (1, 0), (1, 1), (0, 1)):
            qb = 2 * pair + q1
            out.append(f'{MF} {r.o(qb, db)}, {r.vf(ks, db)}, {r.p(qb, ks)}, {r.o(qb, db)}')
    return out

def msum(r, pair, ks):
    l = r.lm.sub(4 * pair, 4)
    return f'{MF} {l}, {r.ones}, {r.p(2 * pair + 1, ks)}, {l}'

def softmax_ops(r, pair):
    exps, others = [], []
    for kb in range(4):
        for q1 in range(2):
            qb = 2 * pair + q1
            s = r.s(qb, kb)
            pp = r.p(qb, kb >> 1)
            for i in range(4):
                exps.append(f'v_exp_f32 {s[i]}, {s[i]}')
                n = len(exps) - 1
                if q1 == 0:
                    la = r.la[2 * pair + (i & 1)]
                    others.append((n, f'v_add_f32 {la}, {la}, {s[i]}'))
                if i & 1:
                    others.append((n, f'v_cvt_pk_bf16_f32 {pp[2 * (kb & 1) + (i >> 1)]}, {s[i-1]}, {s[i]}'))
    return exps, others

def k_reads(r, slot):
    return [f'ds_read_b128 {r.kf(kb, ds)}, {r.kaddr[ds]} offset:{slot * 16384 + kb * 4096}' for kb in range(4) for ds in range(4)]

def v_reads(r, slot):
    out = []
    for db in range(8):
        for ks in range(2):
            for u in range(2):
                out.append(f'ds_read_b64_tr_b16 {r.vf(ks, db).sub(2 * u, 2)}, {r.vaddr[db]} offset:{slot * 16384 + (32 * ks + 16 * u) * 256}')
    return out

def dma_tile(r, slot):
    out = []
    for p in range(4):
        pre = [f's_add_u32 m0, {S_WLDS}, {KBASE + slot * 16384}'] if p == 0 else []
        out.append((pre, f'buffer_load_dwordx4 {r.dk[p]}, {S_KSRD}, {S_SOFF} offen offset:{1024 * p} lds'))
    for p in range(4):
        pre = [f's_add_u32 m0, {S_WLDS}, {VBASE + slot * 16384}'] if p == 0 else []
        out.append((pre, f'buffer_load_dwordx4 {r.dv[p]}, {S_VSRD}, {S_SOFF} offen offset:{1024 * p} lds'))
    return out

ESTART = 8

def iteration(r, j4, extra_salu=None, x33=None, x97=None, vmn=8, over=None, dma=None, nok=False):
    mf = qk_mfmas(r, 0) + pv_mfmas(r, 1) + qk_mfmas(r, 1) + pv_mfmas(r, 0)
    N = 128
    gaps = [dict(pre=[], mem=None, valu=[], exp=None, post=[]) for _ in range(N)]
    ea, oa = softmax_ops(r, 0)
    eb, ob = softmax_ops(r, 1)
    pend = []
    for (ex, ot, base) in ((ea, oa, ESTART), (eb, ob, 64 + ESTART)):
        for n, e in enumerate(ex):
            gaps[(base + 2 * n) % N]['exp'] = e
        for n, ins in ot:
            pend.append((base + 2 * n + 1, ins))
    vr_ = v_reads(r, (j4 + 1) % 4)
    for n, d in enumerate(vr_):
        gaps[32 + 3 + 2 * n]['mem'] = d
    kr_cur = k_reads(r, (j4 + 2) % 4)
    for n, d in enumerate(kr_cur[:15]):
        gaps[96 + 3 + 2 * n]['mem'] = d if not nok else 'NONE'
    gaps[1]['mem'] = k_reads(r, (j4 + 1) % 4)[15]
    for n, (pre, d) in enumerate(dma or dma_tile(r, (j4 + 3) % 4)):
        g = 3 + 4 * n
        gaps[g]['mem'] = d
        gaps[g - 1]['pre'] += pre
    gaps[32]['pre'].append(f's_add_u32 {S_SOFF}, {S_SOFF}, {S_STEP}')
    extra = {33: [msum(r, 1, 0), msum(r, 1, 1)], 97: [msum(r, 0, 0), msum(r, 0, 1)]}
    gaps[94]['pre'].append('s_waitcnt lgkmcnt(6)')
    gaps[96 + 22]['pre'].append('s_waitcnt lgkmcnt(10)' if not nok else 's_waitcnt lgkmcnt(0)')
    if not nok: gaps[126]['pre'].append('s_waitcnt lgkmcnt(6)')
    gaps[14]['pre'].append('s_waitcnt lgkmcnt(0)')
    def cap(g):
        G = gaps[g]
        if G['exp']: return 0
        if G['mem'] is None: return 2
        return 0 if 'lds' in G['mem'] else 1
    xslots = {g: [[], []] for g in extra}
    pend.sort(key=lambda x: x[0])
    queue = []
    placed = {}
    seq = [(g + N * per, ins) for per in range(3) for (g, ins) in pend]
    seq.sort(key=lambda x: x[0])
    qi = 0
    res = {}
    for t in range(0, 3 * N):
        while qi < len(seq) and seq[qi][0] <= t:
            queue.append(seq[qi][1]); qi += 1
        g = t % N
        c = cap(g)
        take = queue[:c]; queue = queue[c:]
        xs = []
        if g in extra:
            for _ in extra[g]:
                c2 = 0 if (x33 is not None) else 2
                xs.append(queue[:c2]); queue = queue[c2:]
        res[t] = (take, xs)
    for g in range(N):
        assert res[N + g] == res[2 * N + g], g
    for g in range(N):
        for ins in res[N + g][0] + sum(res[N + g][1], []):
            if ins in [x[1] for x in oa]: assert ESTART <= g < 94, (g, ins)
            if ins in [x[1] for x in ob]: assert g >= 64 + ESTART or g < 30, (g, ins)
    out = []
    for g in range(N):
        G = gaps[g]
        out.append(mf[g])
        out += G['pre']
        if extra_salu and g in extra_salu: out += extra_salu[g]
        if over and g in over: out += over[g]
        if G['mem'] and G['mem'] != 'NONE': out.append(G['mem'])
        if G['exp']: out.append(G['exp'])
        out += res[N + g][0]
        if g in extra:
            for k, m in enumerate(extra[g]):
                out.append(m)
                if g == 97 and k == 0:
                    if vmn is not None: out.append(f's_waitcnt vmcnt({vmn})')
                if g == 97 and k == 1:
                    out.append('s_barrier')
                if g == 33 and x33: out += x33[k]
                if g == 97 and x97: out += x97[k]
                out += res[N + g][1][k]
    tail = []
    for g in range(0, 40):
        G = gaps[g]
        if G['exp'] and G['exp'] in eb: tail.append(G['exp'])
        for ins in res[N + g][0] + sum(res[N + g][1], []):
            if ins in [x[1] for x in ob]: tail.append(ins)
    return out, tail

def setup_addr(p, r, lane, wave_v):
    t = r.tmp
    m, G = t[0], t[1]
    p(f'v_and_b32 {m}, 15, {lane}')
    p(f'v_lshrrev_b32 {G}, 4, {lane}')
    p(f'v_xor_b32 {t[2]}, {G}, {m}')
    p(f'v_lshlrev_b32 {t[2]}, 4, {t[2]}')
    p(f'v_lshl_add_u32 {r.kaddr[0]}, {m}, 8, {t[2]}')
    for ds in range(1, 4):
        p(f'v_xor_b32 {r.kaddr[ds]}, {64 * ds}, {r.kaddr[0]}')
    p(f'v_lshrrev_b32 {t[2]}, 2, {lane}')
    p(f'v_and_b32 {t[3]}, 7, {t[2]}')
    p(f'v_lshlrev_b32 {t[3]}, 5, {t[3]}')
    p(f'v_lshl_add_u32 {t[3]}, {t[2]}, 8, {t[3]}')
    p(f'v_and_b32 {t[4]}, 3, {lane}')
    p(f'v_lshl_add_u32 {t[3]}, {t[4]}, 3, {t[3]}')
    p(f'v_add_u32 {r.vaddr[0]}, {VBASE}, {t[3]}')
    for db in range(1, 8):
        p(f'v_xor_b32 {r.vaddr[db]}, {32 * db}, {r.vaddr[0]}')

def setup_dma_kv(p, r, lane, wave_v):
    t = r.tmp
    m, G = t[0], t[1]
    p(f'v_and_b32 {m}, 15, {lane}')
    p(f'v_lshrrev_b32 {G}, 4, {lane}')
    p(f'v_lshl_add_u32 {t[2]}, {wave_v}, 4, {G}')
    p(f'v_lshlrev_b32 {t[2]}, 8, {t[2]}')
    p(f'v_xor_b32 {t[3]}, {m}, {G}')
    p(f'v_lshl_add_u32 {r.dk[0]}, {t[3]}, 4, {t[2]}')
    for q in range(1, 4):
        p(f'v_xor_b32 {r.dk[q]}, {64 * q}, {r.dk[0]}')
    p(f'v_lshlrev_b32 {t[3]}, 1, {G}')
    p(f'v_xor_b32 {t[3]}, {m}, {t[3]}')
    p(f'v_lshl_add_u32 {r.dv[0]}, {t[3]}, 4, {t[2]}')
    p(f'v_xor_b32 {r.dv[1]}, 128, {r.dv[0]}')
    p(f'v_mov_b32 {r.dv[2]}, {r.dv[0]}')
    p(f'v_mov_b32 {r.dv[3]}, {r.dv[1]}')

def allreduce_G(p, x, t, op):
    p(f'v_mov_b32 {t}, {x}')
    p('s_nop 1')
    p(f'v_permlane32_swap_b32 {x}, {t}')
    p(f'{op} {x}, {x}, {t}')
    p(f'v_mov_b32 {t}, {x}')
    p('s_nop 1')
    p(f'v_permlane16_swap_b32 {x}, {t}')
    p(f'{op} {x}, {x}, {t}')

def bfrag_loc(ks):
    w, s = ks >> 2, ks & 3
    if s == 0: return 0, KBASE + 3 * 16384 + 4096 * w
    if s == 1: return 1, 4096 * w
    return 1, 16384 + 8192 * w + (s - 2) * 4096

def ofrag_loc(ks):
    w, s = ks >> 2, ks & 3
    if s < 2: return 0, KBASE + 2 * 16384 + 8192 * w + 4096 * s
    return 1, 8192 * w + 4096 * (s - 2)

def gemm(r, wa0, wa1, slot_of, dma_half, finish, valu=None, xvm=None, after5=0):
    acc = lambda nt, rb: r.ACC.sub(16 * nt + 4 * rb, 4)
    A = lambda ks, nt: r.Kf.sub(32 * (ks & 1) + 4 * nt, 4)
    B = lambda ks, rb: (r.B1 if ks & 1 else r.B0).sub(4 * rb, 4)
    def a_reads(ks, u):
        wa = wa1 if u else wa0
        return [f'ds_read_b64_tr_b16 {A(ks, nt).sub(2 * u, 2)}, {wa[nt]} offset:{slot_of(ks) * 16384}' for nt in range(8)]
    def b_reads(ks, u):
        ri, off = bfrag_loc(ks)
        return [f'ds_read_b128 {B(ks, rb)}, {r.ba[ri]} offset:{off + 1024 * rb}' for rb in (2 * u, 2 * u + 1)]
    out = []
    issued = [6]
    nout = {}
    order = list(range(6))
    for h in range(6): nout[h] = 4
    nout[5.5] = after5; order.append(5.5)
    def vm_wait(h):
        n = sum(nout[x] for x in order if x > h)
        return f's_waitcnt vmcnt({n})'
    out.append(vm_wait(0))
    out += a_reads(0, 0) + b_reads(0, 0)
    out.append(vm_wait(1))
    out += a_reads(0, 1)[:4]
    out.append('s_waitcnt lgkmcnt(6)')
    d = dma_half(6); nout[6] = len(d); order.append(6)
    for pre, ins in d:
        for x in pre: out += [x, 's_nop 0']
        out.append(ins)
    out += a_reads(0, 1)[4:] + b_reads(0, 1)
    out.append('s_waitcnt lgkmcnt(0)')
    fin_q = []
    for ks in range(16):
        for u in range(2):
            mem = {}
            pre = {g: [] for g in range(16)}
            if ks < 15:
                rd = b_reads(ks + 1, u) + a_reads(ks + 1, u)
                gs = [0, 1, 3, 4, 5, 7, 8, 9, 11, 12]
                for g, x in zip(gs, rd): mem[g] = x
            h = 2 * ks + u + 7
            d = dma_half(h)
            for g, (pp, ins) in zip((2, 6, 10, 14), d):
                mem[g] = ins
                pre[g - 1] += pp
            nx = 0
            if xvm and (ks, u) in xvm:
                pp, ins = xvm[(ks, u)]
                mem[13] = ins; pre[12] += pp; nx = 1
            for g in range(16):
                n = 16 * u + g
                nt, rb = n >> 2, n & 3
                c = '0' if ks == 0 else acc(nt, rb)
                out.append(f'{MF} {acc(nt, rb)}, {A(ks, nt)}, {B(ks, rb)}, {c}')
                if g == 0 and ks < 15:
                    out.append(vm_wait(2 * (ks + 1) + u))
                if g == 1 and (ks, u) != (0, 0) and (ks, u) != (15, 1):
                    out.append('s_waitcnt lgkmcnt(1)' if ks < 15 else 's_waitcnt lgkmcnt(0)')
                out += pre[g]
                if g == 2:
                    nout[h] = len(d) + nx; order.append(h)
                if g in mem: out.append(mem[g])
                if valu and ks < 15:
                    for _ in range(2 if g not in mem else (0 if mem[g].startswith('buffer') else 1)):
                        if valu: out.append(valu.pop(0))
                if g == 15 and ks < 15 and u == 1:
                    out.append('s_waitcnt lgkmcnt(4)')
                if ks == 15:
                    if n >= 12 and (n - 12) % 8 == 0:
                        fin_q += finish((n - 12) // 8)
                    k = 0
                    while fin_q and k < 2 and g not in mem:
                        x = fin_q.pop(0); out.append(x)
                        k += 2 if x.startswith('buffer') else 1
    assert not valu
    out += fin_q
    out.append('s_nop 7')
    out += finish(3)
    return out
```

```python
from gen_attn import *
from layout import *
from gen_tail import *
from gen_small import srd, f32, CQ
import math
IDLE = 0x80000000

def kmain(name, stamp=False):
    NG = OPT.get('ng', 1)
    r = AttnRegs()
    lane, wv = R('v', 0), R('v', 1)
    S_WQ = R('s', 40, 4); S_PA = S_WQ; S_PB = R('s', 60, 4)
    S_QOFF = R('s', 31); S_HW = 's20'
    S_PASS = R('s', 44)
    S_KB = R('s', 46, 2); S_VB = R('s', 48, 2)
    t = r.tmp
    PF = R('v', 254); PFD = R('v', 255); STV = R('v', 8); PFX = r.B1[15]
    def stampit(p, k):
        if stamp:
            if hasattr(p, 'wait_all'): p.wait_all(vm=False, ds=True)
            p(f's_waitcnt lgkmcnt(0)\ns_memtime s[96:97]\ns_memrealtime s[98:99]\ns_waitcnt lgkmcnt(0)\nv_writelane_b32 {STV}, s96, {32+2*k}\nv_writelane_b32 {STV}, s98, {33+2*k}')
    def xs(p, nm):
        if OPT.get('s14') == nm: stampit(p, 14)
        if OPT.get('s15') == nm: stampit(p, 15)
    pro = Prog()
    pro(f's_cmp_ge_u32 s2, 256\ns_cbranch_scc1 L_end')
    stampit(pro, 0)
    pro('s_load_dwordx4 s[84:87], s[0:1], 72')
    pro('s_load_dwordx2 s[24:25], s[0:1], 104')
    pro('s_load_dwordx2 s[52:53], s[0:1], 0')
    pro('s_load_dwordx8 s[4:11], s[0:1], 8')
    pro('s_load_dwordx4 s[92:95], s[0:1], 48\ns_load_dwordx2 s[90:91], s[0:1], 64')
    pro('s_load_dwordx2 s[56:57], s[0:1], 88')
    pro(f'v_lshrrev_b32 {wv}, 6, v0')
    pro(f'v_and_b32 v0, 63, v0')
    pro(f'v_readfirstlane_b32 {S_WAVE}, {wv}')
    pro('s_getpc_b64 s[88:89]')
    def code_pf(p, dst):
        p(f's_mov_b32 s40, s88\ns_mov_b32 s41, s89\ns_mov_b32 s42, L_epi-{name}-128\ns_mov_b32 s43, 0x20000')
        p(f'v_and_b32 {PF}, 3, v0\nv_lshlrev_b32 {PF}, 7, {PF}\nv_lshl_add_u32 {PF}, {wv}, 9, {PF}')
        p(f's_lshr_b32 s28, {S_HW}, 3\ns_lshl_b32 s28, s28, 11')
        p(f'buffer_load_dword {dst}, {PF}, s[40:43], s28 offen')
    pro(f's_mov_b32 {S_HW}, s2')
    code_pf(pro, PFD)
    if NG == 1:
        pro('s_and_b32 s22, s2, 7\ns_lshr_b32 s3, s2, 3')
    else:
        pro('s_and_b32 s22, s2, 6\ns_bfe_u32 s28, s2, 0x10003\ns_add_u32 s22, s22, s28')
        pro('s_and_b32 s3, s2, 1\ns_lshl_b32 s3, s3, 4\ns_lshr_b32 s28, s2, 4\ns_add_u32 s3, s3, s28')
        pro('s_lshl_b32 s2, s3, 3\ns_add_u32 s2, s2, s22')
    pro(f's_lshl_b32 {S_WLDS}, {S_WAVE}, 12')
    pro(f'v_lshlrev_b32 {r.ba[0]}, 4, {lane}')
    L2E = f32(-math.log2(math.e))
    tid = t[5]
    def mod_addr(p, crit, va, vc, tmp, so_w, so_c, s_lc, s_q):
        b = 1 if crit else 2
        p(f's_lshr_b32 s28, {S_HW}, {6 - b}\ns_lshl_b32 s28, s28, 3\ns_and_b32 s29, {S_HW}, 7\ns_add_u32 s28, s28, s29')
        p(f's_and_b32 {s_lc}, s28, {15 if crit else 31}\ns_lshr_b32 {s_q}, s28, {3 + b}')
        p(f's_bfe_u32 s29, {S_HW}, {hex(((3 - b) << 16) | 3)}\ns_lshl_b32 {s_lc}, {s_lc}, {3 - b}\ns_add_u32 {s_lc}, {s_lc}, s29')
        p(f's_mul_i32 {so_w}, {s_q}, {128*6144}\ns_lshl_b32 s28, {s_lc}, {4 + b}\ns_add_u32 {so_w}, {so_w}, s28')
        if not crit: p(f's_add_u32 {so_w}, {so_w}, 2048')
        p(f's_lshl_b32 {so_c}, {s_q}, 8')
        p(f'v_lshl_add_u32 {tmp}, {wv}, 6, {lane}\nv_lshrrev_b32 {tmp}, {b}, {tmp}')
        p(f'v_lshlrev_b32 {vc}, {b}, {tmp}\nv_mul_u32_u24 {va}, {b*6144}, {tmp}')
        p(f'v_and_b32 {tmp}, {2*b - 1}, {lane}\nv_lshl_add_u32 {va}, {tmp}, 4, {va}')
    def mod_compute(p, crit, W, C, U, A_, ta, lds):
        n = len(W)
        if crit: p(f'v_lshlrev_b32 {C[0]}, 16, {C[0]}')
        else: p(f'v_and_b32 {C[1]}, 0xffff0000, {C[0]}\nv_lshlrev_b32 {C[0]}, 16, {C[0]}')
        for i in range(n): p(f'v_mul_f32 {U[i]}, {L2E}, {C[i]}')
        for i in range(n): p(f'v_exp_f32 {U[i]}, {U[i]}')
        p(f'v_and_b32 {ta}, {2*n - 1}, {lane}')
        for i in range(n): p(f'v_add_f32 {U[i]}, 1.0, {U[i]}')
        for i in range(n): p(f'v_rcp_f32 {U[i]}, {U[i]}')
        p(f'v_lshlrev_b32 {ta}, 5, {ta}')
        for i in range(n): p(f'v_mul_f32 {C[i]}, {C[i]}, {U[i]}')
        for i in range(n):
            for k in range(4):
                p(f'v_lshlrev_b32 {U[2*k]}, 16, {W[i][k]}\nv_and_b32 {U[2*k+1]}, 0xffff0000, {W[i][k]}')
            for e_ in range(8):
                p(f'v_mul_f32 {A_[e_]}, {U[e_]}, {C[i]}' if i == 0 else f'v_fmac_f32 {A_[e_]}, {U[e_]}, {C[i]}')
        for e_ in range(4): p(f'v_permlane32_swap_b32 {A_[e_]}, {A_[e_+4]}')
        for e_ in range(4): p(f'v_add_f32 {A_[e_]}, {A_[e_]}, {A_[e_+4]}')
        p(f'v_lshrrev_b32 {U[0]}, 4, {lane}')
        for e_ in range(2): p(f'v_permlane16_swap_b32 {A_[e_]}, {A_[e_+2]}')
        for e_ in range(2): p(f'v_add_f32 {A_[e_]}, {A_[e_]}, {A_[e_+2]}')
        p(f'v_lshl_add_u32 {ta}, {U[0]}, 3, {ta}')
        for j, sh in enumerate((8, 4, 2) if crit else (8, 4)):
            if j: p('s_nop 0')
            for e_ in range(2): p(f'v_add_f32_dpp {A_[e_]}, {A_[e_]}, {A_[e_]} row_ror:{sh} row_mask:0xf bank_mask:0xf')
        p(f'v_add_u32 {ta}, {S_WLDS}, {ta}')
        p(f'ds_write_b64 {ta}, {A_.sub(0,2)} offset:{lds}')
    def mod_gather(p, U, ta, lds):
        p(f'v_lshlrev_b32 {ta}, 2, {lane}')
        for w_ in range(4): p(f'ds_read_b32 {U[w_]}, {ta} offset:{lds + 4096*w_}')
    MW = r.ACC.sub(0, 4); MC = r.ACC.sub(4, 2); MA = r.ACC.sub(8, 8); MU = r.ACC.sub(16, 8); MT = r.ACC.sub(24, 4)
    mod_addr(pro, True, MT[0], MT[1], MT[2], 's32', 's33', 's34', 's35')
    pro(f'v_and_b32 {t[0]}, 15, {lane}\nv_lshrrev_b32 {t[1]}, 4, {lane}\nv_lshlrev_b32 {PFX}, 10, {t[0]}\nv_lshl_add_u32 {PFX}, {t[1]}, 4, {PFX}')
    pro(f's_lshl_b32 s21, s3, 16\ns_lshl_b32 s28, {S_WAVE}, 8\ns_add_u32 s21, s21, s28')
    pro('s_lshr_b32 s28, s22, 1\ns_lshl_b32 s28, s28, 14\ns_add_u32 s21, s21, s28')
    pro('s_waitcnt lgkmcnt(0)')
    xs(pro, 'karg')
    pro(f's_load_dword {S_TAG}, s[24:25], {WS_EPOCH}')
    pro(f's_mov_b32 s26, {WS_END}\ns_mov_b32 s27, 0x20000')
    pro('s_mov_b32 s54, 0x200000\ns_mov_b32 s55, 0x20000\ns_mov_b32 s58, 0x200000\ns_mov_b32 s59, 0x20000')
    srd(pro, 60, 's84', 's85', 1024)
    srd(pro, 40, 's86', 's87', 512 * 6144)
    pro(f'buffer_load_dwordx4 {MW}, {MT[0]}, s[40:43], s32 offen')
    pro(f'buffer_load_ushort {MC[0]}, {MT[1]}, s[60:63], s33 offen')
    FB = OPT.get('fair', 1)
    if FB: pro('s_barrier')
    p2 = Prog()
    X = r.Q
    XA = R('v', 251)
    def xload(p, rb):
        for s in range(4):
            p(f'buffer_load_dwordx4 {X.sub(16*rb+4*s,4)}, {PFX}, {S_XS}, s21 offen offset:{64*s}')
        if rb < 3: p(f's_xor_b32 s21, s21, {(rb ^ (rb + 1)) << 14}')
        if FB and rb < 2: p('s_barrier')
    XF = 3
    xload(p2, 0); xload(p2, 1)
    xs(p2, 'x12')
    p2('s_lshl_b32 s23, s22, 19')
    p2(f's_add_u32 {S_KB[0]}, s4, s23\ns_addc_u32 {S_KB[1]}, s5, 0')
    p2(f's_add_u32 {S_VB[0]}, s6, s23\ns_addc_u32 {S_VB[1]}, s7, 0')
    p2(f's_add_u32 s50, s10, s23\ns_addc_u32 s51, s11, 0')
    p2(f's_mov_b32 {S_WQ[0]}, s8\ns_mov_b32 {S_WQ[1]}, s9\ns_mov_b32 {S_WQ[2]}, 0x400000')
    p2(f'v_and_b32 {t[0]}, 7, {lane}\nv_lshlrev_b32 {t[0]}, 7, {t[0]}\nv_lshrrev_b32 {t[2]}, 3, {lane}')
    if OPT.get('pfil', 1):
        p2(f'v_lshl_add_u32 {PF}, {t[2]}, {20 - (NG - 1)}, {t[0]}')
    else:
        p2(f'v_lshl_add_u32 {PF}, {t[2]}, 13, {t[0]}')
        if NG == 1: p2(f'v_lshrrev_b32 {t[2]}, 5, {lane}\nv_lshl_add_u32 {PF}, {t[2]}, 24, {PF}')
    p2(f's_and_b32 s28, s3, {32 // NG - 1}\ns_lshl_b32 s28, s28, 2\ns_add_u32 s28, s28, {S_WAVE}\ns_lshl_b32 s28, s28, {13 if OPT.get("pfil", 1) else 15 + NG - 1}\ns_lshl_b32 s29, s22, 10\ns_add_u32 s36, s28, s29')
    tagfix = f's_waitcnt lgkmcnt(0)\ns_add_u32 {S_TAG}, {S_TAG}, 0x9e3779b9'
    def set_kv_srd(p):
        p(f's_mov_b32 s8, {S_KB[0]}\ns_mov_b32 s9, {S_KB[1]}\ns_mov_b32 s10, 0x80000\ns_mov_b32 s11, 0x20000')
        p(f's_mov_b32 s12, {S_VB[0]}\ns_mov_b32 s13, {S_VB[1]}\ns_mov_b32 s14, 0x80000\ns_mov_b32 s15, 0x20000')
        p(f's_mov_b32 {S_STEP}, 16384\ns_mov_b32 {S_SOFF}, 0')
    set_kv_srd(p2)
    p2(f'v_and_b32 {t[0]}, 15, {lane}')
    p2(f'v_lshlrev_b32 {t[2]}, 1, {t[1]}\nv_xor_b32 {t[2]}, {t[0]}, {t[2]}\nv_lshlrev_b32 {t[2]}, 4, {t[2]}')
    p2(f'v_lshl_add_u32 {r.dw[0]}, {t[1]}, 13, {t[2]}')
    stq = 8 * 8192 - 1024
    p2(f'v_xor_b32 {r.dw[1]}, 128, {r.dw[0]}\nv_add_u32 {r.dw[1]}, {stq}, {r.dw[1]}')
    p2(f'v_add_u32 {r.dw[2]}, {2*stq}, {r.dw[0]}\nv_add_u32 {r.dw[3]}, {2*stq}, {r.dw[1]}')
    p2(f's_lshl_b32 {S_QOFF}, s22, 2\ns_add_u32 {S_QOFF}, {S_QOFF}, {S_WAVE}\ns_lshl_b32 {S_QOFF}, {S_QOFF}, 8')
    p2(f's_mov_b32 {S_PASS}, 0')
    pm2 = Prog()
    RED = KBASE + 3 * 16384
    X2E = OPT.get('x2e', 1)
    if X2E: xload(pm2, 2)
    pm2('s_lshr_b32 s29, s34, 5\ns_cmp_eq_u32 s29, 1\ns_cselect_b32 s32, 1.0, 0\ns_cmp_eq_u32 s35, 0\ns_cselect_b32 s32, s32, 0')
    pm2(f's_lshl_b32 s34, s34, 7\ns_lshl_b32 s35, s35, 13\ns_add_u32 s34, s34, s35\ns_add_u32 s34, s34, {WS_GR}')
    pm2(f's_cmp_eq_u32 {S_WAVE}, 0\ns_cselect_b32 s34, s34, {IDLE}')
    pm2(f'v_lshrrev_b32 {MT[1]}, 4, {lane}\nv_lshlrev_b32 {MT[1]}, 26, {MT[1]}\nv_lshl_add_u32 {MT[1]}, {lane}, 3, {MT[1]}')
    xs(pm2, 'w0')
    pm2(f's_waitcnt vmcnt({12 if X2E else 8})')
    xs(pm2, 'w1')
    if not X2E: xload(pm2, 2)
    mod_compute(pm2, True, [MW], MC, MU, MA, MT[2], RED)
    pm2('s_waitcnt lgkmcnt(0)\ns_barrier')
    mod_gather(pm2, MU, MT[2], RED)
    pm2(tagfix)
    pm2(f'v_add_f32 {MU[0]}, {MU[0]}, {MU[1]}\nv_add_f32 {MU[2]}, {MU[2]}, {MU[3]}\nv_add_f32 {MU[0]}, {MU[0]}, {MU[2]}')
    pm2(f'v_mov_b32 {MU[1]}, {S_TAG}')
    pm2(f'v_add_f32 {MU[0]}, s32, {MU[0]}\nv_mul_f32 {MU[0]}, {f32(CQ)}, {MU[0]}')
    pm2(f'buffer_store_dwordx2 {MU.sub(0,2)}, {MT[1]}, {S_WS}, s34 offen sc1')
    p3 = Prog()
    xs(p3, 'pub')
    qslot = lambda ks: (ks + 2) % 3
    def q_dma(h):
        ks, u = h >> 1, h & 1
        base = (VBASE if u else KBASE) + qslot(ks) * 16384
        if ks < 16:
            out = []
            for p in range(4):
                pre = [f's_add_u32 m0, {S_WLDS}, {base}'] if p == 0 else []
                if p == 0 and h > 0: pre = [f's_add_u32 {S_QOFF}, {S_QOFF}, {(4 if u else 28)*8192}'] + pre
                out.append((pre, f'buffer_load_dwordx4 {r.dw[p]}, {S_WQ}, {S_QOFF} offen offset:{1024*p} lds'))
            return out
        if ks < 18:
            d = dma_tile(r, ks - 16)[4*u:4*u+4]
            if ks == 17 and u == 0:
                d[0] = ([f's_add_u32 {S_SOFF}, {S_SOFF}, {S_STEP}'] + d[0][0], d[0][1])
            return d
        if h == 36:
            return [([], f'buffer_load_dwordx4 {NW[0]}, {NA}, s[4:7], s32 offen'),
                    (['s_add_u32 s32, s32, 6144'], f'buffer_load_dwordx4 {NW[1]}, {NA}, s[4:7], s32 offen'),
                    ([], f'buffer_load_dword {NC[0]}, {NCA}, s[60:63], s33 offen')]
        return []
    NW = [r.dw, R('v', 4, 4)]; NC = R('v', 254, 2); NA = t[0]; NCA = t[1]
    def zero_ov():
        return [f'v_accvgpr_write_b32 {r.O[i]}, 0' for i in range(128)] + [f'v_accvgpr_write_b32 {r.Vf[i]}, 0' for i in range(64)]
    fill = Prog()
    late = Prog()
    setup_dma_kv(late, r, lane, wv)
    setup_addr(late, r, lane, wv)
    fill(f'v_add_u32 {r.ba[1]}, {VBASE + 3*16384}, {r.ba[0]}')
    fill(f'v_lshrrev_b32 {t[2]}, 2, {lane}\nv_and_b32 {t[3]}, 7, {t[2]}\nv_lshlrev_b32 {t[3]}, 1, {t[3]}\nv_and_b32 {t[4]}, 3, {lane}')
    fill(f'v_xor_b32 {t[3]}, {t[3]}, {t[4]}\nv_lshlrev_b32 {t[3]}, 4, {t[3]}\nv_lshl_add_u32 {t[3]}, {t[2]}, 8, {t[3]}')
    fill(f'v_add_u32 {r.wa0[0]}, {S_WLDS}, {t[3]}')
    for nt in range(1, 8): fill(f'v_xor_b32 {r.wa0[nt]}, {64*(nt>>1) + 8*(nt&1)}, {r.wa0[0]}')
    wr = [R('v', 9), R('v', 10)]; wr2 = R('v', 11)
    fill(f'v_add_u32 {wr[0]}, {S_WLDS}, {r.ba[0]}\nv_add_u32 {wr[1]}, {S_WLDS}, {r.ba[1]}\nv_add_u32 {wr2}, {S_WLDS}, {wr[1]}')
    p2.extend(fill)
    def frag_write(s, rb, D):
        if s == 0: return f'ds_write_b128 {wr[0]}, {D} offset:{KBASE + 3*16384 + 1024*rb}'
        if s == 1: return f'ds_write_b128 {wr[1]}, {D} offset:{1024*rb}'
        return f'ds_write_b128 {wr2}, {D} offset:{16384 + (s-2)*4096 + 1024*rb}'
    XN = r.ACC
    e3 = Em(vq=[f'x{rb}' for rb in range(XF) for _ in range(4)] + ['pub'])
    for rb in range(XF, 4):
        for s in range(4):
            e3.vm(f'buffer_load_dwordx4 {X.sub(16*rb+4*s,4)}, {PFX}, {S_XS}, s21 offen offset:{64*s}', f'x{rb}')
        if rb < 3: e3(f's_xor_b32 s21, s21, {(rb ^ (rb + 1)) << 14}')
    PE = OPT.get('pe', 3)
    def late_pf(p, bulk):
        vm = p.vm if hasattr(p, 'vm') else p
        if bulk: vm(f'buffer_load_dword {PFD}, {PF}, {S_WQ}, s36 offen')
        p(f'v_lshrrev_b32 {t[4]}, 3, {lane}\nv_lshl_add_u32 {PF}, {t[4]}, 24, {PF}')
        p('s_lshr_b32 s37, s36, 13\ns_lshl_b32 s37, s37, 10')
        vm(f'buffer_load_dword {PFD}, {PF}, {S_KSRD}, s37 offen')
        vm(f'buffer_load_dword {PFD}, {PF}, {S_VSRD}, s37 offen')
        mm = Prog(); mod_addr(mm, False, t[4], t[4], t[4], 's38', 's39', 's37', 's35')
        for x in mm.lines:
            if x.startswith('s_'): p(x)
        p(f's_mov_b32 s4, s86\ns_mov_b32 s5, s87\ns_mov_b32 s6, {512*6144}\ns_mov_b32 s7, 0x20000')
        p(f'v_and_b32 {t[4]}, 31, {lane}\nv_lshl_add_u32 {t[4]}, {wv}, 5, {t[4]}\nv_mul_u32_u24 {t[4]}, 6144, {t[4]}')
        vm(f'buffer_load_dword {PFD}, {t[4]}, s[4:7], s38 offen')
    def early_pf(e3):
        e3(f'v_cmp_gt_u32 vcc, {8*PE}, {lane}\nv_mov_b32 {t[4]}, 0x40000000\ns_nop 0\nv_cndmask_b32 {t[4]}, {t[4]}, {PF}, vcc')
        e3.vm(f'buffer_load_dword {PFD}, {t[4]}, {S_WQ}, s36 offen', 'pf0')
        if PE >= 4 * NG: late_pf(e3, False)
    if OPT.get('pfat', -1) < 0:
        early_pf(e3)
    xs(e3, 'dma')
    dq = [(pre, ins) for h in range(6) for pre, ins in q_dma(h)]
    def dma_some(n):
        for _ in range(n):
            if not dq: return
            pre, ins = dq.pop(0)
            for x in pre: e3(x)
            if pre: e3('s_nop 0')
            e3.vm(ins, 'dma')
    DM = [int(c) for c in str(OPT.get('dm', '11002211'))[-8:]]
    Z4 = r.B1.sub(0, 4)
    RS = r.B1.sub(4, 4)
    GR = X.sub(0, 32)
    e3('s_mov_b32 s23, 0x3f803f80')
    e3(f'v_lshl_add_u32 {t[2]}, {wv}, 2, {r.ba[0]}\nv_add_u32 {t[2]}, {XBASE + 2048}, {t[2]}')
    e3(f'v_and_b32 {t[3]}, 15, {lane}\nv_lshlrev_b32 {t[3]}, 4, {t[3]}\nv_lshl_add_u32 {t[3]}, {wv}, 13, {t[3]}\nv_add_u32 {t[3]}, {XBASE + 2048}, {t[3]}')
    e3(f's_lshl_b32 s33, {S_WAVE}, 10\ns_add_u32 s33, s33, {WS_GR}')
    poll = []
    for i in range(8):
        poll += [f's_add_u32 s32, s33, {4096*i}', f'buffer_load_dwordx4 {GR.sub(4*i,4)}, {r.ba[0]}, {S_WS}, s32 offen sc1']
    def unpk(rb, k0, k1):
        for k in range(k0, k1):
            e3(f'v_lshlrev_b32 {XN[32*rb+2*k]}, 16, {X[16*rb+k]}\nv_and_b32 {XN[32*rb+2*k+1]}, 0xffff0000, {X[16*rb+k]}')
    for stg in range(2):
        for q in range(2):
            rb = 2 * stg + q
            e3.wait(vm=[f'x{rb}'])
            xs(e3, f'a{rb}')
            if rb == OPT.get('pollat', 2):
                for x in poll:
                    if x.startswith('s_'): e3(x)
                    else: e3.vm(x, 'gr')
            if rb == OPT.get('pfat', -1): early_pf(e3)
            for k in range(16):
                x = X[16*rb + k]
                a, b = (Z4[q], Z4[2+q]) if k % 2 == 0 else (t[0], t[1])
                e3(f'v_dot2_f32_bf16 {a}, {x}, s23, {a if k > 1 else 0}')
                e3(f'v_dot2_f32_bf16 {b}, {x}, {x}, {b if k > 1 else 0}')
                if k % 4 == 3: dma_some(DM[rb])
            unpk(rb, 0, 2 if q else 16)
            e3(f'v_add_f32 {Z4[q]}, {Z4[q]}, {t[0]}\nv_add_f32 {Z4[2+q]}, {Z4[2+q]}, {t[1]}')
        rb = 2 * stg + 1
        if stg: xs(e3, 'xin')
        unpk(rb, 2, 3)
        e3(f'v_permlane32_swap_b32 {Z4[0]}, {Z4[2]}\nv_permlane32_swap_b32 {Z4[1]}, {Z4[3]}')
        e3(f'v_add_f32 {Z4[0]}, {Z4[0]}, {Z4[2]}\nv_add_f32 {Z4[1]}, {Z4[1]}, {Z4[3]}')
        unpk(rb, 3, 4)
        e3(f'v_permlane16_swap_b32 {Z4[0]}, {Z4[1]}')
        e3(f'v_add_f32 {Z4[0]}, {Z4[0]}, {Z4[1]}')
        for c in range(4): e3(f'ds_write_b32 {t[2]}, {Z4[0]} offset:{8192*c + 1024*stg}')
        unpk(rb, 4, 8)
        e3('s_waitcnt lgkmcnt(0)\ns_barrier')
        ZZ = X.sub(32*stg, 16)
        for q in range(4): e3(f'ds_read_b128 {ZZ.sub(4*q, 4)}, {t[3]} offset:{256*q + 1024*stg}')
        dma_some(DM[4 + stg])
        unpk(rb, 8, 16)
        e3('s_waitcnt lgkmcnt(0)')
        for q in range(4): e3(f'v_add_f32 {ZZ[4*q]}, {ZZ[4*q]}, {ZZ[4*q+1]}\nv_add_f32 {ZZ[4*q+2]}, {ZZ[4*q+2]}, {ZZ[4*q+3]}')
        for q in range(4): e3(f'v_add_f32 {ZZ[4*q]}, {ZZ[4*q]}, {ZZ[4*q+2]}')
        for q in range(4): e3(f'v_mul_f32 {ZZ[4*q]}, {f32(1/512)}, {ZZ[4*q]}')
        for q in range(2): e3(f'v_fma_f32 {ZZ[8+4*q]}, -{ZZ[4*q]}, {ZZ[4*q]}, {ZZ[8+4*q]}')
        for q in range(2): e3(f'v_max_f32 {ZZ[8+4*q]}, 0, {ZZ[8+4*q]}')
        for q in range(2): e3(f'v_add_f32 {ZZ[8+4*q]}, {f32(1e-5)}, {ZZ[8+4*q]}')
        for q in range(2): e3(f'v_rsq_f32 {RS[2*q]}, {ZZ[8+4*q]}')
        e3('s_nop 0')
        for q in range(2): e3(f'v_mul_f32 {RS[2*q+1]}, -{ZZ[4*q]}, {RS[2*q]}')
        for q in range(2):
            for k in range(16):
                z = XN.sub(32*(2*stg+q) + 2*k, 2)
                e3(f'v_pk_fma_f32 {z}, {z}, {RS.sub(2*q, 2)}, {RS.sub(2*q, 2)} op_sel:[0,0,1] op_sel_hi:[1,0,1]')
            dma_some(DM[6 + stg])
    e3(f'v_lshlrev_b32 {t[2]}, 3, {lane}\nv_lshl_add_u32 {t[2]}, {wv}, 13, {t[2]}\nv_add_u32 {t[2]}, {XBASE}, {t[2]}')
    e3(f'v_lshrrev_b32 {t[3]}, 4, {lane}\nv_lshlrev_b32 {t[3]}, 5, {t[3]}\nv_lshl_add_u32 {t[3]}, {wv}, 13, {t[3]}\nv_add_u32 {t[3]}, {XBASE}, {t[3]}')
    xs(e3, 'norm')
    e3('s_mov_b32 s28, 0')
    e3.wait(vm=['gr'])
    p3.extend(e3.out)
    pl = Prog()
    pl(f'v_xor_b32 {t[0]}, {S_TAG}, {GR[1]}')
    for i in range(3, 32, 2): pl(f'v_bitop3_b32 {t[0]}, {t[0]}, {GR[i]}, {S_TAG} bitop3:0xf6')
    pl(f'v_cmp_ne_u32 vcc, 0, {t[0]}')
    pl(f's_add_u32 s28, s28, 1\ns_cmp_gt_u32 s28, {0x40000 if OPT.get("np", 192) >= 64 else 0}\ns_cbranch_scc1 L_gok')
    pl('s_cbranch_vccz L_gok')
    pl2 = Prog()
    for x in poll: pl2(x)
    pl2('s_waitcnt vmcnt(0)')
    pl2('s_branch L_gpoll')
    p4 = Prog()
    stampit(p4, 13)
    for j in (0, 2, 4, 6): p4(f'v_add_f32 {GR[j]}, {GR[j]}, {GR[8+j]}\nv_add_f32 {GR[16+j]}, {GR[16+j]}, {GR[24+j]}')
    for j in (0, 4): p4(f'v_add_f32 {GR[j]}, {GR[j]}, {GR[16+j]}\nv_add_f32 {GR[j+1]}, {GR[j+2]}, {GR[18+j]}')
    p4(f'ds_write_b64 {t[2]}, {GR.sub(0,2)}\nds_write_b64 {t[2]}, {GR.sub(4,2)} offset:512')
    SC = X
    p4('s_waitcnt lgkmcnt(0)')
    for s in range(4):
        for i in range(2):
            p4(f'ds_read_b128 {SC.sub(16*s+4*i,4)}, {t[3]} offset:{512 + 128*s + 16*i}')
            p4(f'ds_read_b128 {SC.sub(16*s+8+4*i,4)}, {t[3]} offset:{128*s + 16*i}')
        if s == 2: p4('s_waitcnt lgkmcnt(8)')
    for s in range(4):
        if s == 1: p4('s_waitcnt lgkmcnt(4)')
        for rb in range(4):
            z = XN.sub(32*rb + 8*s, 8)
            for k in range(4): p4(f'v_pk_fma_f32 {z.sub(2*k,2)}, {z.sub(2*k,2)}, {SC.sub(16*s+2*k,2)}, {SC.sub(16*s+8+2*k,2)}')
            for k in range(4): p4(f'v_cvt_pk_bf16_f32 {z[k]}, {z[2*k]}, {z[2*k+1]}')
            p4(frag_write(s, rb, z.sub(0, 4)))
            for _ in range(min(len(dq), 2 if len(dq) > 16 - 4*s - rb else 1)):
                pre, ins = dq.pop(0)
                for x in pre: p4(x)
                if pre: p4('s_nop 0')
                p4(ins)
    assert not dq
    for nt in range(8): p4(f'v_add_u32 {r.wa1q[nt]}, {VBASE}, {r.wa0[nt]}')
    if PE < 4 * NG: late_pf(p4, True)
    p4('@MA2S')
    p4('s_waitcnt lgkmcnt(0)')
    p4('s_barrier')
    stampit(p4, 1)
    ma2 = Prog()
    mod_addr(ma2, False, NA, NCA, t[2], 's32', 's33', 's34', 's35')
    xvm = {}
    kvpf = [([f's_lshr_b32 s37, s36, 13', 's_lshl_b32 s37, s37, 10'], f'buffer_load_dword {PFD}, {PF}, {S_KSRD}, s37 offen'),
            ([], f'buffer_load_dword {PFD}, {PF}, {S_VSRD}, s37 offen')]
    def q_finish(i):
        out = []
        for rb in range(4):
            for k in range(4):
                a = r.ACC.sub(16*(2*i + (k>>1)) + 4*rb, 4)
                out.append(f'v_cvt_pk_bf16_f32 {r.q(rb, i)[k]}, {a[2*(k&1)]}, {a[2*(k&1)+1]}')
        return out
    p4.extend(gemm(r, r.wa0, r.wa1q, qslot, q_dma, q_finish, late.lines + [x for x in ma2.lines if x.startswith('v_')] + zero_ov(), xvm, 0 if PE >= 4 * NG else 4))
    p4(f's_add_u32 {S_SOFF}, {S_SOFF}, {S_STEP}')
    stampit(p4, 2)
    STG = r.B1.sub(0, 4); VF = r.B1.sub(4, 4)
    vB0, vC1, vRow, vCh, vR, vD, vTag, vOne = [r.B1[8 + i] for i in range(8)]
    N1A, N1B, N1R, N2R, N2A, N2B = 's[64:65]', 's[66:67]', 's68', 's69', 's[70:71]', 's[72:73]'
    SS, S0, S1, S2, S3, SD, SL1, SMB, SF, SFB, SA1, SA2, SX = 's74', 's75', 's76', 's77', 's83', 's78', 's79', 's80', 's81', 's84', 's85', 's86', 's87'
    S_U = 's82'
    su = Prog()
    su(f's_lshl_b32 {S_U}, s3, 2\ns_add_u32 {S_U}, {S_U}, {S_WAVE}')
    su(f's_lshl_b32 {SMB}, {S_WAVE}, 13\ns_add_u32 {SMB}, {SMB}, {XBASE}')
    su(f's_lshr_b32 s28, {S_U}, 3\ns_lshl_b32 s28, s28, 15\ns_and_b32 s29, {S_U}, 7\ns_lshl_b32 s29, s29, 7\ns_add_u32 s28, s28, s29')
    su(f's_add_u32 s40, s50, s28\ns_addc_u32 s41, s51, 0\ns_mov_b32 s42, {32*1024 - 896}')
    su(f's_add_u32 s60, s40, 64\ns_addc_u32 s61, s41, 0\ns_mov_b32 s62, {32*1024 - 896}')
    su(f's_mul_i32 s29, s22, {224*1024}\ns_add_u32 s28, s28, s29')
    su(f's_cmp_lt_u32 {S_U}, 56\ns_cselect_b32 s28, s28, 0\ns_cselect_b32 {N1R}, {32*1024 - 896}, 0')
    su('s_add_u32 s64, s90, s28\ns_addc_u32 s65, s91, 0\ns_add_u32 s66, s64, 64\ns_addc_u32 s67, s65, 0')
    su(f's_and_b32 s28, {S_U}, 15\ns_mul_i32 s28, s28, {32*3584}\ns_lshr_b32 s29, {S_U}, 4\ns_lshl_b32 s29, s29, 6\ns_add_u32 s28, s28, s29')
    su(f's_mul_i32 s29, s22, 448\ns_add_u32 s28, s28, s29')
    su(f's_cmp_lt_u32 {S_U}, 112\ns_cselect_b32 s28, s28, 0\ns_cselect_b32 {N2R}, {31*3584 + 64}, 0')
    su('s_add_u32 s70, s92, s28\ns_addc_u32 s71, s93, 0\ns_add_u32 s72, s94, s28\ns_addc_u32 s73, s95, 0')
    su(f's_mul_i32 s23, s22, {WF_G}\ns_add_u32 s23, s23, {WS_WF}')
    su(f's_mov_b32 {SS}, {IDLE}\ns_mov_b32 {S0}, {IDLE}\ns_mov_b32 {SD}, 0')
    su(f's_and_b32 s28, {S_U}, 7\ns_lshr_b32 s29, {S_U}, 3\ns_lshl_b32 s29, s29, 10\ns_add_u32 s29, s29, s23')
    su(f's_lshl_b32 {S1}, s28, 16\ns_add_u32 {S1}, {S1}, s29')
    su(f's_mul_i32 {S2}, s28, {28*1024}\ns_add_u32 {S2}, {S2}, s29\ns_add_u32 {S2}, {S2}, {960*1024}')
    su(f's_cmp_lt_u32 {S_U}, 56\ns_cselect_b32 {S2}, {S2}, {IDLE}')
    su(f's_lshr_b32 s28, {S_U}, 4\ns_lshl_b32 s28, s28, 16\ns_and_b32 s29, {S_U}, 15\ns_lshl_b32 s29, s29, 10\ns_add_u32 {S3}, s28, s29')
    su(f's_add_u32 {S3}, {S3}, s23\ns_add_u32 {S3}, {S3}, {512*1024}')
    su(f's_cmp_lt_u32 {S_U}, 112\ns_cselect_b32 {S3}, {S3}, {IDLE}')
    su(f's_mov_b32 {SL1}, 16384\ns_mov_b32 {SA1}, 32\ns_mov_b32 {SA2}, 2016')
    su(f's_lshl_b32 {SFB}, s2, 2\ns_add_u32 {SFB}, {SFB}, {WS_PFLAG}')
    su(f's_cmp_eq_u32 {S_WAVE}, 0\ns_cselect_b32 {SFB}, {SFB}, {IDLE}\ns_mov_b32 s21, {WS_PFLAG}')
    vu = Prog()
    vu(f'v_lshrrev_b32 {vRow}, 2, {lane}\nv_and_b32 {vCh}, 3, {lane}\nv_lshrrev_b32 {vC1}, 1, {vCh}\nv_lshlrev_b32 {vCh}, 4, {vCh}')
    vu(f'v_and_b32 {vB0}, 1, {lane}\nv_lshlrev_b32 {vB0}, 3, {vB0}\nv_lshl_add_u32 {vB0}, {vRow}, 6, {vB0}\nv_add_u32 {vB0}, {SMB}, {vB0}')
    vu(f'v_xor_b32 {vB0}, 4096, {vB0}')
    vu(f'v_mov_b32 {vR}, {vB0}\nv_lshl_add_u32 {vD}, {vRow}, 10, {vCh}\nv_mov_b32 {vTag}, {S_TAG}\nv_min_u32 {vOne}, 1, {lane}\nv_lshlrev_b32 {vOne}, 30, {vOne}')
    tail_setup(r, vu)
    body = []; tails = None
    for idx, j4 in enumerate((3, 0, 1, 2)):
        ex = {}
        srdx = S_PA if idx < 2 else S_PB
        x33 = [[f's_add_u32 m0, {SMB}, {1024*idx}', f'buffer_store_dwordx4 {STG}, {r.ba[0]}, {S_WS}, {SS} offen sc1'],
               [f'buffer_load_dwordx4 {vD}, {srdx}, {SL1 if idx & 1 else 0} offen lds']]
        x97 = [[f'ds_read_b64_tr_b16 {STG.sub(0,2)}, {vR}'], [f'ds_read_b64_tr_b16 {STG.sub(2,2)}, {vR} offset:1024']]
        sal = []
        over = None
        if idx == 0:
            sal = [f's_mov_b32 {SS}, {S0}', f's_mov_b32 {S0}, {S1}', f's_mov_b32 {S1}, {S2}', f's_mov_b32 {S2}, {S3}', f's_mov_b32 {S3}, {IDLE}',
                   f's_cmp_eq_u32 {S_CNT}, 6', f's_cselect_b32 {SD}, 7, 16', f's_lshl_b32 {SD}, {SD}, 10',
                   f's_cmp_eq_u32 {S_CNT}, 3', f's_cselect_b32 {SF}, {SFB}, {IDLE}', f's_cmp_eq_u32 {S_CNT}, 2', f's_cselect_b32 s50, s21, {IDLE}']
            x97[0].append(f'v_xor_b32 {vB0}, 4096, {vB0}')
            x97[1].append(f'v_add_u32 {vR}, {SA1}, {vR}')
        else:
            sal = [f's_add_u32 {SS}, {SS}, {SD}']
        if idx == 1:
            x97[1].append(f'v_add_u32 {vR}, {SA2}, {vR}')
            over = {9: [f'buffer_store_dword {vTag}, {vOne}, {S_WS}, {SF} offen sc1']}
        if idx == 2:
            x97[1].append(f'v_add_u32 {vR}, {SA1}, {vR}')
            over = {9: [f'buffer_load_dwordx4 {VF}, {r.ba[0]}, {S_WS}, s50 offen sc1']}
        if idx == 3:
            sal += [f's_mov_b64 s[40:41], {N1A}', f's_mov_b64 s[60:61], {N1B}', f's_mov_b32 s42, {N1R}', f's_mov_b32 s62, {N1R}',
                    f's_mov_b64 {N1A}, {N2A}', f's_mov_b64 {N1B}, {N2B}', f's_mov_b32 {N1R}, {N2R}', f's_mov_b32 {N2R}, 0',
                    f's_xor_b32 {SMB}, {SMB}, 4096',
                    f's_cmp_eq_u32 {S_CNT}, 7', 's_cselect_b32 s51, 7, 2', 's_lshl_b32 s51, s51, 9', f's_lshl_b32 {SL1}, s51, 4',
                    f's_cmp_eq_u32 {S_CNT}, 6', f's_cselect_b32 {SX}, 2048, 16', f's_cselect_b32 {SA1}, 16, 32', f's_cselect_b32 {SA2}, 16, 2016']
            x97[0].append(f'v_mad_u32_u24 {vD}, {vRow}, s51, {vCh}')
            x97[1].append(f'v_mad_u32_u24 {vR}, {vC1}, {SX}, {vB0}')
            ex.update({120: [f's_sub_u32 {S_CNT}, {S_CNT}, 1'], 122: [f's_cmp_lg_u32 {S_CNT}, 1']})
        for k, x in enumerate(sal): ex[36 + 2*k] = [x]
        vmn = (10, 13, 13, 12)[idx]
        if OPT.get('itst'):
            ex[4] = ['s_memtime s[96:97]']
            ex[6] = [f's_lshl_b32 s98, {S_CNT}, 2', f's_sub_u32 s98, {32 + idx}, s98']
            ex[16] = [f'v_cmp_eq_u32 vcc, s98, v0', f'v_mov_b32 v250, s96', 's_nop 1', f'v_cndmask_b32 v8, v8, v250, vcc']
        o, tails = iteration(r, j4, ex, x33, x97, vmn, over)
        body += o
    k_ = p4.lines.index('@MA2S'); p4.lines[k_:k_+1] = [x for x in ma2.lines if x.startswith('s_')] + ['s_mov_b32 s4, s86', 's_mov_b32 s5, s87', f's_mov_b32 s6, {512*6144}', 's_mov_b32 s7, 0x20000']
    RED2 = KBASE + 2 * 16384
    NU = r.P.sub(0, 8); NAc = r.P.sub(8, 8)
    p4('s_lshr_b32 s29, s34, 4\ns_cmp_eq_u32 s29, 2\ns_cselect_b32 s32, 1.0, 0\ns_cmp_eq_u32 s35, 0\ns_cselect_b32 s32, s32, 0')
    p4(f's_lshl_b32 s34, s34, 7\ns_lshl_b32 s35, s35, 13\ns_add_u32 s34, s34, s35\ns_add_u32 s34, s34, {WS_MODP}')
    p4(f's_cmp_eq_u32 {S_WAVE}, 0\ns_cselect_b32 s34, s34, {IDLE}')
    p4.extend(su)
    p4('s_waitcnt vmcnt(0)')
    mod_compute(p4, False, NW, NC, NU, NAc, t[0], RED2)
    p4('s_waitcnt lgkmcnt(0)')
    p4('s_barrier')
    mod_gather(p4, NU, t[0], RED2)
    kr = k_reads(r, 0)
    for d in kr[:8]: p4(d)
    p4(f'v_and_b32 {NAc[0]}, 3, {lane}\nv_bfe_u32 {NAc[1]}, {lane}, 2, 2\nv_lshl_add_u32 {NAc[0]}, {NAc[1]}, 3, {NAc[0]}\nv_bfe_u32 {NAc[1]}, {lane}, 4, 1\nv_lshl_add_u32 {NAc[0]}, {NAc[1]}, 2, {NAc[0]}')
    p4(f'v_lshlrev_b32 {NAc[0]}, 2, {NAc[0]}\nv_lshrrev_b32 {NAc[1]}, 5, {lane}\nv_lshl_add_u32 {NAc[0]}, {NAc[1]}, 30, {NAc[0]}')
    p4('s_waitcnt lgkmcnt(8)')
    p4(f'v_add_f32 {NU[0]}, {NU[0]}, {NU[1]}\nv_add_f32 {NU[2]}, {NU[2]}, {NU[3]}\nv_add_f32 {NU[0]}, {NU[0]}, {NU[2]}\nv_add_f32 {NU[0]}, s32, {NU[0]}')
    p4(f'buffer_store_dword {NU[0]}, {NAc[0]}, {S_WS}, s34 offen sc1')
    p4('s_barrier')
    for d in kr[8:15]: p4(d)
    vul = list(vu.lines)
    for x in vul[:16]: p4(x)
    vul = vul[16:]
    p4('s_waitcnt lgkmcnt(11)')
    for qb in range(4):
        for ds in range(4):
            c = '0' if ds == 0 else r.s(qb, 0)
            p4(f'{MF} {r.s(qb, 0)}, {r.kf(0, ds)}, {r.q(qb, ds)}, {c}')
            for x in vul[:2]: p4(x)
            vul = vul[2:]
    for x in vul: p4(x)
    for qb in range(4):
        s = r.s(qb, 0); x = r.nm(qb)
        if qb == 3: p4('s_nop 1')
        p4(f'v_max3_f32 {x[0]}, {s[0]}, {s[1]}, {s[2]}')
        p4(f'v_max_f32 {x[0]}, {x[0]}, {s[3]}')
    ent = Prog()
    for qb in range(4): x = r.nm(qb); ent(f'v_mov_b32 {x[1]}, {x[0]}')
    for qb in range(4): x = r.nm(qb); ent(f'v_permlane32_swap_b32 {x[0]}, {x[1]}')
    for qb in range(4): x = r.nm(qb); ent(f'v_max_f32 {x[0]}, {x[0]}, {x[1]}')
    for qb in range(4): x = r.nm(qb); ent(f'v_mov_b32 {x[1]}, {x[0]}')
    for qb in range(4): x = r.nm(qb); ent(f'v_permlane16_swap_b32 {x[0]}, {x[1]}')
    for qb in range(4): x = r.nm(qb); ent(f'v_max_f32 {x[0]}, {x[0]}, {x[1]}')
    for qb in range(4):
        x = r.nm(qb)
        for i in (1, 2, 3, 0): ent(f'v_sub_f32 {x[i]}, 0, {x[0]}')
    exp_tail = {x.split()[1].rstrip(',') for x in tails if x.startswith('v_exp')}
    used = set()
    for x in tails:
        for tok in x.replace(',', ' ').split()[1:]: used.add(tok)
    for i in range(32, 64):
        if str(r.S[i]) in used:
            ent(f'v_mov_b32 {r.S[i]}, {"0xff800000" if str(r.S[i]) in exp_tail else "0"}')
    for i in range(16, 32): ent(f'v_mov_b32 {r.P[i]}, 0')
    for i in range(8): ent(f'v_mov_b32 {r.lm[i]}, 0')
    for i in range(4): ent(f'v_mov_b32 {r.la[i]}, 0')
    for i in range(4): ent(f'v_mov_b32 {r.ones[i]}, 0x3f803f80')
    ent(f's_mov_b32 {S_CNT}, 8')
    ent('s_waitcnt lgkmcnt(0)')
    xs(ent, 'ent')
    chk = [f'v_xor_b32 {t[0]}, {vTag}, {VF[0]}'] + [f'v_bitop3_b32 {t[0]}, {t[0]}, {VF[i]}, {vTag} bitop3:0xf6' for i in (1, 2, 3)] + [f'v_cmp_ne_u32 vcc, 0, {t[0]}']
    h = Prog()
    h('s_mov_b32 s28, 0')
    h('L_pchk:')
    h(f'buffer_load_dwordx4 {VF}, {r.ba[0]}, {S_WS}, s21 offen sc1')
    h('s_waitcnt vmcnt(0)')
    h.extend(chk)
    h('s_add_u32 s28, s28, 1\ns_cmp_gt_u32 s28, 0x40000\ns_cbranch_scc1 L_back')
    h('s_cbranch_vccnz L_pchk')
    share = WF_G // (128 // NG)
    pfs = OPT.get('pfs', 6)
    span = 64 << pfs
    npf = (share + span - 1) // span
    XR = R('v', 216, 8)
    salc = [f's_mul_i32 s23, s22, {WF_G}', f's_add_u32 s23, s23, {WS_WF}',
            f's_and_b32 s29, {S_U}, {128 // NG - 1}', f's_mul_i32 s29, s29, {share}', 's_add_u32 s74, s23, s29',
            f's_mov_b32 s75, {WS_EPOCH}', 's_cmp_eq_u32 s2, 0', f's_cselect_b32 s75, s75, {IDLE}',
            f's_lshl_b32 s76, {S_WAVE}, 17', 's_add_u32 s76, s76, s23']
    salc2 = ['s_mov_b32 s60, s88', 's_mov_b32 s61, s89', f's_mov_b32 s62, L_codeend-{name}-128', f's_lshr_b32 s77, {S_HW}, 3', 's_lshl_b32 s77, s77, 12',
             f's_lshl_b32 s78, {S_WAVE}, 11', f's_add_u32 s78, s78, {WS_MODP}', f's_lshl_b32 s79, {S_WAVE}, 13', f's_add_u32 s79, s79, {XBASE}']
    xq = []
    pfd = [STG[0], STG[1], STG[2], STG[3], vB0]
    for i in range(npf):
        post = [f's_add_u32 s74, s74, {span if i < npf - 2 else share - (npf - 1) * span}'] if i < npf - 1 else []
        xq.append([f'buffer_load_dword {pfd[i]}, {vD}, {S_WS}, s74 offen sc1'] + post)
    xq.append([f'buffer_load_dword {vC1}, {vR}, s[60:63], s77 offen'])
    xq.append([f'buffer_store_dword {vTag}, {vOne}, {S_WS}, s75 offen sc1'])
    for q in range(4):
        for i in range(2):
            xq.append([f's_add_u32 m0, s79, {2048*q}', 's_nop 0', f'buffer_load_dwordx4 {r.ba[0]}, {S_WS}, s78 offen offset:{1024*i} sc1 lds'] + (['s_add_u32 s78, s78, 8192'] if i else []))
    xl = [f'buffer_load_dwordx2 {XR.sub(4*i+2*u, 2)}, v240, {S_XS}, s39 offen offset:{128*i + 32*u}' for i in range(2) for u in range(2)]
    bodyc = []
    for idx, j4 in enumerate((3, 0, 1, 2)):
        ex, over, dm_ = {}, {}, None
        if idx == 0:
            over = {5: chk, 9: [f'v_lshlrev_b32 {vD}, {pfs}, {lane}', f'v_and_b32 {vR}, 15, {lane}', f'v_lshlrev_b32 {vR}, 6, {vR}', f'v_lshl_add_u32 {vR}, {wv}, 10, {vR}']}
            ex[8] = ['s_cbranch_vccnz L_hook', 'L_back:']
            for k, g in zip(range(len(salc)), (4, 6, 10, 12, 16, 20, 22, 24, 26, 28)): ex[g] = [salc[k]]
            for k, x in enumerate(salc2): ex[36 + 2*k] = [x]
        if idx >= 2:
            dm_ = []
            for half in range(2):
                for pp in range(4):
                    pre = [f's_add_u32 s29, s76, {(idx-2)*4096 + half*16384}', f's_add_u32 m0, {S_WLDS}, {(VBASE if half else KBASE) + (idx-2)*16384}'] if pp == 0 else []
                    dm_.append((pre, f'buffer_load_dwordx4 {r.ba[0]}, {S_WS}, s29 offen offset:{1024*pp} sc1 lds'))
        pop = lambda: xq.pop(0) if xq else []
        x33 = [pop(), pop()]
        x97 = [pop(), pop()]
        if idx == 3:
            for k, x in enumerate(xl): over[101 + 4*k] = [x]
        if OPT.get('itst'):
            ex[4] = ex.get(4, []) + ['s_memtime s[96:97]']
            ex[18] = [f'v_writelane_b32 v8, s96, {28 + idx}']
        o, tl2 = iteration(r, j4, ex, x33, x97, 'X' if idx < 3 else None, over, dm_, idx == 3)
        assert tl2 == tails
        bodyc += o
    assert not xq
    full = body + bodyc
    iskv = lambda x: x.startswith('buffer_load') and (str(S_KSRD) in x or str(S_VSRD) in x)
    bars = [i for i, x in enumerate(full) if x == 's_barrier']
    for i, x in enumerate(full):
        if x == 's_waitcnt vmcnt(X)':
            pb = max(b for b in bars if b < i)
            lastkv = max(k for k in range(pb) if iskv(full[k]))
            full[i] = f's_waitcnt vmcnt({sum(1 for k in range(lastkv + 1, i) if full[k].startswith("buffer_"))})'
    bodyc = full[len(body):]
    epi = Prog()
    stampit(epi, 3)
    for x in tails:
        epi(x)
        if x.startswith('v_exp'): epi('s_nop 0')
    inv = [t[0], t[1], t[2], t[3]]
    va = []
    for pair in range(2): va.append(f'v_add_f32 {inv[2*pair]}, {r.la[2*pair]}, {r.la[2*pair+1]}')
    for pair in range(2): va.append(f'v_mov_b32 {t[4+pair]}, {inv[2*pair]}')
    va.append('s_nop 0')
    for pair in range(2): va.append(f'v_permlane32_swap_b32 {inv[2*pair]}, {t[4+pair]}')
    for pair in range(2): va.append(f'v_add_f32 {inv[2*pair]}, {inv[2*pair]}, {t[4+pair]}')
    for pair in range(2): va.append(f'v_mov_b32 {t[4+pair]}, {inv[2*pair]}')
    va.append('s_nop 0')
    for pair in range(2): va.append(f'v_permlane16_swap_b32 {inv[2*pair]}, {t[4+pair]}')
    for pair in range(2): va.append(f'v_add_f32 {inv[2*pair]}, {inv[2*pair]}, {t[4+pair]}')
    va.append(f'v_add_f32 {t[4]}, {inv[0]}, {inv[2]}')
    va.append(f'v_add_f32 {t[5]}, {r.lm[0]}, {r.lm[4]}')
    va.append(f'v_add_f32 {t[4]}, {t[4]}, {t[5]}')
    va.append(f'v_cmp_ngt_f32 vcc, 0x4e800000, {t[4]}')
    va.append(f'v_rcp_f32 {inv[0]}, {inv[0]}')
    va.append(f'v_rcp_f32 {inv[1]}, {r.lm[0]}')
    va.append(f's_cmp_lg_u64 vcc, 0')
    va.append(f's_cselect_b32 s28, 1, 0')
    va.append(f'v_and_b32 {t[4]}, 3, {lane}')
    va.append(f'v_lshlrev_b32 {t[4]}, 13, {t[4]}')
    va.append(f'v_lshl_add_u32 {t[4]}, {wv}, 2, {t[4]}')
    va.append(f'v_mov_b32 {t[5]}, s28')
    va.append(f'ds_write_b32 {t[4]}, {t[5]} offset:{KBASE + 2*16384}')
    va.append(f'v_rcp_f32 {inv[2]}, {inv[2]}')
    va.append(f'v_rcp_f32 {inv[3]}, {r.lm[4]}')
    va.append(f'v_lshlrev_b32 {t[4]}, 13, {wv}')
    va.append(f'v_add_u32 {wr[1]}, {S_WLDS}, {wr[0]}')
    va.append(f'v_add_u32 {wr2}, {VBASE + 2*16384}, {wr[1]}')
    va.append('s_waitcnt lgkmcnt(0)')
    va.append('s_barrier')
    FL = r.B1.sub(0, 4)
    va.append(f'ds_read_b128 {FL}, {t[4]} offset:{KBASE + 2*16384}')
    def norm(qb, s):
        T8 = r.S.sub(8 * ((qb * 4 + s) % 4), 8); D = r.S.sub(32 + 4 * ((qb * 4 + s) % 8), 4)
        o = []
        for i in range(8): o.append(f'v_accvgpr_read_b32 {T8[i]}, {r.O[32*qb + 8*s + i]}')
        if (qb, s) == (0, 0):
            for i in range(8): o.append(f'v_mul_f32 {T8[i]}, {T8[i]}, {inv[qb]}')
        else:
            ip = t.sub(qb & 2, 2); hi = qb & 1
            for i in range(4): o.append(f'v_pk_mul_f32 {T8.sub(2*i,2)}, {T8.sub(2*i,2)}, {ip} op_sel:[0,{hi}] op_sel_hi:[1,{hi}]')
        for i in range(4): o.append(f'v_cvt_pk_bf16_f32 {D[i]}, {T8[2*i]}, {T8[2*i+1]}')
        if s < 2: o.append(f'ds_write_b128 {wr[1]}, {D} offset:{KBASE + 2*16384 + 4096*s + 1024*qb}')
        else: o.append(f'ds_write_b128 {wr2}, {D} offset:{4096*(s-2) + 1024*qb}')
        return o
    va += norm(0, 0)
    va.append('s_waitcnt lgkmcnt(1)')
    va.append(f'v_or3_b32 {FL[0]}, {FL[0]}, {FL[1]}, {FL[2]}')
    va.append(f'v_or_b32 {FL[0]}, {FL[0]}, {FL[3]}')
    va.append('s_nop 0')
    va.append(f'v_readfirstlane_b32 s28, {FL[0]}')
    mf = [msum(r, 1, 0), msum(r, 1, 1)] + pv_mfmas(r, 1)
    epi('s_nop 0')
    for n, m in enumerate(mf):
        epi(m)
        k = 0
        while va and k < 2:
            x = va.pop(0); epi(x)
            k += 2 if x.startswith(('v_rcp', 'ds_')) else (0 if x.startswith('s_') else 1)
    for x in va: epi(x)
    epi('s_nop 1')
    epi(f's_andn2_b32 s28, s28, {S_PASS}')
    epi('s_cbranch_scc1 L_fallback')
    lastpre = max(k for k, x in enumerate(bodyc) if 's29 offen' in x and x.endswith('lds'))
    e = Em(vq=['pre'] + ['old'] * sum(1 for x in bodyc[lastpre + 1:] if x.startswith('buffer_')))
    st = AStream(a_regs(), r.ba[0])
    e(f's_mov_b32 {S_BW}, s76')
    e(f's_mul_i32 {S_BG}, {S_WAVE}, {7*16*1024}\ns_add_u32 {S_BG}, {S_BG}, s23\ns_add_u32 {S_BG}, {S_BG}, {512*1024}')
    e(f's_mul_i32 {S_BD}, {S_WAVE}, {56*1024}\ns_add_u32 {S_BD}, {S_BD}, s23\ns_add_u32 {S_BD}, {S_BD}, {960*1024}')
    st.skip(16)
    LA = R('v', 204)
    e(f'v_add_u32 {LA}, {VBASE}, {wr[0]}')
    e(f'v_add_u32 {r.ba[1]}, {VBASE + 2*16384}, {r.ba[0]}')
    e.wait(vm=['pre'])
    slot = lambda i: (LA if i & 4 else wr[0], (i >> 3) * 16384 + (i & 3) * 1024)
    for i in range(16):
        e(f'ds_read_b128 {st.regs[i]}, {slot(i)[0]} offset:{slot(i)[1]}')
        e.seen.add(('A', i))
        if i == 7: e('s_waitcnt lgkmcnt(4)')
    lg = [int(x) for x in str(OPT.get('lg', '44_64_84_104')).split('_') if x]
    assert not lg or lg[0] <= 56
    ld = []
    for k, g0 in enumerate(lg):
        b_, off = a_off(g0)
        for j in range(4):
            st.lds[g0 + j] = slot(4*k + j)
            pre = [f's_add_u32 s29, {b_}, {off}', f's_add_u32 m0, {S_WLDS}, {(VBASE if k & 1 else KBASE) + (k >> 1)*16384}', 's_nop 0'] if j == 0 else []
            ld.append((pre, f'buffer_load_dwordx4 {r.ba[0]}, {S_WS}, s29 offen offset:{1024*j} sc1 lds', ('L', g0 + j)))
    first = True
    for qb in range(4):
        for s in range(4):
            nn = norm(qb, s) if (qb, s) != (0, 0) else []
            for half in range(2):
                if st.n < 32: st.issue(e)
                elif ld:
                    if first: e('s_waitcnt lgkmcnt(6)'); first = False
                    pre, ins, tag = ld.pop(0)
                    for x in pre: e(x)
                    e.vm(ins, tag)
                for x in (nn[8:] if half else nn[:8]): e(x)
    assert not ld
    e(f's_lshl_b32 s28, s22, 21\ns_lshl_b32 s29, s3, 16\ns_add_u32 s28, s28, s29\ns_add_u32 s28, s28, {S_WLDS}\ns_add_u32 s28, s28, {WS_PART}')
    e('s_lshr_b32 s29, s22, 1\ns_lshl_b32 s29, s29, 14\ns_add_u32 s32, s28, s29')
    for i in range(1, 4): e(f's_xor_b32 s{32+i}, s32, {16384*i}')
    e('s_waitcnt lgkmcnt(0)')
    e('s_barrier')
    stampit(e, 4)
    tail(r, e, st, stampit)
    if stamp:
        e('s_waitcnt vmcnt(0)')
        stampit(e, 12)
        e(f's_lshl_b32 s30, {S_HW}, 10\ns_lshl_b32 s29, {S_WAVE}, 8\ns_add_u32 s30, s30, s29\ns_add_u32 s30, s30, {WS_STAMP}')
        e(f'v_lshlrev_b32 {t[0]}, 2, v0')
        e(f'buffer_store_dword {STV}, {t[0]}, {S_WS}, s30 offen')
    if OPT.get('spin'):
        a_, b_ = OPT['spin'].split('_')
        e(f's_cmp_lg_u32 {S_HW}, {OPT.get("spinwg", 100)}\ns_cbranch_scc1 L_end')
        e(f'v_readlane_b32 s4, {STV}, {33+2*int(a_)}\nv_readlane_b32 s5, {STV}, {33+2*int(b_)}\nv_readlane_b32 s6, {STV}, 33\ns_nop 3')
        e(f's_sub_u32 s28, s5, s4\ns_mul_i32 s28, s28, {OPT.get("spinx", 1)}\ns_add_u32 s28, s28, 15000\ns_add_u32 s28, s28, s6')
        e('L_spin:\ns_memrealtime s[96:97]\ns_waitcnt lgkmcnt(0)\ns_sub_u32 s29, s96, s28\ns_cmp_lt_i32 s29, 0\ns_cbranch_scc1 L_spin')
    epi.extend(e.out)
    fb = Prog()
    fb('s_waitcnt vmcnt(0) lgkmcnt(0)')
    fb('s_barrier')
    set_kv_srd(fb)
    setup_dma_kv(fb, r, lane, wv)
    fb(f's_mov_b64 s[60:61], s[40:41]\ns_mov_b32 s62, 0')
    for x in (SS, S0, S1, S2): fb(f's_mov_b32 {x}, {IDLE}')
    fb(f's_mov_b32 {SD}, 0\ns_mov_b32 {SL1}, 0')
    fb(f'v_mov_b32 {vB0}, {XBASE}\nv_mov_b32 {vR}, {XBASE}\nv_mov_b32 {vC1}, 0')
    for qb in range(4): fb(f'v_mov_b32 {r.nm(qb)[0]}, 0xff800000')
    fb(f's_mov_b32 {S_CNT}, 32')
    fl = Prog()
    for pre, ins in dma_tile(r, 0)[:4]:
        for x in pre: fl(x); fl('s_nop 0')
        fl(ins)
    fl(f's_add_u32 {S_SOFF}, {S_SOFF}, {S_STEP}')
    fl('s_waitcnt vmcnt(0)')
    fl('s_barrier')
    for d in kr[:8]: fl(d)
    fl('s_waitcnt lgkmcnt(0)')
    for d in kr[8:]: fl(d)
    fl('s_waitcnt lgkmcnt(0)')
    fl('s_barrier')
    for kb in range(4):
        for qb in range(4):
            for ds in range(4):
                c = '0' if ds == 0 else r.s(qb, kb)
                fl(f'{MF} {r.s(qb, kb)}, {r.kf(kb, ds)}, {r.q(qb, ds)}, {c}')
    fl('s_nop 7')
    for kb in range(4):
        for qb in range(4):
            s = r.s(qb, kb); x = r.nm(qb)[0]
            fl(f'v_max3_f32 {x}, {x}, {s[0]}, {s[1]}')
            fl(f'v_max3_f32 {x}, {x}, {s[2]}, {s[3]}')
    fl(f's_sub_u32 {S_CNT}, {S_CNT}, 1')
    fl(f's_cmp_lg_u32 {S_CNT}, 0')
    fe = Prog()
    fe(f's_mov_b32 {S_SOFF}, 0\ns_mov_b32 {S_PASS}, 1')
    for tt in range(2):
        for pre, ins in dma_tile(r, tt):
            for x in pre: fe(x); fe('s_nop 0')
            fe(ins)
        fe(f's_add_u32 {S_SOFF}, {S_SOFF}, {S_STEP}')
    fe.extend(zero_ov())
    fe('s_waitcnt vmcnt(8)')
    fe('s_barrier')
    for d in kr[:15]: fe(d)
    def with_hook(b, blk):
        i = b.index('L_back:')
        return b[:i] + blk.lines + ['s_branch L_back'] + b[i:]
    br = ['s_cbranch_scc1 L_loop']
    bp = [f's_cmp_ge_u32 {S_HW}, 192', 's_cbranch_scc1 x']
    rest = p3.lines + pl.lines + pl2.lines + pl.lines + p4.lines + ent.lines + body + br
    check_trace(pro.lines + p2.lines + pm2.lines + rest + body + br + bodyc + epi.lines, 'main')
    check_trace(body + br + with_hook(bodyc, h), 'hook')
    check_trace(pro.lines + p2.lines + pm2.lines + p3.lines + pl.lines + p4.lines + ent.lines + body, 'nonproducer')
    i = epi.lines.index('s_cbranch_scc1 L_fallback')
    check_trace(bodyc + epi.lines[:i+1] + fb.lines + fl.lines + br + fl.lines + br + fe.lines + ['s_branch x'] + ent.lines + body, 'fallback')
    p = Prog()
    p(f'.globl {name}\n.p2align 8\n.type {name},@function\n{name}:')
    p.extend(pro)
    p.extend(p2)
    p.extend(pm2)
    p.extend(p3)
    p('L_gpoll:')
    p.extend(pl); p.extend(pl2)
    p('L_gok:')
    p.extend(p4)
    p('L_entry:')
    p.extend(ent)
    p('.p2align 6\nL_loop:')
    p.extend(body)
    p('s_cbranch_scc1 L_loop')
    p.extend(bodyc)
    p('L_epi:')
    p.extend(epi)
    p('L_end:\ns_endpgm')
    p('L_hook:')
    p.extend(h)
    p('s_branch L_back')
    p('L_fallback:')
    p.extend(fb)
    p('L_fbloop:')
    p.extend(fl)
    p('s_cbranch_scc1 L_fbloop')
    p.extend(fe)
    p('s_branch L_entry')
    p('L_codeend:')
    return p, kernel_footer(name, 256, 256, 100)
```

```python
from gen_attn import *
from layout import *
from sched import Em
from gen_small import ln_stats, ln_addr, unpack, f32

S_WS = R('s', 24, 4)
S_AOFF = R('s', 31)
S_TAG = R('s', 45)
S_XS = R('s', 52, 4)
S_OS = R('s', 56, 4)
OPT = dict(ng=2, opace=3.5, gpace=4, dpace=3, pre1=6, pre1b=14, pre2=14, pre2b=18, asc='sc1', pfsc='sc1', nostore=False)
H2B, ACTB, LNB, MODB = 0, 65536, 98304, XBASE
VST0, OWA, ORA = R('v', 245), R('v', 246), R('v', 247)
OWNB = 0
ACTA = [220, 221, 222, 223, 249, 250, 251]

S_BW, S_BG, S_BD = R('s', 64), R('s', 65), R('s', 66)
def a_off(i):
    if i < 128:
        p, kg, tile, k = i >> 5, (i >> 3) & 3, (i >> 2) & 1, i & 3
        return S_BW, ((2 * p + tile) * 16 + 4 * kg + k) * 1024
    if i < 240:
        j = i - 128
        kg, ti, k = j // 28, (j % 28) >> 2, j & 3
        return S_BG, (ti * 16 + 4 * kg + k) * 1024
    return S_BD, (i - 240) * 1024

class AStream:
    def __init__(self, regs, l16):
        self.regs, self.n, self.l16, self.cur, self.lds = regs, 0, l16, None, {}
    def more(self): return self.n < len(self.regs)
    def skip(self, k):
        self.n += k
    def is_lds(self): return self.n in self.lds
    def issue(self, e):
        i = self.n
        if i in self.lds:
            e.wait(vm=[('L', i)])
            e.ds(f'ds_read_b128 {self.regs[i]}, {self.lds[i][0]} offset:{self.lds[i][1]}', ('A', i))
            self.n += 1
            return
        b, off = a_off(i)
        if self.cur is None or self.cur[0] != str(b) or not (0 <= off - self.cur[1] < 4096):
            e(f's_add_u32 {S_AOFF}, {b}, {off}')
            self.cur = (str(b), off)
        e.vm(f'buffer_load_dwordx4 {self.regs[i]}, {self.l16}, {S_WS}, {S_AOFF} offen offset:{off - self.cur[1]} sc1', ('A', i))
        self.n += 1

def a_regs():
    wo_ring = [R('v', 12 + 4 * i, 4) for i in range(16)] + [R('v', 140 + 4 * i, 4) for i in range(16)]
    ffn_ring = [R('a', 4 * i, 4) for i in range(32)] + [R('v', 140 + 4 * i, 4) for i in range(20)]
    return [wo_ring[i % 32] for i in range(128)] + [ffn_ring[i % 52] for i in range(168)]

S_INB = 's[90:91]'
SP = 80
def send_flag(e, seam, lab, fa, tmp, s_grp):
    e('s_barrier')
    if OPT.get('sx') == seam + 1: OPT['_st'](e, 15)
    e(f's_cmp_lg_u32 {S_WAVE}, 0')
    e(f's_cbranch_scc1 L_nf{lab}')
    e(f'buffer_store_dword {tmp[0]}, {fa}, {S_WS}, {s_grp} offen offset:{128 * seam} sc1')
    e(f'L_nf{lab}:')

def signal_and_poll(e, seam, lab, fa, pa, tmp, s_grp, s_own, pre=None, mid=None):
    if pre: pre(e)
    e(f'v_mov_b32 {tmp[0]}, {S_TAG}')
    if OPT.get('sx') == seam + 1: OPT['_st'](e, 14)
    e.wait(vm=['st'])
    send_flag(e, seam, lab, fa, tmp, s_grp)
    if mid:
        e('s_barrier')
        mid(e)
    e('s_mov_b32 s28, 0')
    e(f'L_poll{lab}:')
    e(f's_load_dwordx8 s[{SP}:{SP+7}], {S_INB}, {128 * seam} glc')
    e('s_add_u32 s28, s28, 1')
    e('s_cmp_gt_u32 s28, 0x80000')
    e.wait_all(vm=False, ds=True)
    e(f's_cbranch_scc1 L_pout{lab}')
    for g in range(1, 8):
        e(f's_cmp_lg_u32 s{SP+g}, {S_TAG}')
        e(f's_cbranch_scc1 L_poll{lab}')
    e(f'L_pout{lab}:')

class Pacer:
    def __init__(self, pace): self.pace, self.t = pace, -1e9
    def ok(self, n): return n >= self.t + self.pace
    def use(self, n): self.t = max(self.t + self.pace, n - 0.99)

def npass_gemm(e, bt, st, abase, nks, B, accb, D, s_st, l16, group, bread=None, late=None, a_ahead=None, pace=5, lead=20):
    ng = nks // group
    seq = []
    for p in range(4):
        for kg in range(ng):
            for tile in range(2):
                for rb in range(4):
                    for k in range(group):
                        ai = abase + p * 2 * nks + kg * 2 * group + tile * group + k
                        seq.append((p, kg, tile, rb, k, ai))
    acc = lambda p, tile, rb: accb.sub(32 * (p & 1) + 16 * tile + 4 * rb, 4)
    last_use, first_use = {}, {}
    for n, x in enumerate(seq):
        last_use[x[5]] = n; first_use.setdefault(x[5], n)
    pc = Pacer(pace)
    def fin(p):
        o = []
        for rb in range(4):
            d = D.sub(4 * rb, 4)
            for k in range(4):
                a = acc(p, k >> 1, rb)
                o.append(f'v_cvt_pk_bf16_f32 {d[k]}, {a[2*(k&1)]}, {a[2*(k&1)+1]}')
            o.append(f'buffer_store_dwordx4 {d}, {VST0 if rb == 0 else l16}, {S_WS}, {s_st[rb]} offen offset:{1024 * p} sc1')
            if rb == 0: o.append(f'ds_write_b128 {OWA}, {d} offset:{1024 * p}')
        return o
    finq = []
    bread = list(bread or [])
    per = 8 * nks
    for n, (p, kg, tile, rb, k, ai) in enumerate(seq):
        if rb == 0 and k == 0:
            e.wait(vm=[('A', ai + j) for j in range(group)], ds=[('A', ai + j) for j in range(group)])
        if p == 0 and tile == 0:
            e.wait(ds=[(bt, kg * group + k, rb)])
        c = '0' if (kg == 0 and k == 0) else acc(p, tile, rb)
        e(f'{MF} {acc(p, tile, rb)}, {st.regs[ai]}, {B(kg * group + k, rb)}, {c}')
        if p > 0 and n % per == 4: finq += fin(p - 1)
        done = False
        if st.more() and st.is_lds() and a_ahead(st.n, n, last_use):
            st.issue(e); done = True
        elif pc.ok(n):
            if finq and finq[0].startswith('buffer'):
                e.vm(finq.pop(0), 'st'); done = True
            elif st.more() and a_ahead(st.n, n, last_use):
                assert first_use.get(st.n, 1 << 30) - n >= lead, (st.n, n)
                st.issue(e); done = True
            elif late:
                f = late(n)
                if f: f(e); done = True
            if done: pc.use(n)
        if not done and bread:
            ins, tag = bread.pop(0); e.ds(ins, tag); done = True
        if not done:
            kk = 0
            while finq and kk < 2 and not finq[0].startswith('buffer'):
                if finq[0].startswith('ds_'):
                    if kk: break
                    e.ds(finq.pop(0), 'ow'); kk = 2
                else:
                    e(finq.pop(0)); kk += 1
    assert not finq and not bread
    e('s_nop 4')
    for x in fin(3):
        if x.startswith('buffer'): e.vm(x, 'st')
        elif x.startswith('ds_'): e.ds(x, 'ow')
        else: e(x)

def own_read(e, PO):
    for i in range(2): e.ds(f'ds_read_b128 {PO.sub(4*i,4)}, {ORA} offset:{2048*i}', 'po')
def own_unpack(e, PO, A):
    e.wait(ds=['po'])
    for k in range(8):
        e(f'v_lshlrev_b32 {A[2*k]}, 16, {PO[k]}')
        e(f'v_and_b32 {A[2*k+1]}, 0xffff0000, {PO[k]}')

def gather_sum(e, PT, A, fo, s_off):
    for g in range(1, 8):
        e(f's_add_u32 s29, s22, {g}\ns_and_b32 s29, s29, 7\ns_lshl_b32 s29, s29, 21\ns_add_u32 s29, s29, {s_off}')
        for i in range(2):
            e.vm(f'buffer_load_dwordx4 {PT.sub(8*g+4*i,4)}, {fo}, {S_WS}, s29 offen offset:{2048*i} sc1', ('pt', g))
    e('s_mov_b32 s28, 0x00003f80\ns_mov_b32 s29, 0x3f800000')
    for g in range(1, 8):
        e.wait(vm=[('pt', g)])
        for k in range(8):
            e(f'v_dot2_f32_bf16 {A[2*k]}, {PT[8*g+k]}, s28, {A[2*k]}')
            e(f'v_dot2_f32_bf16 {A[2*k+1]}, {PT[8*g+k]}, s29, {A[2*k+1]}')

def reduce_seam(e, seam, lab, fa, pa, tmp, s_grp, s_own, PT, A, fo, base, s_row, drain=None, postbar=None, npre=None, stamp=None):
    DONE, RDY, NEW = 's67', 's68', 's69'
    def loads(g, so):
        return [f'buffer_load_dwordx4 {PT.sub(8*g+4*i,4)}, {fo}, {S_WS}, {so} offen offset:{2048*i} sc1' for i in range(2)]
    e(f's_add_u32 s30, {s_row}, {base}')
    for g in range(1, 8): e(f's_add_u32 s29, s22, {g}\ns_and_b32 s29, s29, 7\ns_lshl_b32 s29, s29, 21\ns_add_u32 s{72+g}, s29, s30')
    e(f's_mov_b32 {DONE}, 1')
    own_read(e, PT)
    if drain: drain(e)
    own_unpack(e, PT, A)
    e(f'v_mov_b32 {tmp[0]}, {S_TAG}')
    if OPT.get('sx') == 1: OPT['_st'](e, 14)
    e.wait(vm=['st'])
    send_flag(e, seam, lab, fa, tmp, s_grp)
    if postbar: postbar(e)
    e('s_mov_b32 s28, 0')
    e(f'L_rr{lab}:')
    e(f's_load_dwordx8 s[{SP}:{SP+7}], {S_INB}, {128 * seam} glc')
    e('s_add_u32 s28, s28, 1')
    e('s_cmp_gt_u32 s28, 0x80000')
    e.wait_all(vm=False, ds=True)
    e(f's_cbranch_scc1 L_rd{lab}')
    for g in range(1, 8):
        e(f's_cmp_lg_u32 s{SP+g}, {S_TAG}')
        e(f's_cbranch_scc1 L_rs{lab}{g}')
        e(f's_bitcmp1_b32 {DONE}, {g}')
        e(f's_cbranch_scc1 L_rs{lab}{g}')
        for x in loads(g, f's{72+g}'): e(x)
        e(f's_bitset1_b32 {DONE}, {g}')
        e(f'L_rs{lab}{g}:')
    e(f's_cmp_lg_u32 {DONE}, 0xff')
    e(f's_cbranch_scc1 L_rr{lab}')
    e(f'L_rd{lab}:')
    if stamp: stamp(e)
    e.vq += ['pt'] * 14; e.seen.add('pt')
    if npre: npre(e)
    e('s_mov_b32 s28, 0x00003f80\ns_mov_b32 s29, 0x3f800000')
    e.wait(vm=['pt'])
    for g in range(1, 8):
        for k in range(8):
            e(f'v_dot2_f32_bf16 {A[2*k]}, {PT[8*g+k]}, s28, {A[2*k]}')
            e(f'v_dot2_f32_bf16 {A[2*k+1]}, {PT[8*g+k]}, s29, {A[2*k+1]}')

def tail(r, e, st, stampit):
    lane, wv = R('v', 0), R('v', 1)
    OPT['_st'] = stampit
    t = r.tmp
    l16 = r.ba[0]
    xo, fo, vo, fa, pa8, pa32 = [R('v', 240 + i) for i in range(6)]
    hb, aw0, ab = R('v', 246), R('v', 247), R('v', 248)
    S_GRP, S_OWN, S_ROW = R('s', 36), R('s', 37), R('s', 38)
    Bo = lambda ks, rb: R('a', 16 * ks + 4 * rb, 4)
    br = []
    for ks4 in range(4):
        for rb in range(4):
            for k in range(4):
                ks = 4 * ks4 + k
                ri, off = ofrag_loc(ks)
                br.append((f'ds_read_b128 {Bo(ks, rb)}, {r.ba[ri]} offset:{off + 1024 * rb}', ('Bo', ks, rb)))
    for ins, tag in br[:10]: e.ds(ins, tag)
    PT = R('v', 12, 64); A = R('v', 76, 16); T = R('v', 92, 12); X1 = R('v', 124, 16)
    MP = R('v', 92, 32); XR = R('v', 216, 8); GA = R('v', 140, 16); SC = R('v', 156, 16); SH = R('v', 172, 16)
    def a_ahead(i, n, last_use):
        if i < 128: return i < 32 or last_use[i - 32] <= n
        return False
    def early_poll(seam, at):
        q = [1]
        def late(n):
            if n >= at and q:
                q.pop()
                return lambda e: e.vm(f'buffer_load_dword {t[1]}, {pa8}, {S_WS}, {S_OWN} offen offset:{128 * seam} sc1', 'pl')
            return None
        return late
    npass_gemm(e, 'Bo', st, 0, 16, Bo, R('v', 76, 64), r.B1, [f's{32+i}' for i in range(4)], l16, 4, br[10:], None, a_ahead, pace=OPT['opace'])
    assert st.n == 128
    stampit(e, 5)
    def drain1(e):
        e(f'v_lshl_add_u32 {t[0]}, {wv}, 13, {l16}\nv_add_u32 {t[0]}, {XBASE}, {t[0]}')
        for q in range(8): e(f'ds_read_b128 {MP.sub(4*q,4)}, {t[0]} offset:{1024*q}')
        unpack(e, X1, XR)
        e('s_waitcnt lgkmcnt(0)')
        for i in range(0, 8, 2): e(f'v_pk_add_f32 {MP.sub(i,2)}, {MP.sub(i,2)}, {MP.sub(8+i,2)}\nv_pk_add_f32 {MP.sub(16+i,2)}, {MP.sub(16+i,2)}, {MP.sub(24+i,2)}')
        for i in range(0, 8, 2): e(f'v_pk_add_f32 {MP.sub(i,2)}, {MP.sub(i,2)}, {MP.sub(16+i,2)}')
        for i in range(2): e(f'ds_write_b128 {t[0]}, {MP.sub(4*i,4)} offset:{1024*i}')
        for _ in range(OPT['pre1']): st.issue(e)
        e('s_waitcnt lgkmcnt(0)')
    def post1(e):
        for D_, off in ((GA, 0), (SH, 8192), (SC, 16384)):
            for i in range(2):
                for hh in range(2):
                    e.ds(f'ds_read_b128 {D_.sub(8*i+4*hh,4)}, {vo} offset:{off + 256*i + 16*hh}', 'mv2')
    def npre1(e):
        for _ in range(OPT['pre1b']): st.issue(e)
    reduce_seam(e, 0, 'a', fa, pa8, t, S_GRP, S_OWN, PT, A, fo, WS_PART, S_ROW, drain1, post1, npre1, lambda e: stampit(e, 6))
    assert st.n <= 160
    V = R('v', 104, 16)
    e.wait(ds=['mv2'])
    for i in range(16): e(f'v_fmac_f32 {X1[i]}, {GA[i]}, {A[i]}')
    for i in range(16): e(f'v_mov_b32 {V[i]}, {X1[i]}')
    ln_stats(e, V, T, lane, wv, LNB)
    for i in range(16): e(f'v_fma_f32 {V[i]}, {V[i]}, {SC[i]}, {SH[i]}')
    for k in range(8): e(f'v_cvt_pk_bf16_f32 {PT[k]}, {V[2*k]}, {V[2*k+1]}')
    e(f's_add_u32 s30, {S_ROW}, {WS_H2}')
    for i in range(2): e.vm(f'buffer_store_dwordx4 {PT.sub(4*i,4)}, {fo}, {S_WS}, s30 offen offset:{2048*i} sc1', 'st')
    stampit(e, 7)
    def pre2(e):
        for _ in range(OPT['pre2']): st.issue(e)
    def mid2(e):
        for _ in range(OPT['pre2b']): st.issue(e)
        assert st.n <= 180
        act_addr(r, e)
    signal_and_poll(e, 1, 'b', fa, pa8, t, S_GRP, S_OWN, pre2, mid2)
    stampit(e, 8)
    e(f's_lshr_b32 s29, s22, 1\ns_xor_b32 s29, s29, {S_WAVE}\ns_lshl_b32 s30, s3, 2\ns_add_u32 s30, s30, s29\ns_lshl_b32 s30, s30, 14\ns_add_u32 s30, s30, {WS_H2}')
    e(f's_lshl_b32 s29, {S_WAVE}, 10')
    for ks in range(16):
        e(f's_add_u32 m0, s29, {H2B + ks * 4096}')
        if ks: e('s_add_u32 s30, s30, 1024')
        else: e('s_nop 0')
        e.vm(f'buffer_load_dwordx4 {l16}, {S_WS}, s30 offen sc1 lds', ('h', ks >> 2))
    Bf = lambda kg, k, rb: R('a', 128 + 64 * (kg & 1) + 16 * k + 4 * rb, 4)
    ACC = R('v', 12, 112)
    acc = lambda i, rb: ACC.sub(16 * i + 4 * rb, 4)
    def hreads(kg):
        return [(f'ds_read_b128 {Bf(kg, k, rb)}, {l16} offset:{H2B + (4*kg+k)*4096 + rb*1024}', ('Bh', kg, rb, k)) for rb in range(4) for k in range(4)]
    if OPT.get('sx') == 4: stampit(e, 14)
    e.wait(vm=[('h', 0)])
    e('s_barrier')
    if OPT.get('sx') == 4: stampit(e, 15)
    hq = hreads(0)
    for ins, tag in hq[:12]: e.ds(ins, tag)
    hq = hq[12:]
    TT = r.B1
    def act_fin(i):
        o = []
        for pr in range(2):
            X, Y = acc(i, 2 * pr), acc(i, 2 * pr + 1)
            for k in range(4): o.append(f'v_permlane32_swap_b32 {X[k]}, {Y[k]}')
            for k in range(4): o.append(f'v_max_f32 {X[k]}, 0, {X[k]}')
            for k in range(4): o.append(f'v_mul_f32 {X[k]}, {X[k]}, {Y[k]}')
            d = TT.sub(4 * (i & 1) + 2 * pr, 2)
            for k in range(2): o.append(f'v_cvt_pk_bf16_f32 {d[k]}, {X[2*k]}, {X[2*k+1]}')
            o.append(f'ds_write_b64 v{ACTA[i]}, {d} offset:{2048 * pr}')
        return o
    seq = [(kg, i, rb, k) for kg in range(4) for i in range(7) for rb in range(4) for k in range(4)]
    aidx = lambda kg, i, k: 128 + kg * 28 + i * 4 + k
    last, first = {}, {}
    for n, (kg, i, rb, k) in enumerate(seq):
        last[aidx(kg, i, k)] = n; first.setdefault(aidx(kg, i, k), n)
    pc = Pacer(OPT['gpace'])
    finq = []
    for n, (kg, i, rb, k) in enumerate(seq):
        m = n % 112
        if rb == 0 and k == 0: e.wait(vm=[('A', aidx(kg, i, j)) for j in range(4)])
        if i == 0 and k == 0: e.wait(ds=[('Bh', kg, rb, j) for j in range(4)])
        c = '0' if (kg == 0 and k == 0) else acc(i, rb)
        e(f'{MF} {acc(i, rb)}, {st.regs[aidx(kg, i, k)]}, {Bf(kg, k, rb)}, {c}')
        if m == 56 and kg < 3:
            e.wait(vm=[('h', kg + 1)])
            e('s_barrier')
            hq += hreads(kg + 1)
            continue
        if kg == 3 and m >= 20 and (m - 20) % 16 == 0: finq += act_fin((m - 20) // 16)
        if pc.ok(n) and st.more() and (st.n - 52 < 128 or last.get(st.n - 52, 1 << 30) <= n):
            assert first.get(st.n, 1 << 30) - n >= 20
            st.issue(e); pc.use(n); continue
        if hq and (n % 2 == 0 or kg == 0):
            ins, tag = hq.pop(0); e.ds(ins, tag); continue
        kk = 0
        while finq and kk < 2:
            x = finq[0]
            if x.startswith('ds_'):
                if kk: break
                e.ds(x, 'aw'); kk = 1
            else:
                e(x); kk += 1
            finq.pop(0)
    rest = finq + ['s_nop 1'] + act_fin(6)
    for x in rest:
        if x.startswith('ds_'): e.ds(x, 'aw')
        else: e(x)
    e.wait_all(vm=False, ds=True)
    e('s_barrier')
    stampit(e, 9)
    Bd = lambda ks, rb: R('a', 128 + 16 * ks + 4 * rb, 4)
    br = [(f'ds_read_b128 {Bd(ks, rb)}, {ab} offset:{ks*4096 + rb*1024}', ('Bd', ks, rb)) for rb in range(4) for ks in range(7)]
    for ins, tag in br[:10]: e.ds(ins, tag)
    for i in range(4): e(f's_add_u32 s{32+i}, s{32+i}, {WS_PART2 - WS_PART}')
    GBv = R('v', 92, 16)
    br += [(f'ds_read_b128 {GBv.sub(8*i+4*hh,4)}, {vo} offset:{24576 + 256*i + 16*hh}', 'gb') for i in range(2) for hh in range(2)]
    def a_ahead2(i, n, last_use):
        return (i - 52) < 240 or last_use[i - 52] <= n
    npass_gemm(e, 'Bd', st, 240, 7, Bd, R('v', 12, 64), R('v', 76, 16), [f's{32+i}' for i in range(4)], l16, 7, br[10:], None, a_ahead2, pace=OPT['dpace'])
    assert not st.more()
    stampit(e, 10)
    PT = R('v', 140, 64); A = R('v', 12, 16)
    if OPT.get('dyn3'):
        reduce_seam(e, 2, 'c', fa, pa8, t, S_GRP, S_OWN, PT, A, fo, WS_PART2, S_ROW, None, None, None, lambda e: stampit(e, 11))
    else:
        def pre3(e):
            own_read(e, PT); own_unpack(e, PT, A)
        signal_and_poll(e, 2, 'c', fa, pa8, t, S_GRP, S_OWN, pre3)
        stampit(e, 11)
        e(f's_add_u32 s30, {S_ROW}, {WS_PART2}')
        gather_sum(e, PT, A, fo, 's30')
    e('s_waitcnt lgkmcnt(0)')
    for i in range(16): e(f'v_fmac_f32 {X1[i]}, {GBv[i]}, {A[i]}')
    for k in range(8): e(f'v_cvt_pk_bf16_f32 {PT[k]}, {X1[2*k]}, {X1[2*k+1]}')
    for i in range(2):
        for u in range(2):
            e.vm(f'buffer_store_dwordx2 {PT.sub(4*i+2*u, 2)}, {xo}, {S_OS}, s39 offen offset:{128*i + 32*u}', 'st')

def tail_setup(r, p):
    lane, wv = R('v', 0), R('v', 1)
    t = r.tmp
    xo, fo, vo, fa, pa8, pa32 = [R('v', 240 + i) for i in range(6)]
    ab = R('v', 248)
    ln_addr(p, lane, wv, xo, fo, vo, t)
    p(f'v_add_u32 {vo}, {MODB}, {vo}')
    p(f'v_and_b32 {t[0]}, 7, {lane}\nv_lshlrev_b32 {fa}, 9, {t[0]}\nv_lshrrev_b32 {t[1]}, 3, {lane}\nv_lshl_add_u32 {fa}, {t[1]}, 26, {fa}')
    p(f'v_sub_u32 {pa8}, s22, {t[0]}\nv_and_b32 {pa8}, 7, {pa8}\nv_lshl_add_u32 {fa}, {pa8}, 2, {fa}')
    p(f'v_xor_b32 {t[1]}, s22, {t[1]}\nv_not_b32 {t[1]}, {t[1]}\nv_and_b32 {t[1]}, 1, {t[1]}\nv_lshl_add_u32 {VST0}, {t[1]}, 30, {r.ba[0]}')
    p(f'v_lshl_add_u32 {OWA}, {wv}, 12, {r.ba[0]}')
    p(f's_and_b32 s28, s22, 1\ns_lshl_b32 s28, s28, 7\nv_add_u32 {ORA}, s28, {fo}')
    p(f'v_add_u32 {ab}, {ACTB}, {r.ba[0]}')
    p(f's_lshl_b32 s36, s3, 12\ns_add_u32 s36, s36, {WS_FLAG}')
    p(f's_lshl_b32 s37, s2, 9\ns_add_u32 s37, s37, {WS_FLAG}\ns_add_u32 s90, s24, s37\ns_addc_u32 s91, s25, 0')
    p('s_lshr_b32 s38, s2, 1\ns_lshl_b32 s38, s38, 14\ns_and_b32 s28, s2, 1\ns_lshl_b32 s28, s28, 7\ns_add_u32 s38, s38, s28')
    p('s_lshl_b32 s39, s2, 13')

def act_addr(r, p):
    lane, wv = R('v', 0), R('v', 1)
    t = r.tmp
    p(f'v_lshrrev_b32 {t[2]}, 5, {lane}\nv_lshlrev_b32 {t[2]}, 10, {t[2]}')
    p(f'v_and_b32 {t[3]}, 31, {lane}\nv_lshl_add_u32 {t[2]}, {t[3]}, 4, {t[2]}')
    p(f's_mul_i32 s70, {S_WAVE}, 7')
    for i in range(7):
        p(f's_add_u32 s28, s70, {i}')
        p('s_lshr_b32 s71, s28, 2\ns_lshl_b32 s71, s71, 12')
        p('s_bfe_u32 s23, s28, 0x10001\ns_lshl_b32 s23, s23, 3\ns_add_u32 s71, s71, s23')
        p('s_and_b32 s23, s28, 1\ns_lshl_b32 s23, s23, 9\ns_add_u32 s71, s71, s23')
        p(f's_add_u32 s71, s71, {ACTB}')
        p(f'v_add_u32 v{ACTA[i]}, s71, {t[2]}')
```

```python
from asmlib import *

MF = 'v_mfma_f32_16x16x32_bf16'
KBASE = 0
VBASE = 65536
XBASE = 131072

class AttnRegs:
    def __init__(self):
        v = Alloc('v', 1, 256); a = Alloc('a', 0, 256)
        self.v, self.a = v, a
        self.O = a(128, 4)
        self.Kf = a(64, 4)
        self.Vf = a(64, 4)
        self.tmp = v(7)
        self.Q = v(64, 4)
        self.S = v(64, 4)
        self.P = v(32, 4)
        self.negm = v(16, 4)
        self.ones = v(4, 4)
        self.lm = v(8, 4)
        self.la = v(4)
        self.kaddr = v(4)
        self.vaddr = v(8)
        self.dk = v(4)
        self.dv = v(4)
        self.B1 = v(16, 4)
        self.wa0 = v(8)
        self.dw = v(4)
        self.ba = v(2)
        self.ACC = R('v', self.S.b, 128)
        assert self.la.b + 4 == self.S.b + 128
        self.B0 = self.Q.sub(0, 16)
        self.wa1q = self.Q.sub(16, 8)
    def o(self, qb, db): return self.O.sub(32 * qb + 4 * db, 4)
    def kf(self, kb, ds): return self.Kf.sub(16 * kb + 4 * ds, 4)
    def vf(self, ks, db): return self.Vf.sub(32 * ks + 4 * db, 4)
    def q(self, qb, ds): return self.Q.sub(16 * qb + 4 * ds, 4)
    def s(self, qb, kb): return self.S.sub(32 * (qb >> 1) + 8 * kb + 4 * (qb & 1), 4)
    def p(self, qb, ks): return self.P.sub(8 * qb + 4 * ks, 4)
    def nm(self, qb): return self.negm.sub(4 * qb, 4)

S_KSRD = R('s', 8, 4)
S_VSRD = R('s', 12, 4)
S_SOFF = R('s', 16)
S_WLDS = R('s', 17)
S_CNT = R('s', 18)
S_WAVE = R('s', 19)
S_STEP = R('s', 30)

def qk_mfmas(r, pair):
    out = []
    for kb in range(4):
        for q1 in range(2):
            qb = 2 * pair + q1
            for ds in range(4):
                c = r.nm(qb) if ds == 0 else r.s(qb, kb)
                out.append(f'{MF} {r.s(qb, kb)}, {r.kf(kb, ds)}, {r.q(qb, ds)}, {c}')
    return out

def pv_mfmas(r, pair):
    out = []
    for db in range(8):
        for (ks, q1) in ((0, 0), (1, 0), (1, 1), (0, 1)):
            qb = 2 * pair + q1
            out.append(f'{MF} {r.o(qb, db)}, {r.vf(ks, db)}, {r.p(qb, ks)}, {r.o(qb, db)}')
    return out

def msum(r, pair, ks):
    l = r.lm.sub(4 * pair, 4)
    return f'{MF} {l}, {r.ones}, {r.p(2 * pair + 1, ks)}, {l}'

def softmax_ops(r, pair):
    exps, others = [], []
    for kb in range(4):
        for q1 in range(2):
            qb = 2 * pair + q1
            s = r.s(qb, kb)
            pp = r.p(qb, kb >> 1)
            for i in range(4):
                exps.append(f'v_exp_f32 {s[i]}, {s[i]}')
                n = len(exps) - 1
                if q1 == 0:
                    la = r.la[2 * pair + (i & 1)]
                    others.append((n, f'v_add_f32 {la}, {la}, {s[i]}'))
                if i & 1:
                    others.append((n, f'v_cvt_pk_bf16_f32 {pp[2 * (kb & 1) + (i >> 1)]}, {s[i-1]}, {s[i]}'))
    return exps, others

def k_reads(r, slot):
    return [f'ds_read_b128 {r.kf(kb, ds)}, {r.kaddr[ds]} offset:{slot * 16384 + kb * 4096}' for kb in range(4) for ds in range(4)]

def v_reads(r, slot):
    out = []
    for db in range(8):
        for ks in range(2):
            for u in range(2):
                out.append(f'ds_read_b64_tr_b16 {r.vf(ks, db).sub(2 * u, 2)}, {r.vaddr[db]} offset:{slot * 16384 + (32 * ks + 16 * u) * 256}')
    return out

def dma_tile(r, slot):
    out = []
    for p in range(4):
        pre = [f's_add_u32 m0, {S_WLDS}, {KBASE + slot * 16384}'] if p == 0 else []
        out.append((pre, f'buffer_load_dwordx4 {r.dk[p]}, {S_KSRD}, {S_SOFF} offen offset:{1024 * p} lds'))
    for p in range(4):
        pre = [f's_add_u32 m0, {S_WLDS}, {VBASE + slot * 16384}'] if p == 0 else []
        out.append((pre, f'buffer_load_dwordx4 {r.dv[p]}, {S_VSRD}, {S_SOFF} offen offset:{1024 * p} lds'))
    return out

ESTART = 8

def iteration(r, j4, extra_salu=None, x33=None, x97=None, vmn=8, over=None, dma=None, nok=False):
    mf = qk_mfmas(r, 0) + pv_mfmas(r, 1) + qk_mfmas(r, 1) + pv_mfmas(r, 0)
    N = 128
    gaps = [dict(pre=[], mem=None, valu=[], exp=None, post=[]) for _ in range(N)]
    ea, oa = softmax_ops(r, 0)
    eb, ob = softmax_ops(r, 1)
    pend = []
    for (ex, ot, base) in ((ea, oa, ESTART), (eb, ob, 64 + ESTART)):
        for n, e in enumerate(ex):
            gaps[(base + 2 * n) % N]['exp'] = e
        for n, ins in ot:
            pend.append((base + 2 * n + 1, ins))
    vr_ = v_reads(r, (j4 + 1) % 4)
    for n, d in enumerate(vr_):
        gaps[32 + 3 + 2 * n]['mem'] = d
    kr_cur = k_reads(r, (j4 + 2) % 4)
    for n, d in enumerate(kr_cur[:15]):
        gaps[96 + 3 + 2 * n]['mem'] = d if not nok else 'NONE'
    gaps[1]['mem'] = k_reads(r, (j4 + 1) % 4)[15]
    for n, (pre, d) in enumerate(dma or dma_tile(r, (j4 + 3) % 4)):
        g = 3 + 4 * n
        gaps[g]['mem'] = d
        gaps[g - 1]['pre'] += pre
    gaps[32]['pre'].append(f's_add_u32 {S_SOFF}, {S_SOFF}, {S_STEP}')
    extra = {33: [msum(r, 1, 0), msum(r, 1, 1)], 97: [msum(r, 0, 0), msum(r, 0, 1)]}
    gaps[94]['pre'].append('s_waitcnt lgkmcnt(6)')
    gaps[96 + 22]['pre'].append('s_waitcnt lgkmcnt(10)' if not nok else 's_waitcnt lgkmcnt(0)')
    if not nok: gaps[126]['pre'].append('s_waitcnt lgkmcnt(6)')
    gaps[14]['pre'].append('s_waitcnt lgkmcnt(0)')
    def cap(g):
        G = gaps[g]
        if G['exp']: return 0
        if G['mem'] is None: return 2
        return 0 if 'lds' in G['mem'] else 1
    xslots = {g: [[], []] for g in extra}
    pend.sort(key=lambda x: x[0])
    queue = []
    placed = {}
    seq = [(g + N * per, ins) for per in range(3) for (g, ins) in pend]
    seq.sort(key=lambda x: x[0])
    qi = 0
    res = {}
    for t in range(0, 3 * N):
        while qi < len(seq) and seq[qi][0] <= t:
            queue.append(seq[qi][1]); qi += 1
        g = t % N
        c = cap(g)
        take = queue[:c]; queue = queue[c:]
        xs = []
        if g in extra:
            for _ in extra[g]:
                c2 = 0 if (x33 is not None) else 2
                xs.append(queue[:c2]); queue = queue[c2:]
        res[t] = (take, xs)
    for g in range(N):
        assert res[N + g] == res[2 * N + g], g
    for g in range(N):
        for ins in res[N + g][0] + sum(res[N + g][1], []):
            if ins in [x[1] for x in oa]: assert ESTART <= g < 94, (g, ins)
            if ins in [x[1] for x in ob]: assert g >= 64 + ESTART or g < 30, (g, ins)
    out = []
    for g in range(N):
        G = gaps[g]
        out.append(mf[g])
        out += G['pre']
        if extra_salu and g in extra_salu: out += extra_salu[g]
        if over and g in over: out += over[g]
        if G['mem'] and G['mem'] != 'NONE': out.append(G['mem'])
        if G['exp']: out.append(G['exp'])
        out += res[N + g][0]
        if g in extra:
            for k, m in enumerate(extra[g]):
                out.append(m)
                if g == 97 and k == 0:
                    if vmn is not None: out.append(f's_waitcnt vmcnt({vmn})')
                if g == 97 and k == 1:
                    out.append('s_barrier')
                if g == 33 and x33: out += x33[k]
                if g == 97 and x97: out += x97[k]
                out += res[N + g][1][k]
    tail = []
    for g in range(0, 40):
        G = gaps[g]
        if G['exp'] and G['exp'] in eb: tail.append(G['exp'])
        for ins in res[N + g][0] + sum(res[N + g][1], []):
            if ins in [x[1] for x in ob]: tail.append(ins)
    return out, tail

def setup_addr(p, r, lane, wave_v):
    t = r.tmp
    m, G = t[0], t[1]
    p(f'v_and_b32 {m}, 15, {lane}')
    p(f'v_lshrrev_b32 {G}, 4, {lane}')
    p(f'v_xor_b32 {t[2]}, {G}, {m}')
    p(f'v_lshlrev_b32 {t[2]}, 4, {t[2]}')
    p(f'v_lshl_add_u32 {r.kaddr[0]}, {m}, 8, {t[2]}')
    for ds in range(1, 4):
        p(f'v_xor_b32 {r.kaddr[ds]}, {64 * ds}, {r.kaddr[0]}')
    p(f'v_lshrrev_b32 {t[2]}, 2, {lane}')
    p(f'v_and_b32 {t[3]}, 7, {t[2]}')
    p(f'v_lshlrev_b32 {t[3]}, 5, {t[3]}')
    p(f'v_lshl_add_u32 {t[3]}, {t[2]}, 8, {t[3]}')
    p(f'v_and_b32 {t[4]}, 3, {lane}')
    p(f'v_lshl_add_u32 {t[3]}, {t[4]}, 3, {t[3]}')
    p(f'v_add_u32 {r.vaddr[0]}, {VBASE}, {t[3]}')
    for db in range(1, 8):
        p(f'v_xor_b32 {r.vaddr[db]}, {32 * db}, {r.vaddr[0]}')

def setup_dma_kv(p, r, lane, wave_v):
    t = r.tmp
    m, G = t[0], t[1]
    p(f'v_and_b32 {m}, 15, {lane}')
    p(f'v_lshrrev_b32 {G}, 4, {lane}')
    p(f'v_lshl_add_u32 {t[2]}, {wave_v}, 4, {G}')
    p(f'v_lshlrev_b32 {t[2]}, 8, {t[2]}')
    p(f'v_xor_b32 {t[3]}, {m}, {G}')
    p(f'v_lshl_add_u32 {r.dk[0]}, {t[3]}, 4, {t[2]}')
    for q in range(1, 4):
        p(f'v_xor_b32 {r.dk[q]}, {64 * q}, {r.dk[0]}')
    p(f'v_lshlrev_b32 {t[3]}, 1, {G}')
    p(f'v_xor_b32 {t[3]}, {m}, {t[3]}')
    p(f'v_lshl_add_u32 {r.dv[0]}, {t[3]}, 4, {t[2]}')
    p(f'v_xor_b32 {r.dv[1]}, 128, {r.dv[0]}')
    p(f'v_mov_b32 {r.dv[2]}, {r.dv[0]}')
    p(f'v_mov_b32 {r.dv[3]}, {r.dv[1]}')

def allreduce_G(p, x, t, op):
    p(f'v_mov_b32 {t}, {x}')
    p('s_nop 1')
    p(f'v_permlane32_swap_b32 {x}, {t}')
    p(f'{op} {x}, {x}, {t}')
    p(f'v_mov_b32 {t}, {x}')
    p('s_nop 1')
    p(f'v_permlane16_swap_b32 {x}, {t}')
    p(f'{op} {x}, {x}, {t}')

def bfrag_loc(ks):
    w, s = ks >> 2, ks & 3
    if s == 0: return 0, KBASE + 3 * 16384 + 4096 * w
    if s == 1: return 1, 4096 * w
    return 1, 16384 + 8192 * w + (s - 2) * 4096

def ofrag_loc(ks):
    w, s = ks >> 2, ks & 3
    if s < 2: return 0, KBASE + 2 * 16384 + 8192 * w + 4096 * s
    return 1, 8192 * w + 4096 * (s - 2)

def gemm(r, wa0, wa1, slot_of, dma_half, finish, valu=None, xvm=None, after5=0, salu=None):
    acc = lambda nt, rb: r.ACC.sub(16 * nt + 4 * rb, 4)
    A = lambda ks, nt: r.Kf.sub(32 * (ks & 1) + 4 * nt, 4)
    B = lambda ks, rb: (r.B1 if ks & 1 else r.B0).sub(4 * rb, 4)
    def a_reads(ks, u):
        wa = wa1 if u else wa0
        return [f'ds_read_b64_tr_b16 {A(ks, nt).sub(2 * u, 2)}, {wa[nt]} offset:{slot_of(ks) * 16384}' for nt in range(8)]
    def b_reads(ks, u):
        ri, off = bfrag_loc(ks)
        return [f'ds_read_b128 {B(ks, rb)}, {r.ba[ri]} offset:{off + 1024 * rb}' for rb in (2 * u, 2 * u + 1)]
    out = []
    issued = [6]
    nout = {}
    order = list(range(6))
    for h in range(6): nout[h] = 4
    nout[5.5] = after5; order.append(5.5)
    def vm_wait(h):
        n = sum(nout[x] for x in order if x > h)
        return f's_waitcnt vmcnt({n})'
    out.append(vm_wait(0))
    out += a_reads(0, 0) + b_reads(0, 0)
    out.append(vm_wait(1))
    out += a_reads(0, 1)[:4]
    out.append('s_waitcnt lgkmcnt(6)')
    d = dma_half(6); nout[6] = len(d); order.append(6)
    for pre, ins in d:
        for x in pre: out += [x, 's_nop 0']
        out.append(ins)
    out += a_reads(0, 1)[4:] + b_reads(0, 1)
    out.append('s_waitcnt lgkmcnt(0)')
    fin_q = []
    for ks in range(16):
        for u in range(2):
            mem = {}
            pre = {g: [] for g in range(16)}
            if ks < 15:
                rd = b_reads(ks + 1, u) + a_reads(ks + 1, u)
                gs = [0, 1, 3, 4, 5, 7, 8, 9, 11, 12]
                for g, x in zip(gs, rd): mem[g] = x
            h = 2 * ks + u + 7
            d = dma_half(h)
            for g, (pp, ins) in zip((2, 6, 10, 14), d):
                mem[g] = ins
                pre[g - 1] += pp
            nx = 0
            if xvm and (ks, u) in xvm:
                pp, ins = xvm[(ks, u)]
                mem[13] = ins; pre[12] += pp; nx = 1
            for g in range(16):
                n = 16 * u + g
                nt, rb = n >> 2, n & 3
                c = '0' if ks == 0 else acc(nt, rb)
                out.append(f'{MF} {acc(nt, rb)}, {A(ks, nt)}, {B(ks, rb)}, {c}')
                if g == 0 and ks < 15:
                    out.append(vm_wait(2 * (ks + 1) + u))
                if g == 1 and (ks, u) != (0, 0) and (ks, u) != (15, 1):
                    out.append('s_waitcnt lgkmcnt(1)' if ks < 15 else 's_waitcnt lgkmcnt(0)')
                out += pre[g]
                if g == 2:
                    nout[h] = len(d) + nx; order.append(h)
                if g in mem: out.append(mem[g])
                if salu and g in (4, 8, 13, 15):
                    out.append(salu.pop(0))
                    while salu and salu[0].startswith(('s_addc', 's_cselect', 's_subb')): out.append(salu.pop(0))
                if valu and ks < 15:
                    for _ in range(2 if g not in mem else (0 if mem[g].startswith('buffer') else 1)):
                        if valu: out.append(valu.pop(0))
                if g == 15 and ks < 15 and u == 1:
                    out.append('s_waitcnt lgkmcnt(4)')
                if ks == 15:
                    if n >= 12 and (n - 12) % 8 == 0:
                        fin_q += finish((n - 12) // 8)
                    k = 0
                    while fin_q and k < 2 and g not in mem:
                        x = fin_q.pop(0); out.append(x)
                        k += 2 if x.startswith('buffer') else 1
    assert not valu and not salu
    out += fin_q
    out.append('s_nop 7')
    out += finish(3)
    return out
```

```python
from gen_attn import *
from layout import *
from gen_tail import *
from gen_small import srd, f32, CQ
import math
IDLE = 0x80000000

def kmain(name, stamp=False):
    NG = OPT.get('ng', 1)
    r = AttnRegs()
    lane, wv = R('v', 0), R('v', 1)
    S_WQ = R('s', 40, 4); S_PA = S_WQ; S_PB = R('s', 60, 4)
    S_QOFF = R('s', 31); S_HW = 's20'
    S_PASS = R('s', 44)
    S_KB = R('s', 46, 2); S_VB = R('s', 48, 2)
    t = r.tmp
    PF = R('v', 254); PFD = R('v', 255); STV = R('v', 8); PFX = r.B1[15]
    def stampit(p, k):
        if stamp:
            if hasattr(p, 'wait_all'): p.wait_all(vm=False, ds=True)
            p(f's_waitcnt lgkmcnt(0)\ns_memtime s[96:97]\ns_memrealtime s[98:99]\ns_waitcnt lgkmcnt(0)\nv_writelane_b32 {STV}, s96, {32+2*k}\nv_writelane_b32 {STV}, s98, {33+2*k}')
    def xs(p, nm):
        if OPT.get('s14') == nm: stampit(p, 14)
        if OPT.get('s15') == nm: stampit(p, 15)
    pro = Prog()
    pro(f's_cmp_ge_u32 s2, 256\ns_cbranch_scc1 L_end')
    stampit(pro, 0)
    pro('s_load_dwordx4 s[84:87], s[0:1], 72')
    pro('s_load_dwordx2 s[24:25], s[0:1], 104')
    pro('s_load_dwordx2 s[52:53], s[0:1], 0')
    pro('s_load_dwordx8 s[4:11], s[0:1], 8')
    pro('s_load_dwordx4 s[92:95], s[0:1], 48\ns_load_dwordx2 s[90:91], s[0:1], 64')
    pro('s_load_dwordx2 s[56:57], s[0:1], 88')
    pro(f'v_lshrrev_b32 {wv}, 6, v0')
    pro(f'v_and_b32 v0, 63, v0')
    pro(f'v_readfirstlane_b32 {S_WAVE}, {wv}')
    pro('s_getpc_b64 s[88:89]')
    def code_pf(p, dst):
        p(f's_mov_b32 s40, s88\ns_mov_b32 s41, s89\ns_mov_b32 s42, L_epi-{name}-128\ns_mov_b32 s43, 0x20000')
        p(f'v_and_b32 {PF}, 3, v0\nv_lshlrev_b32 {PF}, 7, {PF}\nv_lshl_add_u32 {PF}, {wv}, 9, {PF}')
        p(f's_lshr_b32 s28, {S_HW}, 3\ns_lshl_b32 s28, s28, 11')
        p(f'buffer_load_dword {dst}, {PF}, s[40:43], s28 offen')
    pro(f's_mov_b32 {S_HW}, s2')
    code_pf(pro, PFD)
    if NG == 1:
        pro('s_and_b32 s22, s2, 7\ns_lshr_b32 s3, s2, 3')
    else:
        pro('s_and_b32 s22, s2, 6\ns_bfe_u32 s28, s2, 0x10003\ns_add_u32 s22, s22, s28')
        pro('s_and_b32 s3, s2, 1\ns_lshl_b32 s3, s3, 4\ns_lshr_b32 s28, s2, 4\ns_add_u32 s3, s3, s28')
        pro('s_lshl_b32 s2, s3, 3\ns_add_u32 s2, s2, s22')
    pro(f's_lshl_b32 {S_WLDS}, {S_WAVE}, 12')
    pro(f'v_lshlrev_b32 {r.ba[0]}, 4, {lane}')
    L2E = f32(-math.log2(math.e))
    tid = t[5]
    def mod_addr(p, crit, va, vc, tmp, so_w, so_c, s_lc, s_q):
        b = 1 if crit else 2
        p(f's_lshr_b32 s28, {S_HW}, {6 - b}\ns_lshl_b32 s28, s28, 3\ns_and_b32 s29, {S_HW}, 7\ns_add_u32 s28, s28, s29')
        p(f's_and_b32 {s_lc}, s28, {15 if crit else 31}\ns_lshr_b32 {s_q}, s28, {3 + b}')
        p(f's_bfe_u32 s29, {S_HW}, {hex(((3 - b) << 16) | 3)}\ns_lshl_b32 {s_lc}, {s_lc}, {3 - b}\ns_add_u32 {s_lc}, {s_lc}, s29')
        p(f's_mul_i32 {so_w}, {s_q}, {128*6144}\ns_lshl_b32 s28, {s_lc}, {4 + b}\ns_add_u32 {so_w}, {so_w}, s28')
        if not crit: p(f's_add_u32 {so_w}, {so_w}, 2048')
        p(f's_lshl_b32 {so_c}, {s_q}, 8')
        p(f'v_lshl_add_u32 {tmp}, {wv}, 6, {lane}\nv_lshrrev_b32 {tmp}, {b}, {tmp}')
        p(f'v_lshlrev_b32 {vc}, {b}, {tmp}\nv_mul_u32_u24 {va}, {b*6144}, {tmp}')
        p(f'v_and_b32 {tmp}, {2*b - 1}, {lane}\nv_lshl_add_u32 {va}, {tmp}, 4, {va}')
    def mod_compute(p, crit, W, C, U, A_, ta, lds, xreg=False):
        n = len(W)
        if crit: p(f'v_lshlrev_b32 {C[0]}, 16, {C[0]}')
        else: p(f'v_and_b32 {C[1]}, 0xffff0000, {C[0]}\nv_lshlrev_b32 {C[0]}, 16, {C[0]}')
        for i in range(n): p(f'v_mul_f32 {U[i]}, {L2E}, {C[i]}')
        for i in range(n): p(f'v_exp_f32 {U[i]}, {U[i]}')
        p(f'v_and_b32 {ta}, {2*n - 1}, {lane}')
        for i in range(n): p(f'v_add_f32 {U[i]}, 1.0, {U[i]}')
        for i in range(n): p(f'v_rcp_f32 {U[i]}, {U[i]}')
        p(f'v_lshlrev_b32 {ta}, 5, {ta}')
        for i in range(n): p(f'v_mul_f32 {C[i]}, {C[i]}, {U[i]}')
        for i in range(n):
            for k in range(4):
                p(f'v_lshlrev_b32 {U[2*k]}, 16, {W[i][k]}\nv_and_b32 {U[2*k+1]}, 0xffff0000, {W[i][k]}')
            for e_ in range(8):
                p(f'v_mul_f32 {A_[e_]}, {U[e_]}, {C[i]}' if i == 0 else f'v_fmac_f32 {A_[e_]}, {U[e_]}, {C[i]}')
        for e_ in range(4): p(f'v_permlane32_swap_b32 {A_[e_]}, {A_[e_+4]}')
        for e_ in range(4): p(f'v_add_f32 {A_[e_]}, {A_[e_]}, {A_[e_+4]}')
        p(f'v_lshrrev_b32 {U[0]}, 4, {lane}')
        for e_ in range(2): p(f'v_permlane16_swap_b32 {A_[e_]}, {A_[e_+2]}')
        for e_ in range(2): p(f'v_add_f32 {A_[e_]}, {A_[e_]}, {A_[e_+2]}')
        p(f'v_lshl_add_u32 {ta}, {U[0]}, 3, {ta}')
        for j, sh in enumerate((8, 4, 2) if crit else (8, 4)):
            if j: p('s_nop 0')
            for e_ in range(2): p(f'v_add_f32_dpp {A_[e_]}, {A_[e_]}, {A_[e_]} row_ror:{sh} row_mask:0xf bank_mask:0xf')
        if xreg: p(f'v_lshl_add_u32 {ta}, {wv}, 8, {ta}\nv_add_u32 {ta}, {XBASE + 4096}, {ta}')
        else: p(f'v_add_u32 {ta}, {S_WLDS}, {ta}')
        p(f'ds_write_b64 {ta}, {A_.sub(0,2)} offset:{lds}')
    def mod_gather(p, U, ta, lds):
        p(f'v_lshlrev_b32 {ta}, 2, {lane}')
        for w_ in range(4): p(f'ds_read_b32 {U[w_]}, {ta} offset:{lds + 4096*w_}')
    MW = r.ACC.sub(0, 4); MC = r.ACC.sub(4, 2); MA = r.ACC.sub(8, 8); MU = r.ACC.sub(16, 8); MT = r.ACC.sub(24, 4)
    mod_addr(pro, True, MT[0], MT[1], MT[2], 's32', 's33', 's34', 's35')
    pro(f'v_and_b32 {t[0]}, 15, {lane}\nv_lshrrev_b32 {t[1]}, 4, {lane}\nv_lshlrev_b32 {PFX}, 10, {t[0]}\nv_lshl_add_u32 {PFX}, {t[1]}, 4, {PFX}')
    pro(f's_lshl_b32 s21, s3, 16\ns_lshl_b32 s28, {S_WAVE}, 8\ns_add_u32 s21, s21, s28')
    pro('s_lshr_b32 s28, s22, 1\ns_lshl_b32 s28, s28, 14\ns_add_u32 s21, s21, s28')
    pro(f'v_and_b32 {t[3]}, 7, {lane}\nv_lshlrev_b32 {t[3]}, 7, {t[3]}\nv_lshrrev_b32 {t[2]}, 3, {lane}')
    if OPT.get('pfil', 1):
        pro(f'v_lshl_add_u32 {PF}, {t[2]}, {20 - (NG - 1)}, {t[3]}')
    else:
        pro(f'v_lshl_add_u32 {PF}, {t[2]}, 13, {t[3]}')
        if NG == 1: pro(f'v_lshrrev_b32 {t[2]}, 5, {lane}\nv_lshl_add_u32 {PF}, {t[2]}, 24, {PF}')
    pro(f's_and_b32 s28, s3, {32 // NG - 1}\ns_lshl_b32 s28, s28, 2\ns_add_u32 s28, s28, {S_WAVE}\ns_lshl_b32 s28, s28, {13 if OPT.get("pfil", 1) else 15 + NG - 1}\ns_lshl_b32 s29, s22, 10\ns_add_u32 s36, s28, s29')
    pro('s_waitcnt lgkmcnt(0)')
    xs(pro, 'karg')
    pro(f's_load_dword {S_TAG}, s[24:25], {WS_EPOCH}')
    pro(f's_mov_b32 s26, {WS_END}\ns_mov_b32 s27, 0x20000')
    pro('s_mov_b32 s54, 0x200000\ns_mov_b32 s55, 0x20000\ns_mov_b32 s58, 0x200000\ns_mov_b32 s59, 0x20000')
    srd(pro, 60, 's84', 's85', 1024)
    srd(pro, 40, 's86', 's87', 512 * 6144)
    pro(f'buffer_load_dwordx4 {MW}, {MT[0]}, s[40:43], s32 offen')
    pro(f'buffer_load_ushort {MC[0]}, {MT[1]}, s[60:63], s33 offen')
    FB = OPT.get('fair', 1)
    pro(f's_mov_b32 {S_WQ[0]}, s8\ns_mov_b32 {S_WQ[1]}, s9\ns_mov_b32 {S_WQ[2]}, 0x400000')
    if FB: pro('s_barrier')
    PFF = OPT.get('pff', 9)
    bulk = f'buffer_load_dword {r.B1[14]}, {PF}, {S_WQ}, s36 offen'
    if PFF == 0: pro(bulk)
    p2 = Prog()
    X = r.Q
    XA = R('v', 251)
    def xload(p, rb):
        for s in range(4):
            p(f'buffer_load_dwordx4 {X.sub(16*rb+4*s,4)}, {PFX}, {S_XS}, s21 offen offset:{64*s}')
        if rb < 3: p(f's_xor_b32 s21, s21, {(rb ^ (rb + 1)) << 14}')
        if FB and rb < 2: p('s_barrier')
    XF = 3
    xload(p2, 0)
    if PFF == 1: p2(bulk)
    xload(p2, 1)
    if PFF == 2: p2(bulk)
    xs(p2, 'x12')
    p2('s_lshl_b32 s23, s22, 19')
    p2(f's_add_u32 {S_KB[0]}, s4, s23\ns_addc_u32 {S_KB[1]}, s5, 0')
    p2(f's_add_u32 {S_VB[0]}, s6, s23\ns_addc_u32 {S_VB[1]}, s7, 0')
    p2(f's_add_u32 s50, s10, s23\ns_addc_u32 s51, s11, 0')
    tagfix = f's_waitcnt lgkmcnt(0)\ns_add_u32 {S_TAG}, {S_TAG}, 0x9e3779b9'
    def set_kv_srd(p):
        p(f's_mov_b32 s8, {S_KB[0]}\ns_mov_b32 s9, {S_KB[1]}\ns_mov_b32 s10, 0x80000\ns_mov_b32 s11, 0x20000')
        p(f's_mov_b32 s12, {S_VB[0]}\ns_mov_b32 s13, {S_VB[1]}\ns_mov_b32 s14, 0x80000\ns_mov_b32 s15, 0x20000')
        p(f's_mov_b32 {S_STEP}, 16384\ns_mov_b32 {S_SOFF}, 0')
    set_kv_srd(p2)
    p2(f'v_and_b32 {t[0]}, 15, {lane}')
    p2(f'v_lshlrev_b32 {t[2]}, 1, {t[1]}\nv_xor_b32 {t[2]}, {t[0]}, {t[2]}\nv_lshlrev_b32 {t[2]}, 4, {t[2]}')
    p2(f'v_lshl_add_u32 {r.dw[0]}, {t[1]}, 13, {t[2]}')
    stq = 8 * 8192 - 1024
    p2(f'v_xor_b32 {r.dw[1]}, 128, {r.dw[0]}\nv_add_u32 {r.dw[1]}, {stq}, {r.dw[1]}')
    p2(f'v_add_u32 {r.dw[2]}, {2*stq}, {r.dw[0]}\nv_add_u32 {r.dw[3]}, {2*stq}, {r.dw[1]}')
    p2(f's_lshl_b32 {S_QOFF}, s22, 2\ns_add_u32 {S_QOFF}, {S_QOFF}, {S_WAVE}\ns_lshl_b32 {S_QOFF}, {S_QOFF}, 8')
    p2(f's_mov_b32 {S_PASS}, 0')
    pm2 = Prog()
    RED = KBASE + 3 * 16384
    X2E = OPT.get('x2e', 0)
    if X2E: xload(pm2, 2)
    pm2('s_lshr_b32 s29, s34, 5\ns_cmp_eq_u32 s29, 1\ns_cselect_b32 s32, 1.0, 0\ns_cmp_eq_u32 s35, 0\ns_cselect_b32 s32, s32, 0')
    pm2(f's_lshl_b32 s34, s34, 7\ns_lshl_b32 s35, s35, 13\ns_add_u32 s34, s34, s35\ns_add_u32 s34, s34, {WS_GR}')
    pm2(f's_cmp_eq_u32 {S_WAVE}, 0\ns_cselect_b32 s34, s34, {IDLE}')
    pm2(f'v_lshrrev_b32 {MT[1]}, 4, {lane}\nv_lshlrev_b32 {MT[1]}, 26, {MT[1]}\nv_lshl_add_u32 {MT[1]}, {lane}, 3, {MT[1]}')
    xs(pm2, 'w0')
    pm2(f's_waitcnt vmcnt({(12 if X2E else 8) + (PFF < 9)})')
    xs(pm2, 'w1')
    if not X2E: xload(pm2, 2)
    mod_compute(pm2, True, [MW], MC, MU, MA, MT[2], RED)
    pm2('s_waitcnt lgkmcnt(0)\ns_barrier')
    mod_gather(pm2, MU, MT[2], RED)
    pm2(tagfix)
    pm2(f'v_add_f32 {MU[0]}, {MU[0]}, {MU[1]}\nv_add_f32 {MU[2]}, {MU[2]}, {MU[3]}\nv_add_f32 {MU[0]}, {MU[0]}, {MU[2]}')
    pm2(f'v_mov_b32 {MU[1]}, {S_TAG}')
    pm2(f'v_add_f32 {MU[0]}, s32, {MU[0]}\nv_mul_f32 {MU[0]}, {f32(CQ)}, {MU[0]}')
    pm2(f'buffer_store_dwordx2 {MU.sub(0,2)}, {MT[1]}, {S_WS}, s34 offen sc1')
    p3 = Prog()
    xs(p3, 'pub')
    qslot = lambda ks: (ks + 2) % 3
    def q_dma(h):
        ks, u = h >> 1, h & 1
        base = (VBASE if u else KBASE) + qslot(ks) * 16384
        if ks < 16:
            out = []
            for p in range(4):
                pre = [f's_add_u32 m0, {S_WLDS}, {base}'] if p == 0 else []
                if p == 0 and h > 0: pre = [f's_add_u32 {S_QOFF}, {S_QOFF}, {(4 if u else 28)*8192}'] + pre
                out.append((pre, f'buffer_load_dwordx4 {r.dw[p]}, {S_WQ}, {S_QOFF} offen offset:{1024*p} lds'))
            return out
        if ks < 18:
            d = dma_tile(r, ks - 16)[4*u:4*u+4]
            if ks == 17 and u == 0:
                d[0] = ([f's_add_u32 {S_SOFF}, {S_SOFF}, {S_STEP}'] + d[0][0], d[0][1])
            return d
        if h == 36:
            return [([], f'buffer_load_dwordx4 {NW[0]}, {NA}, s[4:7], s32 offen'),
                    (['s_add_u32 s32, s32, 6144'], f'buffer_load_dwordx4 {NW[1]}, {NA}, s[4:7], s32 offen'),
                    ([], f'buffer_load_dword {NC[0]}, {NCA}, s[60:63], s33 offen')]
        return []
    NW = [r.dw, R('v', 4, 4)]; NC = R('v', 254, 2); NA = t[0]; NCA = t[1]
    def zero_ov():
        return [f'v_accvgpr_write_b32 {r.O[i]}, 0' for i in range(128)] + [f'v_accvgpr_write_b32 {r.Vf[i]}, 0' for i in range(64)]
    fill = Prog()
    late = Prog()
    setup_dma_kv(late, r, lane, wv)
    setup_addr(late, r, lane, wv)
    fill(f'v_add_u32 {r.ba[1]}, {VBASE + 3*16384}, {r.ba[0]}')
    fill(f'v_lshrrev_b32 {t[2]}, 2, {lane}\nv_and_b32 {t[3]}, 7, {t[2]}\nv_lshlrev_b32 {t[3]}, 1, {t[3]}\nv_and_b32 {t[4]}, 3, {lane}')
    fill(f'v_xor_b32 {t[3]}, {t[3]}, {t[4]}\nv_lshlrev_b32 {t[3]}, 4, {t[3]}\nv_lshl_add_u32 {t[3]}, {t[2]}, 8, {t[3]}')
    fill(f'v_add_u32 {r.wa0[0]}, {S_WLDS}, {t[3]}')
    for nt in range(1, 8): fill(f'v_xor_b32 {r.wa0[nt]}, {64*(nt>>1) + 8*(nt&1)}, {r.wa0[0]}')
    wr = [R('v', 9), R('v', 10)]; wr2 = R('v', 11)
    fill(f'v_add_u32 {wr[0]}, {S_WLDS}, {r.ba[0]}\nv_add_u32 {wr[1]}, {S_WLDS}, {r.ba[1]}\nv_add_u32 {wr2}, {S_WLDS}, {wr[1]}')
    p2.extend(fill)
    def frag_write(s, rb, D):
        if s == 0: return f'ds_write_b128 {wr[0]}, {D} offset:{KBASE + 3*16384 + 1024*rb}'
        if s == 1: return f'ds_write_b128 {wr[1]}, {D} offset:{1024*rb}'
        return f'ds_write_b128 {wr2}, {D} offset:{16384 + (s-2)*4096 + 1024*rb}'
    XN = r.ACC
    vq0 = [f'x{rb}' for rb in range(XF) for _ in range(4)] + ['pub']
    if PFF < 9: vq0.insert(4 * PFF, 'pf')
    e3 = Em(vq=vq0)
    for rb in range(XF, 4):
        for s in range(4):
            e3.vm(f'buffer_load_dwordx4 {X.sub(16*rb+4*s,4)}, {PFX}, {S_XS}, s21 offen offset:{64*s}', f'x{rb}')
        if rb < 3: e3(f's_xor_b32 s21, s21, {(rb ^ (rb + 1)) << 14}')
    PE = OPT.get('pe', 2)
    BAT = OPT.get('bat', 4)
    bulk2 = f'buffer_load_dword {PFD}, {PF}, {S_WQ}, s36 offen'
    def early_pf(e3):
        e3(f'v_cmp_gt_u32 vcc, {8*PE}, {lane}\nv_mov_b32 {t[4]}, 0x40000000\ns_nop 0\nv_cndmask_b32 {t[4]}, {t[4]}, {PF}, vcc')
        e3.vm(f'buffer_load_dword {PFD}, {t[4]}, {S_WQ}, s36 offen', 'pf0')
    if PE and PFF == 9:
        early_pf(e3)
    xs(e3, 'dma')
    dq = [(pre, ins) for h in range(6) for pre, ins in q_dma(h)]
    def dma_some(n):
        for _ in range(n):
            if not dq: return
            pre, ins = dq.pop(0)
            for x in pre: e3(x)
            if pre: e3('s_nop 0')
            e3.vm(ins, 'dma')
    DM = [int(c) for c in str(OPT.get('dm', '01222424'))[-8:]]
    Z4 = r.B1.sub(0, 4)
    RS = r.B1.sub(4, 4)
    GR = X.sub(0, 32)
    e3('s_mov_b32 s23, 0x3f803f80')
    e3(f'v_lshl_add_u32 {t[2]}, {wv}, 2, {r.ba[0]}\nv_add_u32 {t[2]}, {XBASE + 2048}, {t[2]}')
    e3(f'v_and_b32 {t[3]}, 15, {lane}\nv_lshlrev_b32 {t[3]}, 4, {t[3]}\nv_lshl_add_u32 {t[3]}, {wv}, 13, {t[3]}\nv_add_u32 {t[3]}, {XBASE + 2048}, {t[3]}')
    e3(f's_lshl_b32 s33, {S_WAVE}, 10\ns_add_u32 s33, s33, {WS_GR}')
    poll = []
    for i in range(8):
        poll += [f's_add_u32 s32, s33, {4096*i}', f'buffer_load_dwordx4 {GR.sub(4*i,4)}, {r.ba[0]}, {S_WS}, s32 offen sc1']
    def unpk(rb, k0, k1):
        for k in range(k0, k1):
            e3(f'v_lshlrev_b32 {XN[32*rb+2*k]}, 16, {X[16*rb+k]}\nv_and_b32 {XN[32*rb+2*k+1]}, 0xffff0000, {X[16*rb+k]}')
    for stg in range(2):
        for q in range(2):
            rb = 2 * stg + q
            e3.wait(vm=[f'x{rb}'])
            xs(e3, f'a{rb}')
            if rb == OPT.get('pollat', 2):
                for x in poll:
                    if x.startswith('s_'): e3(x)
                    else: e3.vm(x, 'gr')
            if rb == BAT and PFF == 9: e3.vm(bulk2, 'pf')
            for k in range(16):
                x = X[16*rb + k]
                a, b = (Z4[q], Z4[2+q]) if k % 2 == 0 else (t[0], t[1])
                e3(f'v_dot2_f32_bf16 {a}, {x}, s23, {a if k > 1 else 0}')
                e3(f'v_dot2_f32_bf16 {b}, {x}, {x}, {b if k > 1 else 0}')
                if k % 4 == 3: dma_some(DM[rb])
            unpk(rb, 0, 2 if q else 16)
            e3(f'v_add_f32 {Z4[q]}, {Z4[q]}, {t[0]}\nv_add_f32 {Z4[2+q]}, {Z4[2+q]}, {t[1]}')
        rb = 2 * stg + 1
        if stg: xs(e3, 'xin')
        unpk(rb, 2, 3)
        e3(f'v_permlane32_swap_b32 {Z4[0]}, {Z4[2]}\nv_permlane32_swap_b32 {Z4[1]}, {Z4[3]}')
        e3(f'v_add_f32 {Z4[0]}, {Z4[0]}, {Z4[2]}\nv_add_f32 {Z4[1]}, {Z4[1]}, {Z4[3]}')
        unpk(rb, 3, 4)
        e3(f'v_permlane16_swap_b32 {Z4[0]}, {Z4[1]}')
        e3(f'v_add_f32 {Z4[0]}, {Z4[0]}, {Z4[1]}')
        for c in range(4): e3(f'ds_write_b32 {t[2]}, {Z4[0]} offset:{8192*c + 1024*stg}')
        unpk(rb, 4, 8)
        e3('s_waitcnt lgkmcnt(0)\ns_barrier')
        ZZ = X.sub(32*stg, 16)
        for q in range(4): e3(f'ds_read_b128 {ZZ.sub(4*q, 4)}, {t[3]} offset:{256*q + 1024*stg}')
        dma_some(DM[4 + stg])
        unpk(rb, 8, 16)
        e3('s_waitcnt lgkmcnt(0)')
        for q in range(4): e3(f'v_add_f32 {ZZ[4*q]}, {ZZ[4*q]}, {ZZ[4*q+1]}\nv_add_f32 {ZZ[4*q+2]}, {ZZ[4*q+2]}, {ZZ[4*q+3]}')
        for q in range(4): e3(f'v_add_f32 {ZZ[4*q]}, {ZZ[4*q]}, {ZZ[4*q+2]}')
        for q in range(4): e3(f'v_mul_f32 {ZZ[4*q]}, {f32(1/512)}, {ZZ[4*q]}')
        for q in range(2): e3(f'v_fma_f32 {ZZ[8+4*q]}, -{ZZ[4*q]}, {ZZ[4*q]}, {ZZ[8+4*q]}')
        for q in range(2): e3(f'v_max_f32 {ZZ[8+4*q]}, 0, {ZZ[8+4*q]}')
        for q in range(2): e3(f'v_add_f32 {ZZ[8+4*q]}, {f32(1e-5)}, {ZZ[8+4*q]}')
        for q in range(2): e3(f'v_rsq_f32 {RS[2*q]}, {ZZ[8+4*q]}')
        e3('s_nop 0')
        for q in range(2): e3(f'v_mul_f32 {RS[2*q+1]}, -{ZZ[4*q]}, {RS[2*q]}')
        for q in range(2):
            for k in range(16):
                z = XN.sub(32*(2*stg+q) + 2*k, 2)
                e3(f'v_pk_fma_f32 {z}, {z}, {RS.sub(2*q, 2)}, {RS.sub(2*q, 2)} op_sel:[0,0,1] op_sel_hi:[1,0,1]')
            dma_some(DM[6 + stg])
    e3(f'v_lshlrev_b32 {t[2]}, 3, {lane}\nv_lshl_add_u32 {t[2]}, {wv}, 13, {t[2]}\nv_add_u32 {t[2]}, {XBASE}, {t[2]}')
    e3(f'v_lshrrev_b32 {t[3]}, 4, {lane}\nv_lshlrev_b32 {t[3]}, 5, {t[3]}\nv_lshl_add_u32 {t[3]}, {wv}, 13, {t[3]}\nv_add_u32 {t[3]}, {XBASE}, {t[3]}')
    if BAT == 4 and PFF == 9: e3.vm(bulk2, 'pf')
    xs(e3, 'norm')
    e3('s_mov_b32 s28, 0')
    e3.wait(vm=['gr'])
    p3.extend(e3.out)
    pl = Prog()
    pl(f'v_xor_b32 {t[0]}, {S_TAG}, {GR[1]}')
    for i in range(3, 32, 2): pl(f'v_bitop3_b32 {t[0]}, {t[0]}, {GR[i]}, {S_TAG} bitop3:0xf6')
    pl(f'v_cmp_ne_u32 vcc, 0, {t[0]}')
    pl(f's_add_u32 s28, s28, 1\ns_cmp_gt_u32 s28, {0x40000 if OPT.get("np", 192) >= 64 else 0}\ns_cbranch_scc1 L_gok')
    pl('s_cbranch_vccz L_gok')
    pl2 = Prog()
    for x in poll: pl2(x)
    pl2('s_waitcnt vmcnt(0)')
    pl2('s_branch L_gpoll')
    p4 = Prog()
    stampit(p4, 13)
    for j in (0, 2, 4, 6): p4(f'v_add_f32 {GR[j]}, {GR[j]}, {GR[8+j]}\nv_add_f32 {GR[16+j]}, {GR[16+j]}, {GR[24+j]}')
    for j in (0, 4): p4(f'v_add_f32 {GR[j]}, {GR[j]}, {GR[16+j]}\nv_add_f32 {GR[j+1]}, {GR[j+2]}, {GR[18+j]}')
    p4(f'ds_write_b64 {t[2]}, {GR.sub(0,2)}\nds_write_b64 {t[2]}, {GR.sub(4,2)} offset:512')
    SC = X
    p4('s_waitcnt lgkmcnt(0)')
    for s in range(4):
        for i in range(2):
            p4(f'ds_read_b128 {SC.sub(16*s+4*i,4)}, {t[3]} offset:{512 + 128*s + 16*i}')
            p4(f'ds_read_b128 {SC.sub(16*s+8+4*i,4)}, {t[3]} offset:{128*s + 16*i}')
        if s == 2: p4('s_waitcnt lgkmcnt(8)')
    for s in range(4):
        if s == 1: p4('s_waitcnt lgkmcnt(4)')
        for rb in range(4):
            z = XN.sub(32*rb + 8*s, 8)
            for k in range(4): p4(f'v_pk_fma_f32 {z.sub(2*k,2)}, {z.sub(2*k,2)}, {SC.sub(16*s+2*k,2)}, {SC.sub(16*s+8+2*k,2)}')
            for k in range(4): p4(f'v_cvt_pk_bf16_f32 {z[k]}, {z[2*k]}, {z[2*k+1]}')
            p4(frag_write(s, rb, z.sub(0, 4)))
            for _ in range(min(len(dq), 2 if len(dq) > 16 - 4*s - rb else 1)):
                pre, ins = dq.pop(0)
                for x in pre: p4(x)
                if pre: p4('s_nop 0')
                p4(ins)
    assert not dq
    for nt in range(8): p4(f'v_add_u32 {r.wa1q[nt]}, {VBASE}, {r.wa0[nt]}')
    if BAT == 5 and PFF == 9: p4(bulk2)
    p4('s_waitcnt lgkmcnt(0)')
    p4('s_barrier')
    stampit(p4, 1)
    ma2 = Prog()
    mod_addr(ma2, False, NA, NCA, t[2], 's32', 's33', 's34', 's35')
    xvm = {}
    kvpf = [([f's_lshr_b32 s37, s36, 13', 's_lshl_b32 s37, s37, 10'], f'buffer_load_dword {PFD}, {PF}, {S_KSRD}, s37 offen'),
            ([], f'buffer_load_dword {PFD}, {PF}, {S_VSRD}, s37 offen')]
    def q_finish(i):
        out = []
        for rb in range(4):
            for k in range(4):
                a = r.ACC.sub(16*(2*i + (k>>1)) + 4*rb, 4)
                out.append(f'v_cvt_pk_bf16_f32 {r.q(rb, i)[k]}, {a[2*(k&1)]}, {a[2*(k&1)+1]}')
        return out
    p4('@GEMM')
    p4(f's_add_u32 {S_SOFF}, {S_SOFF}, {S_STEP}')
    stampit(p4, 2)
    STG = r.B1.sub(0, 4); VF = r.B1.sub(4, 4)
    vB0, vC1, vRow, vCh, vR, vD, vTag, vOne = [r.B1[8 + i] for i in range(8)]
    N1A, N1B, N1R, N2R, N2A, N2B = 's[64:65]', 's[66:67]', 's68', 's69', 's[70:71]', 's[72:73]'
    SS, S0, S1, S2, S3, SD, SL1, SMB, SF, SFB, SA1, SA2, SX = 's74', 's75', 's76', 's77', 's83', 's78', 's79', 's80', 's81', 's84', 's85', 's86', 's87'
    S_U = 's82'
    su = Prog()
    su(f's_lshl_b32 {S_U}, s3, 2\ns_add_u32 {S_U}, {S_U}, {S_WAVE}')
    su(f's_lshl_b32 {SMB}, {S_WAVE}, 13\ns_add_u32 {SMB}, {SMB}, {XBASE}')
    su(f's_lshr_b32 s28, {S_U}, 3\ns_lshl_b32 s28, s28, 15\ns_and_b32 s29, {S_U}, 7\ns_lshl_b32 s29, s29, 7\ns_add_u32 s28, s28, s29')
    su(f's_add_u32 s50, s50, s28\ns_addc_u32 s51, s51, 0')
    su(f's_mul_i32 s29, s22, {224*1024}\ns_add_u32 s28, s28, s29')
    su(f's_cmp_lt_u32 {S_U}, 56\ns_cselect_b32 s28, s28, 0\ns_cselect_b32 {N1R}, {32*1024 - 896}, 0')
    su('s_add_u32 s64, s90, s28\ns_addc_u32 s65, s91, 0\ns_add_u32 s66, s64, 64\ns_addc_u32 s67, s65, 0')
    su(f's_and_b32 s28, {S_U}, 15\ns_mul_i32 s28, s28, {32*3584}\ns_lshr_b32 s29, {S_U}, 4\ns_lshl_b32 s29, s29, 6\ns_add_u32 s28, s28, s29')
    su(f's_mul_i32 s29, s22, 448\ns_add_u32 s28, s28, s29')
    su(f's_cmp_lt_u32 {S_U}, 112\ns_cselect_b32 s28, s28, 0\ns_cselect_b32 {N2R}, {31*3584 + 64}, 0')
    su('s_add_u32 s70, s92, s28\ns_addc_u32 s71, s93, 0\ns_add_u32 s72, s94, s28\ns_addc_u32 s73, s95, 0')
    su(f's_mul_i32 s23, s22, {WF_G}\ns_add_u32 s23, s23, {WS_WF}')
    su(f's_mov_b32 {SS}, {IDLE}\ns_mov_b32 {S0}, {IDLE}\ns_mov_b32 {SD}, 0')
    su(f's_and_b32 s28, {S_U}, 7\ns_lshr_b32 s29, {S_U}, 3\ns_lshl_b32 s29, s29, 10\ns_add_u32 s29, s29, s23')
    su(f's_lshl_b32 {S1}, s28, 16\ns_add_u32 {S1}, {S1}, s29')
    su(f's_mul_i32 {S2}, s28, {28*1024}\ns_add_u32 {S2}, {S2}, s29\ns_add_u32 {S2}, {S2}, {960*1024}')
    su(f's_cmp_lt_u32 {S_U}, 56\ns_cselect_b32 {S2}, {S2}, {IDLE}')
    su(f's_lshr_b32 s28, {S_U}, 4\ns_lshl_b32 s28, s28, 16\ns_and_b32 s29, {S_U}, 15\ns_lshl_b32 s29, s29, 10\ns_add_u32 {S3}, s28, s29')
    su(f's_add_u32 {S3}, {S3}, s23\ns_add_u32 {S3}, {S3}, {512*1024}')
    su(f's_cmp_lt_u32 {S_U}, 112\ns_cselect_b32 {S3}, {S3}, {IDLE}')
    su(f's_mov_b32 {SL1}, 16384\ns_mov_b32 {SA1}, 32\ns_mov_b32 {SA2}, 2016')
    su(f's_lshl_b32 {SFB}, s2, 2\ns_add_u32 {SFB}, {SFB}, {WS_PFLAG}')
    su(f's_cmp_eq_u32 {S_WAVE}, 0\ns_cselect_b32 {SFB}, {SFB}, {IDLE}\ns_mov_b32 s21, {WS_PFLAG}')
    vu = Prog()
    vu(f'v_lshrrev_b32 {vRow}, 2, {lane}\nv_and_b32 {vCh}, 3, {lane}\nv_lshrrev_b32 {vC1}, 1, {vCh}\nv_lshlrev_b32 {vCh}, 4, {vCh}')
    vu(f'v_and_b32 {vB0}, 1, {lane}\nv_lshlrev_b32 {vB0}, 3, {vB0}\nv_lshl_add_u32 {vB0}, {vRow}, 6, {vB0}\nv_add_u32 {vB0}, {SMB}, {vB0}')
    vu(f'v_xor_b32 {vB0}, 4096, {vB0}')
    vu(f'v_mov_b32 {vR}, {vB0}\nv_lshl_add_u32 {vD}, {vRow}, 10, {vCh}\nv_mov_b32 {vTag}, {S_TAG}\nv_min_u32 {vOne}, 1, {lane}\nv_lshlrev_b32 {vOne}, 30, {vOne}')
    tail_setup(r, vu, r.P.sub(16, 8))
    body = []; tails = None
    for idx, j4 in enumerate((3, 0, 1, 2)):
        ex = {}
        srdx = S_PA if idx < 2 else S_PB
        x33 = [[f's_add_u32 m0, {SMB}, {1024*idx}', f'buffer_store_dwordx4 {STG}, {r.ba[0]}, {S_WS}, {SS} offen sc1'],
               [f'buffer_load_dwordx4 {vD}, {srdx}, {SL1 if idx & 1 else 0} offen lds']]
        x97 = [[f'ds_read_b64_tr_b16 {STG.sub(0,2)}, {vR}'], [f'ds_read_b64_tr_b16 {STG.sub(2,2)}, {vR} offset:1024']]
        sal = []
        over = None
        if idx == 0:
            sal = [f's_mov_b32 {SS}, {S0}', f's_mov_b32 {S0}, {S1}', f's_mov_b32 {S1}, {S2}', f's_mov_b32 {S2}, {S3}', f's_mov_b32 {S3}, {IDLE}',
                   f's_cmp_eq_u32 {S_CNT}, 6', f's_cselect_b32 {SD}, 7, 16', f's_lshl_b32 {SD}, {SD}, 10',
                   f's_cmp_eq_u32 {S_CNT}, 3', f's_cselect_b32 {SF}, {SFB}, {IDLE}', f's_cmp_eq_u32 {S_CNT}, 2', f's_cselect_b32 s50, s21, {IDLE}']
            x97[0].append(f'v_xor_b32 {vB0}, 4096, {vB0}')
            x97[1].append(f'v_add_u32 {vR}, {SA1}, {vR}')
        else:
            sal = [f's_add_u32 {SS}, {SS}, {SD}']
        if idx == 1:
            x97[1].append(f'v_add_u32 {vR}, {SA2}, {vR}')
            over = {9: [f'buffer_store_dword {vTag}, {vOne}, {S_WS}, {SF} offen sc1']}
        if idx == 2:
            x97[1].append(f'v_add_u32 {vR}, {SA1}, {vR}')
            over = {9: [f'buffer_load_dwordx4 {VF}, {r.ba[0]}, {S_WS}, s50 offen sc1']}
        if idx == 3:
            sal += [f's_mov_b64 s[40:41], {N1A}', f's_mov_b64 s[60:61], {N1B}', f's_mov_b32 s42, {N1R}', f's_mov_b32 s62, {N1R}',
                    f's_mov_b64 {N1A}, {N2A}', f's_mov_b64 {N1B}, {N2B}', f's_mov_b32 {N1R}, {N2R}', f's_mov_b32 {N2R}, 0',
                    f's_xor_b32 {SMB}, {SMB}, 4096',
                    f's_cmp_eq_u32 {S_CNT}, 7', 's_cselect_b32 s51, 7, 2', 's_lshl_b32 s51, s51, 9', f's_lshl_b32 {SL1}, s51, 4',
                    f's_cmp_eq_u32 {S_CNT}, 6', f's_cselect_b32 {SX}, 2048, 16', f's_cselect_b32 {SA1}, 16, 32', f's_cselect_b32 {SA2}, 16, 2016']
            x97[0].append(f'v_mad_u32_u24 {vD}, {vRow}, s51, {vCh}')
            x97[1].append(f'v_mad_u32_u24 {vR}, {vC1}, {SX}, {vB0}')
            ex.update({120: [f's_sub_u32 {S_CNT}, {S_CNT}, 1'], 122: [f's_cmp_lg_u32 {S_CNT}, 1']})
        for k, x in enumerate(sal): ex[36 + 2*k] = [x]
        vmn = (10, 13, 13, 12)[idx]
        if OPT.get('itst'):
            ex[4] = ['s_memtime s[96:97]']
            ex[6] = [f's_lshl_b32 s98, {S_CNT}, 2', f's_sub_u32 s98, {32 + idx}, s98']
            ex[16] = [f'v_cmp_eq_u32 vcc, s98, v0', f'v_mov_b32 v250, s96', 's_nop 1', f'v_cndmask_b32 v8, v8, v250, vcc']
        o, tails = iteration(r, j4, ex, x33, x97, vmn, over)
        body += o
    NU = r.P.sub(0, 8); NAc = r.P.sub(8, 8)
    sg = Prog()
    sg.extend([x for x in ma2.lines if x.startswith('s_')] + ['s_mov_b32 s4, s86', 's_mov_b32 s5, s87', f's_mov_b32 s6, {512*6144}', 's_mov_b32 s7, 0x20000'])
    sg('s_lshr_b32 s29, s34, 4\ns_cmp_eq_u32 s29, 2\ns_cselect_b32 s18, 1.0, 0\ns_cmp_eq_u32 s35, 0\ns_cselect_b32 s18, s18, 0')
    sg(f's_lshl_b32 s34, s34, 7\ns_lshl_b32 s35, s35, 13\ns_add_u32 s34, s34, s35\ns_add_u32 s34, s34, {WS_MODP}\ns_mov_b32 s35, s18')
    sg(f's_cmp_eq_u32 {S_WAVE}, 0\ns_cselect_b32 s34, s34, {IDLE}')
    sg.extend(su)
    vsal = [x for x in vu.lines if x.startswith('s_')]
    sg.extend(vsal)
    vu.lines = [x for x in vu.lines if not x.startswith('s_')]
    k_ = p4.lines.index('@GEMM')
    p4.lines[k_:k_+1] = gemm(r, r.wa0, r.wa1q, qslot, q_dma, q_finish, late.lines + [x for x in ma2.lines if x.startswith('v_')] + zero_ov(), xvm, int(BAT == 5 and PFF == 9), list(sg.lines))
    p4(f's_mov_b64 s[40:41], s[50:51]\ns_mov_b32 s42, {32*1024 - 896}')
    p4(f's_add_u32 s60, s40, 64\ns_addc_u32 s61, s41, 0\ns_mov_b32 s62, {32*1024 - 896}')
    p4('s_waitcnt vmcnt(11)')
    p4('s_barrier')
    kr = k_reads(r, 0)
    for d in kr[:15]: p4(d)
    vul = list(vu.lines)
    for x in vul[:16]: p4(x)
    vul = vul[16:]
    p4('s_waitcnt lgkmcnt(11)')
    for qb in range(4):
        for ds in range(4):
            c = '0' if ds == 0 else r.s(qb, 0)
            p4(f'{MF} {r.s(qb, 0)}, {r.kf(0, ds)}, {r.q(qb, ds)}, {c}')
            for x in vul[:2]: p4(x)
            vul = vul[2:]
    for x in vul: p4(x)
    for qb in range(4):
        s = r.s(qb, 0); x = r.nm(qb)
        if qb == 3: p4('s_nop 1')
        p4(f'v_max3_f32 {x[0]}, {s[0]}, {s[1]}, {s[2]}')
        p4(f'v_max_f32 {x[0]}, {x[0]}, {s[3]}')
    p4('s_waitcnt vmcnt(0)')
    mod_compute(p4, False, NW, NC, NU, NAc, t[0], 0, True)
    p4(f'v_and_b32 {NAc[2]}, 3, {lane}\nv_bfe_u32 {NAc[3]}, {lane}, 2, 2\nv_lshl_add_u32 {NAc[2]}, {NAc[3]}, 3, {NAc[2]}\nv_bfe_u32 {NAc[3]}, {lane}, 4, 1\nv_lshl_add_u32 {NAc[2]}, {NAc[3]}, 2, {NAc[2]}')
    p4(f'v_lshlrev_b32 {NAc[2]}, 2, {NAc[2]}\nv_lshrrev_b32 {NAc[3]}, 5, {lane}\nv_lshl_add_u32 {NAc[2]}, {NAc[3]}, 30, {NAc[2]}')
    p4(f'v_lshlrev_b32 {t[0]}, 2, {lane}\nv_add_u32 {t[0]}, {XBASE + 4096}, {t[0]}')
    p4('s_waitcnt lgkmcnt(0)')
    p4('s_barrier')
    for w_ in range(4): p4(f'ds_read_b32 {NU[w_]}, {t[0]} offset:{256*w_}')
    nfin = Prog()
    nfin(f'v_add_f32 {NU[0]}, {NU[0]}, {NU[1]}\nv_add_f32 {NU[2]}, {NU[2]}, {NU[3]}\nv_add_f32 {NU[0]}, {NU[0]}, {NU[2]}\nv_add_f32 {NU[0]}, s35, {NU[0]}')
    nfin(f'buffer_store_dword {NU[0]}, {NAc[2]}, {S_WS}, s34 offen sc1')
    nfin(f's_mov_b32 s34, {IDLE}')
    ent = Prog()
    for qb in range(4): x = r.nm(qb); ent(f'v_mov_b32 {x[1]}, {x[0]}')
    for qb in range(4): x = r.nm(qb); ent(f'v_permlane32_swap_b32 {x[0]}, {x[1]}')
    for qb in range(4): x = r.nm(qb); ent(f'v_max_f32 {x[0]}, {x[0]}, {x[1]}')
    for qb in range(4): x = r.nm(qb); ent(f'v_mov_b32 {x[1]}, {x[0]}')
    for qb in range(4): x = r.nm(qb); ent(f'v_permlane16_swap_b32 {x[0]}, {x[1]}')
    for qb in range(4): x = r.nm(qb); ent(f'v_max_f32 {x[0]}, {x[0]}, {x[1]}')
    for qb in range(4):
        x = r.nm(qb)
        for i in (1, 2, 3, 0): ent(f'v_sub_f32 {x[i]}, 0, {x[0]}')
    exp_tail = {x.split()[1].rstrip(',') for x in tails if x.startswith('v_exp')}
    used = set()
    for x in tails:
        for tok in x.replace(',', ' ').split()[1:]: used.add(tok)
    for i in range(32, 64):
        if str(r.S[i]) in used:
            ent(f'v_mov_b32 {r.S[i]}, {"0xff800000" if str(r.S[i]) in exp_tail else "0"}')
    for i in range(16, 32): ent(f'v_mov_b32 {r.P[i]}, 0')
    for i in range(8): ent(f'v_mov_b32 {r.lm[i]}, 0')
    for i in range(4): ent(f'v_mov_b32 {r.la[i]}, 0')
    for i in range(4): ent(f'v_mov_b32 {r.ones[i]}, 0x3f803f80')
    ent(f's_mov_b32 {S_CNT}, 8')
    ent('s_waitcnt lgkmcnt(0)')
    ent.extend(nfin)
    xs(ent, 'ent')
    chk = [f'v_xor_b32 {t[0]}, {vTag}, {VF[0]}'] + [f'v_bitop3_b32 {t[0]}, {t[0]}, {VF[i]}, {vTag} bitop3:0xf6' for i in (1, 2, 3)] + [f'v_cmp_ne_u32 vcc, 0, {t[0]}']
    h = Prog()
    h('s_mov_b32 s28, 0')
    h('L_pchk:')
    h(f'buffer_load_dwordx4 {VF}, {r.ba[0]}, {S_WS}, s21 offen sc1')
    h('s_waitcnt vmcnt(0)')
    h.extend(chk)
    h('s_add_u32 s28, s28, 1\ns_cmp_gt_u32 s28, 0x40000\ns_cbranch_scc1 L_back')
    h('s_cbranch_vccnz L_pchk')
    share = WF_G // (128 // NG)
    pfs = OPT.get('pfs', 6)
    span = 64 << pfs
    npf = (share + span - 1) // span
    XR = R('v', 216, 8)
    salc = [f's_mul_i32 s23, s22, {WF_G}', f's_add_u32 s23, s23, {WS_WF}',
            f's_and_b32 s29, {S_U}, {128 // NG - 1}', f's_mul_i32 s29, s29, {share}', 's_add_u32 s74, s23, s29',
            f's_mov_b32 s75, {WS_EPOCH}', 's_cmp_eq_u32 s2, 0', f's_cselect_b32 s75, s75, {IDLE}',
            f's_lshl_b32 s76, {S_WAVE}, 17', 's_add_u32 s76, s76, s23']
    salc2 = ['s_mov_b32 s60, s88', 's_mov_b32 s61, s89', f's_mov_b32 s62, L_codeend-{name}-128', f's_lshr_b32 s77, {S_HW}, 3', 's_lshl_b32 s77, s77, 12',
             f's_lshl_b32 s78, {S_WAVE}, 11', f's_add_u32 s78, s78, {WS_MODP}', f's_lshl_b32 s79, {S_WAVE}, 13', f's_add_u32 s79, s79, {XBASE}']
    xq = []
    pfd = [STG[0], STG[1], STG[2], STG[3], vB0]
    for i in range(npf):
        post = [f's_add_u32 s74, s74, {span if i < npf - 2 else share - (npf - 1) * span}'] if i < npf - 1 else []
        xq.append([f'buffer_load_dword {pfd[i]}, {vD}, {S_WS}, s74 offen sc1'] + post)
    xq.append([f'buffer_load_dword {vC1}, {vR}, s[60:63], s77 offen'])
    xq.append([f'buffer_store_dword {vTag}, {vOne}, {S_WS}, s75 offen sc1'])
    for q in range(4):
        for i in range(2):
            xq.append([f's_add_u32 m0, s79, {2048*q}', 's_nop 0', f'buffer_load_dwordx4 {r.ba[0]}, {S_WS}, s78 offen offset:{1024*i} sc1 lds'] + (['s_add_u32 s78, s78, 8192'] if i else []))
    xl = [f'buffer_load_dwordx2 {XR.sub(4*i+2*u, 2)}, v240, {S_XS}, s39 offen offset:{128*i + 32*u}' for i in range(2) for u in range(2)]
    kfl = []
    for i in range(16):
        off = a_off(i)[1]
        kfl.append(([f's_add_u32 s28, s76, {off}'] if i % 4 == 0 else []) + [f'buffer_load_dwordx4 {a_regs()[i]}, {r.ba[0]}, {S_WS}, s28 offen offset:{1024*(i%4)} sc1'])
    bodyc = []
    for idx, j4 in enumerate((3, 0, 1, 2)):
        ex, over, dm_ = {}, {}, None
        if idx == 0:
            over = {5: chk, 9: [f'v_lshlrev_b32 {vD}, {pfs}, {lane}', f'v_and_b32 {vR}, 15, {lane}', f'v_lshlrev_b32 {vR}, 6, {vR}', f'v_lshl_add_u32 {vR}, {wv}, 10, {vR}']}
            ex[8] = ['s_cbranch_vccnz L_hook', 'L_back:']
            for k, g in zip(range(len(salc)), (4, 6, 10, 12, 16, 20, 22, 24, 26, 28)): ex[g] = [salc[k]]
            for k, x in enumerate(salc2): ex[36 + 2*k] = [x]
        if idx >= 2:
            dm_ = []
            for half in range(2):
                for pp in range(4):
                    pre = [f's_add_u32 s29, s76, {idx*4096 + half*16384}', f's_add_u32 m0, {S_WLDS}, {(VBASE if half else KBASE) + (idx-2)*16384}'] if pp == 0 else []
                    dm_.append((pre, f'buffer_load_dwordx4 {r.ba[0]}, {S_WS}, s29 offen offset:{1024*pp} sc1 lds'))
        pop = lambda: xq.pop(0) if xq else []
        x33 = [pop(), pop()]
        x97 = [pop(), pop()]
        if idx == 3:
            for k, x in enumerate(xl): over[44 + 12*k] = [x]
            for k in range(7): over[99 + 4*k + (k > 3) * 2] = kfl.pop(0)
        if OPT.get('itst'):
            ex[4] = ex.get(4, []) + ['s_memtime s[96:97]']
            ex[18] = [f'v_writelane_b32 v8, s96, {28 + idx}']
        o, tl2 = iteration(r, j4, ex, x33, x97, 'X' if idx < 3 else None, over, dm_, idx == 3)
        assert tl2 == tails
        bodyc += o
    assert not xq
    full = body + bodyc
    iskv = lambda x: x.startswith('buffer_load') and (str(S_KSRD) in x or str(S_VSRD) in x)
    bars = [i for i, x in enumerate(full) if x == 's_barrier']
    for i, x in enumerate(full):
        if x == 's_waitcnt vmcnt(X)':
            pb = max(b for b in bars if b < i)
            lastkv = max(k for k in range(pb) if iskv(full[k]))
            full[i] = f's_waitcnt vmcnt({sum(1 for k in range(lastkv + 1, i) if full[k].startswith("buffer_"))})'
    bodyc = full[len(body):]
    epi = Prog()
    stampit(epi, 3)
    for x in tails:
        epi(x)
        if x.startswith('v_exp'): epi('s_nop 0')
    inv = [t[0], t[1], t[2], t[3]]
    va = []
    for pair in range(2): va.append(f'v_add_f32 {inv[2*pair]}, {r.la[2*pair]}, {r.la[2*pair+1]}')
    for pair in range(2): va.append(f'v_mov_b32 {t[4+pair]}, {inv[2*pair]}')
    va.append('s_nop 0')
    for pair in range(2): va.append(f'v_permlane32_swap_b32 {inv[2*pair]}, {t[4+pair]}')
    for pair in range(2): va.append(f'v_add_f32 {inv[2*pair]}, {inv[2*pair]}, {t[4+pair]}')
    for pair in range(2): va.append(f'v_mov_b32 {t[4+pair]}, {inv[2*pair]}')
    va.append('s_nop 0')
    for pair in range(2): va.append(f'v_permlane16_swap_b32 {inv[2*pair]}, {t[4+pair]}')
    for pair in range(2): va.append(f'v_add_f32 {inv[2*pair]}, {inv[2*pair]}, {t[4+pair]}')
    va.append(f'v_add_f32 {t[4]}, {inv[0]}, {inv[2]}')
    va.append(f'v_add_f32 {t[5]}, {r.lm[0]}, {r.lm[4]}')
    va.append(f'v_add_f32 {t[4]}, {t[4]}, {t[5]}')
    va.append(f'v_cmp_ngt_f32 vcc, 0x4e800000, {t[4]}')
    va.append(f'v_rcp_f32 {inv[0]}, {inv[0]}')
    va.append(f'v_rcp_f32 {inv[1]}, {r.lm[0]}')
    va.append(f's_cmp_lg_u64 vcc, 0')
    va.append(f's_cselect_b32 s29, 1, 0')
    va.append(f'v_and_b32 {t[4]}, 3, {lane}')
    va.append(f'v_lshlrev_b32 {t[4]}, 13, {t[4]}')
    va.append(f'v_lshl_add_u32 {t[4]}, {wv}, 2, {t[4]}')
    va.append(f'v_mov_b32 {t[5]}, s29')
    va.append(f'ds_write_b32 {t[4]}, {t[5]} offset:{KBASE + 2*16384}')
    va.append(f'v_rcp_f32 {inv[2]}, {inv[2]}')
    va.append(f'v_rcp_f32 {inv[3]}, {r.lm[4]}')
    va.append(f'v_lshlrev_b32 {t[4]}, 13, {wv}')
    va.append(f'v_add_u32 {wr[1]}, {S_WLDS}, {wr[0]}')
    va.append(f'v_add_u32 {wr2}, {VBASE + 2*16384}, {wr[1]}')
    va.append('s_waitcnt lgkmcnt(0)')
    va.append('s_barrier')
    FL = r.B1.sub(0, 4)
    va.append(f'ds_read_b128 {FL}, {t[4]} offset:{KBASE + 2*16384}')
    def norm(qb, s):
        T8 = r.S.sub(8 * ((qb * 4 + s) % 4), 8); D = r.S.sub(32 + 4 * ((qb * 4 + s) % 8), 4)
        o = []
        for i in range(8): o.append(f'v_accvgpr_read_b32 {T8[i]}, {r.O[32*qb + 8*s + i]}')
        if (qb, s) == (0, 0):
            for i in range(8): o.append(f'v_mul_f32 {T8[i]}, {T8[i]}, {inv[qb]}')
        else:
            ip = t.sub(qb & 2, 2); hi = qb & 1
            for i in range(4): o.append(f'v_pk_mul_f32 {T8.sub(2*i,2)}, {T8.sub(2*i,2)}, {ip} op_sel:[0,{hi}] op_sel_hi:[1,{hi}]')
        for i in range(4): o.append(f'v_cvt_pk_bf16_f32 {D[i]}, {T8[2*i]}, {T8[2*i+1]}')
        if s < 2: o.append(f'ds_write_b128 {wr[1]}, {D} offset:{KBASE + 2*16384 + 4096*s + 1024*qb}')
        else: o.append(f'ds_write_b128 {wr2}, {D} offset:{4096*(s-2) + 1024*qb}')
        return o
    va += norm(0, 0)
    va.append('s_waitcnt lgkmcnt(1)')
    va.append(f'v_or3_b32 {FL[0]}, {FL[0]}, {FL[1]}, {FL[2]}')
    va.append(f'v_or_b32 {FL[0]}, {FL[0]}, {FL[3]}')
    va.append('s_nop 0')
    va.append(f'v_readfirstlane_b32 s29, {FL[0]}')
    mf = [msum(r, 1, 0), msum(r, 1, 1)] + pv_mfmas(r, 1)
    epi('s_nop 0')
    for n, m in enumerate(mf):
        epi(m)
        if n % 4 == 0 and kfl and not (va and va[0].startswith('s_cselect')):
            epi.extend(kfl.pop(0)); continue
        k = 0
        while va and k < 2:
            x = va.pop(0); epi(x)
            k += 2 if x.startswith(('v_rcp', 'ds_')) else (0 if x.startswith('s_') else 1)
    for x in va: epi(x)
    epi('s_nop 1')
    epi(f's_andn2_b32 s29, s29, {S_PASS}')
    epi('s_cbranch_scc1 L_fallback')
    lastpre = max(k for k, x in enumerate(bodyc) if 's29 offen' in x and x.endswith('lds'))
    assert not kfl
    vq_ = ['pre']; na = 0
    for x in bodyc[lastpre + 1:] + epi.lines:
        if x.startswith('buffer_'):
            if x.startswith('buffer_load_dwordx4 a['): vq_.append(('A', na)); na += 1
            else: vq_.append('old')
    assert na == 16
    e = Em(vq=vq_)
    st = AStream(a_regs(), r.ba[0])
    e(f's_mov_b32 {S_BW}, s76')
    e(f's_mul_i32 {S_BG}, {S_WAVE}, {7*16*1024}\ns_add_u32 {S_BG}, {S_BG}, s23\ns_add_u32 {S_BG}, {S_BG}, {512*1024}')
    e(f's_mul_i32 {S_BD}, {S_WAVE}, {56*1024}\ns_add_u32 {S_BD}, {S_BD}, s23\ns_add_u32 {S_BD}, {S_BD}, {960*1024}')
    st.skip(32)
    LA = R('v', 204)
    e(f'v_add_u32 {LA}, {VBASE}, {wr[0]}')
    e(f'v_add_u32 {r.ba[1]}, {VBASE + 2*16384}, {r.ba[0]}')
    e.wait(vm=['pre'])
    slot = lambda i: (LA if i & 4 else wr[0], (i >> 3) * 16384 + (i & 3) * 1024)
    for i in range(16):
        e(f'ds_read_b128 {st.regs[16 + i]}, {slot(i)[0]} offset:{slot(i)[1]}')
        e.seen.add(('A', 16 + i))
        if i == 7: e('s_waitcnt lgkmcnt(4)')
    lg = [int(x) for x in str(OPT.get('lg', '52_68_84_100')).split('_') if x]
    assert not lg or lg[0] <= 56
    ld = []
    for k, g0 in enumerate(lg):
        b_, off = a_off(g0)
        for j in range(4):
            st.lds[g0 + j] = slot(4*k + j)
            pre = [f's_add_u32 s29, {b_}, {off}', f's_add_u32 m0, {S_WLDS}, {(VBASE if k & 1 else KBASE) + (k >> 1)*16384}', 's_nop 0'] if j == 0 else []
            ld.append((pre, f'buffer_load_dwordx4 {r.ba[0]}, {S_WS}, s29 offen offset:{1024*j} sc1 lds', ('L', g0 + j)))
    nt_ = OPT.get('lt', 0)
    st.ldq = ld[nt_:]; ld = ld[:nt_]
    first = True
    for qb in range(4):
        for s in range(4):
            nn = norm(qb, s) if (qb, s) != (0, 0) else []
            for half in range(2):
                if half and len(ld) + 48 - st.n <= 15 - 4*qb - s: pass
                elif st.n < 48: st.issue(e)
                elif ld:
                    if first: e('s_waitcnt lgkmcnt(6)'); first = False
                    pre, ins, tag = ld.pop(0)
                    for x in pre: e(x)
                    e.vm(ins, tag)
                for x in (nn[8:] if half else nn[:8]): e(x)
    assert not ld
    e(f's_lshl_b32 s28, s22, 21\ns_lshl_b32 s29, s3, 16\ns_add_u32 s28, s28, s29\ns_add_u32 s28, s28, {S_WLDS}\ns_add_u32 s28, s28, {WS_PART}')
    e('s_lshr_b32 s29, s22, 1\ns_lshl_b32 s29, s29, 14\ns_add_u32 s32, s28, s29')
    for i in range(1, 4): e(f's_xor_b32 s{32+i}, s32, {16384*i}')
    e('s_waitcnt lgkmcnt(0)')
    e('s_barrier')
    stampit(e, 4)
    tail(r, e, st, stampit)
    if stamp:
        e('s_waitcnt vmcnt(0)')
        stampit(e, 12)
        e(f's_lshl_b32 s30, {S_HW}, 10\ns_lshl_b32 s29, {S_WAVE}, 8\ns_add_u32 s30, s30, s29\ns_add_u32 s30, s30, {WS_STAMP}')
        e(f'v_lshlrev_b32 {t[0]}, 2, v0')
        e(f'buffer_store_dword {STV}, {t[0]}, {S_WS}, s30 offen')
    if OPT.get('spin'):
        a_, b_ = OPT['spin'].split('_')
        e(f's_cmp_lg_u32 {S_HW}, {OPT.get("spinwg", 100)}\ns_cbranch_scc1 L_end')
        e(f'v_readlane_b32 s4, {STV}, {33+2*int(a_)}\nv_readlane_b32 s5, {STV}, {33+2*int(b_)}\nv_readlane_b32 s6, {STV}, 33\ns_nop 3')
        e(f's_sub_u32 s28, s5, s4\ns_mul_i32 s28, s28, {OPT.get("spinx", 1)}\ns_add_u32 s28, s28, 15000\ns_add_u32 s28, s28, s6')
        e('L_spin:\ns_memrealtime s[96:97]\ns_waitcnt lgkmcnt(0)\ns_sub_u32 s29, s96, s28\ns_cmp_lt_i32 s29, 0\ns_cbranch_scc1 L_spin')
    epi.extend(e.out)
    fb = Prog()
    fb('s_waitcnt vmcnt(0) lgkmcnt(0)')
    fb('s_barrier')
    set_kv_srd(fb)
    setup_dma_kv(fb, r, lane, wv)
    fb(f's_mov_b64 s[60:61], s[40:41]\ns_mov_b32 s62, 0')
    for x in (SS, S0, S1, S2): fb(f's_mov_b32 {x}, {IDLE}')
    fb(f's_mov_b32 {SD}, 0\ns_mov_b32 {SL1}, 0')
    fb(f'v_mov_b32 {vB0}, {XBASE}\nv_mov_b32 {vR}, {XBASE}\nv_mov_b32 {vC1}, 0')
    for qb in range(4): fb(f'v_mov_b32 {r.nm(qb)[0]}, 0xff800000')
    fb(f's_mov_b32 {S_CNT}, 32')
    fl = Prog()
    for pre, ins in dma_tile(r, 0)[:4]:
        for x in pre: fl(x); fl('s_nop 0')
        fl(ins)
    fl(f's_add_u32 {S_SOFF}, {S_SOFF}, {S_STEP}')
    fl('s_waitcnt vmcnt(0)')
    fl('s_barrier')
    for d in kr[:8]: fl(d)
    fl('s_waitcnt lgkmcnt(0)')
    for d in kr[8:]: fl(d)
    fl('s_waitcnt lgkmcnt(0)')
    fl('s_barrier')
    for kb in range(4):
        for qb in range(4):
            for ds in range(4):
                c = '0' if ds == 0 else r.s(qb, kb)
                fl(f'{MF} {r.s(qb, kb)}, {r.kf(kb, ds)}, {r.q(qb, ds)}, {c}')
    fl('s_nop 7')
    for kb in range(4):
        for qb in range(4):
            s = r.s(qb, kb); x = r.nm(qb)[0]
            fl(f'v_max3_f32 {x}, {x}, {s[0]}, {s[1]}')
            fl(f'v_max3_f32 {x}, {x}, {s[2]}, {s[3]}')
    fl(f's_sub_u32 {S_CNT}, {S_CNT}, 1')
    fl(f's_cmp_lg_u32 {S_CNT}, 0')
    fe = Prog()
    fe(f's_mov_b32 {S_SOFF}, 0\ns_mov_b32 {S_PASS}, 1')
    for tt in range(2):
        for pre, ins in dma_tile(r, tt):
            for x in pre: fe(x); fe('s_nop 0')
            fe(ins)
        fe(f's_add_u32 {S_SOFF}, {S_SOFF}, {S_STEP}')
    fe.extend(zero_ov())
    fe('s_waitcnt vmcnt(8)')
    fe('s_barrier')
    for d in kr[:15]: fe(d)
    def with_hook(b, blk):
        i = b.index('L_back:')
        return b[:i] + blk.lines + ['s_branch L_back'] + b[i:]
    br = ['s_cbranch_scc1 L_loop']
    bp = [f's_cmp_ge_u32 {S_HW}, 192', 's_cbranch_scc1 x']
    rest = p3.lines + pl.lines + pl2.lines + pl.lines + p4.lines + ent.lines + body + br
    check_trace(pro.lines + p2.lines + pm2.lines + rest + body + br + bodyc + epi.lines, 'main')
    check_trace(body + br + with_hook(bodyc, h), 'hook')
    check_trace(pro.lines + p2.lines + pm2.lines + p3.lines + pl.lines + p4.lines + ent.lines + body, 'nonproducer')
    i = epi.lines.index('s_cbranch_scc1 L_fallback')
    check_trace(bodyc + epi.lines[:i+1] + fb.lines + fl.lines + br + fl.lines + br + fe.lines + ['s_branch x'] + ent.lines + body, 'fallback')
    p = Prog()
    p(f'.globl {name}\n.p2align 8\n.type {name},@function\n{name}:')
    p.extend(pro)
    p.extend(p2)
    p.extend(pm2)
    p.extend(p3)
    p('L_gpoll:')
    p.extend(pl); p.extend(pl2)
    p('L_gok:')
    p.extend(p4)
    p('L_entry:')
    p.extend(ent)
    p('.p2align 6\nL_loop:')
    p.extend(body)
    p('s_cbranch_scc1 L_loop')
    p.extend(bodyc)
    p('L_epi:')
    p.extend(epi)
    p('L_end:\ns_endpgm')
    p('L_hook:')
    p.extend(h)
    p('s_branch L_back')
    p('L_fallback:')
    p.extend(fb)
    p('L_fbloop:')
    p.extend(fl)
    p('s_cbranch_scc1 L_fbloop')
    p.extend(fe)
    p('s_branch L_entry')
    p('L_codeend:')
    return p, kernel_footer(name, 256, 256, 100)
```

```python
from gen_attn import *
from layout import *
from sched import Em
from gen_small import ln_stats, ln_addr, unpack, f32

S_WS = R('s', 24, 4)
S_AOFF = R('s', 31)
S_TAG = R('s', 45)
S_XS = R('s', 52, 4)
S_OS = R('s', 56, 4)
OPT = dict(ng=2, opace=5, gpace=4, dpace=3, pre1=6, pre1b=14, pre2=14, pre2b=18, asc='sc1', pfsc='sc1', nostore=False)
H2B, ACTB, LNB, MODB = 0, 65536, 20480, XBASE
VST0, OWA, ORA = R('v', 245), R('v', 246), R('v', 247)
OWNB = 0
ACTA = [220, 221, 222, 223, 249, 250, 251]

S_BW, S_BG, S_BD = R('s', 64), R('s', 65), R('s', 66)
def a_off(i):
    if i < 128:
        p, kg, tile, k = i >> 5, (i >> 3) & 3, (i >> 2) & 1, i & 3
        return S_BW, ((2 * p + tile) * 16 + 4 * kg + k) * 1024
    if i < 240:
        j = i - 128
        kg, ti, k = j // 28, (j % 28) >> 2, j & 3
        return S_BG, (ti * 16 + 4 * kg + k) * 1024
    return S_BD, (i - 240) * 1024

class AStream:
    def __init__(self, regs, l16):
        self.regs, self.n, self.l16, self.cur, self.lds = regs, 0, l16, None, {}
    def more(self): return self.n < len(self.regs)
    def skip(self, k):
        self.n += k
    def is_lds(self): return self.n in self.lds
    def issue(self, e):
        i = self.n
        if i in self.lds:
            e.wait(vm=[('L', i)])
            e.ds(f'ds_read_b128 {self.regs[i]}, {self.lds[i][0]} offset:{self.lds[i][1]}', ('A', i))
            self.n += 1
            return
        b, off = a_off(i)
        if self.cur is None or self.cur[0] != str(b) or not (0 <= off - self.cur[1] < 4096):
            e(f's_add_u32 {S_AOFF}, {b}, {off}')
            self.cur = (str(b), off)
        e.vm(f'buffer_load_dwordx4 {self.regs[i]}, {self.l16}, {S_WS}, {S_AOFF} offen offset:{off - self.cur[1]} sc1', ('A', i))
        self.n += 1

def a_regs():
    wo_ring = [R('v', 12 + 4 * i, 4) for i in range(16)] + [R('v', 140 + 4 * i, 4) for i in range(16)]
    ffn_ring = [R('a', 4 * i, 4) for i in range(32)] + [R('v', 140 + 4 * i, 4) for i in range(20)]
    return [R('a', 128 + 4 * i, 4) for i in range(16)] + [wo_ring[i % 32] for i in range(112)] + [ffn_ring[i % 52] for i in range(168)]

S_INB = 's[90:91]'
SP = 80
def send_flag(e, seam, lab, fa, tmp, s_grp):
    e('s_barrier')
    if OPT.get('sx') == seam + 1: OPT['_st'](e, 15)
    e(f's_cmp_lg_u32 {S_WAVE}, 0')
    e(f's_cbranch_scc1 L_nf{lab}')
    e(f'buffer_store_dword {tmp[0]}, {fa}, {S_WS}, {s_grp} offen offset:{4 * seam} sc1')
    e(f'L_nf{lab}:')

def signal_and_poll(e, seam, lab, fa, pa, tmp, s_grp, s_own, pre=None, mid=None):
    if pre: pre(e)
    e(f'v_mov_b32 {tmp[0]}, {S_TAG}')
    if OPT.get('sx') == seam + 1: OPT['_st'](e, 14)
    e.wait(vm=['st'])
    send_flag(e, seam, lab, fa, tmp, s_grp)
    if mid:
        e('s_barrier')
        mid(e)
    poll_all(e, seam, lab)

def poll_all(e, seam, lab):
    one = OPT.get('p1', 1)
    e.wait_all(vm=False, ds=True)
    if one:
        e(f's_cmp_lg_u32 {S_WAVE}, 0')
        e(f's_cbranch_scc1 L_pout{lab}')
    e('s_mov_b32 s28, 0')
    e(f'L_poll{lab}:')
    for g in range(1, 8): e(f's_load_dword s{SP+g}, {S_INB}, {128 * g + 4 * seam} glc')
    e('s_add_u32 s28, s28, 1')
    e('s_cmp_gt_u32 s28, 0x80000')
    e('s_waitcnt lgkmcnt(0)')
    e(f's_cbranch_scc1 L_pout{lab}')
    for g in range(1, 8):
        e(f's_cmp_lg_u32 s{SP+g}, {S_TAG}')
        e(f's_cbranch_scc1 L_poll{lab}')
    e(f'L_pout{lab}:')
    if one: e('s_barrier')

class Pacer:
    def __init__(self, pace): self.pace, self.t = pace, -1e9
    def ok(self, n): return n >= self.t + self.pace
    def use(self, n): self.t = max(self.t + self.pace, n - 0.99)

def npass_gemm(e, bt, st, abase, nks, B, accb, D, s_st, l16, group, bread=None, late=None, a_ahead=None, pace=5, lead=20, at=None):
    ng = nks // group
    seq = []
    for p in range(4):
        for kg in range(ng):
            for tile in range(2):
                for rb in range(4):
                    for k in range(group):
                        ai = abase + p * 2 * nks + kg * 2 * group + tile * group + k
                        seq.append((p, kg, tile, rb, k, ai))
    acc = lambda p, tile, rb: accb.sub(32 * (p & 1) + 16 * tile + 4 * rb, 4)
    last_use, first_use = {}, {}
    for n, x in enumerate(seq):
        last_use[x[5]] = n; first_use.setdefault(x[5], n)
    pc = Pacer(pace)
    def fin(p):
        o = []
        for rb in range(4):
            d = D.sub(4 * rb, 4)
            for k in range(4):
                a = acc(p, k >> 1, rb)
                o.append(f'v_cvt_pk_bf16_f32 {d[k]}, {a[2*(k&1)]}, {a[2*(k&1)+1]}')
            o.append(f'buffer_store_dwordx4 {d}, {VST0 if rb == 0 else l16}, {S_WS}, {s_st[rb]} offen offset:{1024 * p} sc1')
            if rb == 0: o.append(f'ds_write_b128 {OWA}, {d} offset:{1024 * p}')
        return o
    finq = []
    bread = list(bread or [])
    per = 8 * nks
    for n, (p, kg, tile, rb, k, ai) in enumerate(seq):
        if rb == 0 and k == 0:
            e.wait(vm=[('A', ai + j) for j in range(group)], ds=[('A', ai + j) for j in range(group)])
        if p == 0 and tile == 0:
            e.wait(ds=[(bt, kg * group + k, rb)])
        c = '0' if (kg == 0 and k == 0) else acc(p, tile, rb)
        e(f'{MF} {acc(p, tile, rb)}, {st.regs[ai]}, {B(kg * group + k, rb)}, {c}')
        if p > 0 and n % per == 4: finq += fin(p - 1)
        if at and n in at:
            at[n](e); continue
        done = False
        if st.more() and st.is_lds() and a_ahead(st.n, n, last_use):
            st.issue(e); done = True
        elif pc.ok(n):
            if finq and finq[0].startswith('buffer'):
                e.vm(finq.pop(0), ('st', bt, p - 1)); done = True
                pc.t += OPT.get('stw', 0) if bt == 'Bo' else 0
            elif st.more() and a_ahead(st.n, n, last_use):
                assert first_use.get(st.n, 1 << 30) - n >= lead, (st.n, n)
                st.issue(e); done = True
            elif st.ldq:
                pre, ins, tag = st.ldq.pop(0)
                for x in pre: e(x)
                e.vm(ins, tag); done = True
            elif late:
                f = late(n)
                if f: f(e); done = True
            if done: pc.use(n)
        if not done and bread and not (bt == 'Bo' and bread[0][1][1] >= 12 and n < 16 * bread[0][1][2] + 15):
            ins, tag = bread.pop(0); e.ds(ins, tag); done = True
        if not done:
            kk = 0
            while finq and kk < 2 and not finq[0].startswith('buffer'):
                if finq[0].startswith('ds_'):
                    if kk: break
                    e.ds(finq.pop(0), 'ow'); kk = 2
                else:
                    e(finq.pop(0)); kk += 1
    assert not finq and not bread
    e('s_nop 4')
    for x in fin(3):
        if x.startswith('buffer'): e.vm(x, 'st')
        elif x.startswith('ds_'): e.ds(x, 'ow')
        else: e(x)

def own_read(e, PO):
    for i in range(2): e.ds(f'ds_read_b128 {PO.sub(4*i,4)}, {ORA} offset:{2048*i}', 'po')
def own_unpack(e, PO, A):
    e.wait(ds=['po'])
    for k in range(8):
        e(f'v_lshlrev_b32 {A[2*k]}, 16, {PO[k]}')
        e(f'v_and_b32 {A[2*k+1]}, 0xffff0000, {PO[k]}')

def gather_sum(e, PT, A, fo, s_off):
    for g in range(1, 8):
        e(f's_add_u32 s29, s22, {g}\ns_and_b32 s29, s29, 7\ns_lshl_b32 s29, s29, 21\ns_add_u32 s29, s29, {s_off}')
        for i in range(2):
            e.vm(f'buffer_load_dwordx4 {PT.sub(8*g+4*i,4)}, {fo}, {S_WS}, s29 offen offset:{2048*i} sc1', ('pt', g))
    e('s_mov_b32 s28, 0x00003f80\ns_mov_b32 s29, 0x3f800000')
    for g in range(1, 8):
        e.wait(vm=[('pt', g)])
        for k in range(8):
            e(f'v_dot2_f32_bf16 {A[2*k]}, {PT[8*g+k]}, s28, {A[2*k]}')
            e(f'v_dot2_f32_bf16 {A[2*k+1]}, {PT[8*g+k]}, s29, {A[2*k+1]}')

def reduce_seam(e, seam, lab, fa, pa, tmp, s_grp, s_own, PT, A, fo, base, s_row, drain=None, postbar=None, npre=None, stamp=None, mid=None):
    DONE, RDY, NEW = 's67', 's68', 's69'
    def loads(g, so):
        return [f'buffer_load_dwordx4 {PT.sub(8*g+4*i,4)}, {fo}, {S_WS}, {so} offen offset:{2048*i} sc1' for i in range(2)]
    e(f's_add_u32 s30, {s_row}, {base}')
    for g in range(1, 8): e(f's_add_u32 s29, s22, {g}\ns_and_b32 s29, s29, 7\ns_lshl_b32 s29, s29, 21\ns_add_u32 s{72+g}, s29, s30')
    e(f's_mov_b32 {DONE}, 1')
    e(f'v_mov_b32 {tmp[2]}, 16384\nv_mov_b32 {tmp[1]}, 0')
    e(f's_cmp_lg_u32 {S_WAVE}, 0')
    e(f's_cbranch_scc1 L_rz{lab}')
    e(f'ds_write_b32 {tmp[2]}, {tmp[1]}')
    e(f'L_rz{lab}:')
    own_read(e, PT)
    if drain: drain(e)
    own_unpack(e, PT, A)
    e(f'v_mov_b32 {tmp[0]}, {S_TAG}')
    if OPT.get('sx') == 1: OPT['_st'](e, 14)
    e.wait(vm=['st'])
    send_flag(e, seam, lab, fa, tmp, s_grp)
    if postbar: postbar(e)
    e.wait_all(vm=False, ds=True)
    e('s_mov_b32 s28, 0')
    e(f'L_rr{lab}:')
    e(f's_cmp_lg_u32 {S_WAVE}, 0')
    e(f's_cbranch_scc1 L_rl{lab}')
    for g in range(1, 8): e(f's_load_dword s{SP+g}, {S_INB}, {128 * g + 4 * seam} glc')
    e('s_add_u32 s28, s28, 1')
    e('s_cmp_gt_u32 s28, 0x80000')
    e(f's_cselect_b32 {RDY}, 0xff, 1')
    e('s_waitcnt lgkmcnt(0)')
    for g in range(1, 8):
        e(f's_cmp_eq_u32 s{SP+g}, {S_TAG}')
        e(f's_cselect_b32 s29, {1 << g}, 0')
        e(f's_or_b32 {RDY}, {RDY}, s29')
    e(f'v_mov_b32 {tmp[1]}, {RDY}')
    e(f'ds_write_b32 {tmp[2]}, {tmp[1]}')
    e(f's_branch L_ri{lab}')
    e(f'L_rl{lab}:')
    e(f'ds_read_b32 {tmp[1]}, {tmp[2]}')
    e('s_waitcnt lgkmcnt(0)')
    e(f'v_readfirstlane_b32 {RDY}, {tmp[1]}')
    e('s_nop 1')
    e(f'L_ri{lab}:')
    e(f's_andn2_b32 {NEW}, {RDY}, {DONE}')
    e(f's_cbranch_scc0 L_rr{lab}')
    for g in range(1, 8):
        e(f's_bitcmp1_b32 {NEW}, {g}')
        e(f's_cbranch_scc0 L_rs{lab}{g}')
        for x in loads(g, f's{72+g}'): e(x)
        e(f'L_rs{lab}{g}:')
    e(f's_or_b32 {DONE}, {DONE}, {NEW}')
    e(f's_cmp_lg_u32 {DONE}, 0xff')
    e(f's_cbranch_scc1 L_rr{lab}')
    if stamp: stamp(e)
    e.vq += ['pt'] * 14; e.seen.add('pt')
    if npre: npre(e)
    e('s_mov_b32 s28, 0x00003f80\ns_mov_b32 s29, 0x3f800000')
    e.wait(vm=['pt'])
    for g in range(1, 8):
        if mid: mid(e, g)
        for k in range(8):
            e(f'v_dot2_f32_bf16 {A[2*k]}, {PT[8*g+k]}, s28, {A[2*k]}')
            e(f'v_dot2_f32_bf16 {A[2*k+1]}, {PT[8*g+k]}, s29, {A[2*k+1]}')

def tail(r, e, st, stampit):
    lane, wv = R('v', 0), R('v', 1)
    OPT['_st'] = stampit
    t = r.tmp
    l16 = r.ba[0]
    xo, fo, vo, fa, pa8, pa32 = [R('v', 240 + i) for i in range(6)]
    hb, aw0, ab = R('v', 246), R('v', 247), R('v', 248)
    S_GRP, S_OWN, S_ROW = R('s', 36), R('s', 37), R('s', 38)
    Bo = lambda ks, rb: R('a', (0, 64, 192, 128)[ks >> 2] + 16 * rb + 4 * (ks & 3), 4)
    br = []
    for ks4 in range(4):
        for rb in range(4):
            for k in range(4):
                ks = 4 * ks4 + k
                ri, off = ofrag_loc(ks)
                br.append((f'ds_read_b128 {Bo(ks, rb)}, {r.ba[ri]} offset:{off + 1024 * rb}', ('Bo', ks, rb)))
    for ins, tag in br[:10]: e.ds(ins, tag)
    PT = R('v', 12, 64); A = R('v', 76, 16); T = R('v', 92, 12); X1 = R('v', 124, 16)
    MP = R('v', 92, 32); XR = R('v', 216, 8); GA = R('v', 140, 16); SC = R('v', 156, 16); SH = R('v', 172, 16)
    def a_ahead(i, n, last_use):
        if i < 128: return i < 48 or last_use[i - 32] <= n
        return False
    def early_poll(seam, at):
        q = [1]
        def late(n):
            if n >= at and q:
                q.pop()
                return lambda e: e.vm(f'buffer_load_dword {t[1]}, {pa8}, {S_WS}, {S_OWN} offen offset:{128 * seam} sc1', 'pl')
            return None
        return late
    npass_gemm(e, 'Bo', st, 0, 16, Bo, R('v', 76, 64), r.B1, [f's{32+i}' for i in range(4)], l16, 4, br[10:], None, a_ahead, pace=OPT['opace'])
    assert st.n == 128
    stampit(e, 5)
    LB1, LB2 = R('v', 9), R('v', 10)
    fg = [int(x) for x in str(OPT.get('fg', '')).split('_') if x]
    places = [(LB1, 0, S_WLDS, 65536), (LB1, 16384, S_WLDS, 81920), (LB2, 0, 's71', 98304), (LB2, 4096, 's71', 102400), (LB2, 36864, 's71', 135168)]
    fld = []
    for g0, (ar, ao, sb, lb) in zip(fg, places):
        b_, off = a_off(g0)
        for j in range(4):
            assert a_off(g0 + j)[1] == off + 1024 * j
            st.lds[g0 + j] = (ar, ao + 1024 * j)
            pre = [f's_add_u32 s70, {b_}, {off}', f's_add_u32 m0, {sb}, {lb}', 's_nop 0'] if j == 0 else []
            fld.append((pre, f'buffer_load_dwordx4 {l16}, {S_WS}, s70 offen offset:{1024*j} sc1 lds', ('L', g0 + j)))
    def fl_issue(e, n=1):
        for _ in range(n):
            if fld:
                pre, ins, tag = fld.pop(0)
                for x in pre: e(x)
                e.vm(ins, tag)
    def drain1(e):
        e(f'v_lshl_add_u32 {t[0]}, {wv}, 13, {l16}\nv_add_u32 {t[0]}, {XBASE}, {t[0]}')
        for q in range(8): e(f'ds_read_b128 {MP.sub(4*q,4)}, {t[0]} offset:{1024*q}')
        unpack(e, X1, XR)
        e('s_waitcnt lgkmcnt(0)')
        for i in range(0, 8, 2): e(f'v_pk_add_f32 {MP.sub(i,2)}, {MP.sub(i,2)}, {MP.sub(8+i,2)}\nv_pk_add_f32 {MP.sub(16+i,2)}, {MP.sub(16+i,2)}, {MP.sub(24+i,2)}')
        for i in range(0, 8, 2): e(f'v_pk_add_f32 {MP.sub(i,2)}, {MP.sub(i,2)}, {MP.sub(16+i,2)}')
        for i in range(2): e(f'ds_write_b128 {t[0]}, {MP.sub(4*i,4)} offset:{1024*i}')
        for _ in range(OPT['pre1']): st.issue(e)
        e('s_waitcnt lgkmcnt(0)')
    def post1(e):
        e(f'v_add_u32 {LB1}, 65536, {LB1}\nv_add_u32 {LB2}, 98304, {LB2}\ns_lshl_b32 s71, {S_WAVE}, 13')
        for D_, off in ((GA, 0), (SH, 8192), (SC, 16384)):
            for i in range(2):
                for hh in range(2):
                    e.ds(f'ds_read_b128 {D_.sub(8*i+4*hh,4)}, {vo} offset:{off + 256*i + 16*hh}', 'mv2')
    def npre1(e):
        for _ in range(OPT['pre1b']): st.issue(e)
    reduce_seam(e, 0, 'a', fa, pa8, t, S_GRP, S_OWN, PT, A, fo, WS_PART, S_ROW, drain1, post1, npre1, lambda e: stampit(e, 6), lambda e, g: fl_issue(e, 1 if g <= OPT.get('f1', 7) else 0))
    assert st.n <= 160
    V = R('v', 104, 16)
    e.wait(ds=['mv2'])
    for i in range(0, 16, 2): e(f'v_pk_fma_f32 {X1.sub(i,2)}, {GA.sub(i,2)}, {A.sub(i,2)}, {X1.sub(i,2)}')
    sm, sq = T.sub(8, 2), T.sub(10, 2)
    e(f'v_pk_add_f32 {sm}, {X1.sub(0,2)}, {X1.sub(2,2)}\nv_pk_mul_f32 {sq}, {X1.sub(0,2)}, {X1.sub(0,2)}')
    for i in range(2, 16, 2):
        if i > 2: e(f'v_pk_add_f32 {sm}, {sm}, {X1.sub(i,2)}')
        e(f'v_pk_fma_f32 {sq}, {X1.sub(i,2)}, {X1.sub(i,2)}, {sq}')
    e(f'v_add_f32 {T[8]}, {T[8]}, {T[9]}\nv_add_f32 {T[10]}, {T[10]}, {T[11]}')
    e(f'v_and_b32 {T[0]}, 7, {lane}\nv_lshlrev_b32 {T[0]}, 5, {T[0]}')
    e(f'v_permlane32_swap_b32 {T[8]}, {T[10]}')
    e(f'v_add_f32 {T[8]}, {T[8]}, {T[10]}')
    e(f'v_add_u32 {T[11]}, {LNB}, {T[0]}\nv_lshrrev_b32 {T[1]}, 5, {lane}')
    e(f'v_add_f32_dpp {T[8]}, {T[8]}, {T[8]} row_ror:8 row_mask:0xf bank_mask:0xf')
    e(f'v_mov_b32 {T[9]}, {T[8]}')
    e(f'v_lshl_add_u32 {T[1]}, {T[1]}, 4, {T[11]}\nv_lshl_add_u32 {T[1]}, {wv}, 2, {T[1]}')
    e(f'v_permlane16_swap_b32 {T[8]}, {T[9]}')
    e(f'v_add_f32 {T[8]}, {T[8]}, {T[9]}')
    e(f'ds_write_b32 {T[1]}, {T[8]}')
    e('s_waitcnt lgkmcnt(0)\ns_barrier')
    e(f'ds_read_b128 {T.sub(0,4)}, {T[11]}\nds_read_b128 {T.sub(4,4)}, {T[11]} offset:16')
    e('s_waitcnt lgkmcnt(0)')
    e(f'v_pk_add_f32 {T.sub(0,2)}, {T.sub(0,2)}, {T.sub(2,2)}\nv_pk_add_f32 {T.sub(4,2)}, {T.sub(4,2)}, {T.sub(6,2)}')
    e(f'v_add_f32 {T[0]}, {T[0]}, {T[1]}\nv_add_f32 {T[4]}, {T[4]}, {T[5]}')
    e(f'v_mul_f32 {T[0]}, {f32(1/512)}, {T[0]}\nv_mul_f32 {T[4]}, {f32(1/512)}, {T[4]}')
    e(f'v_fma_f32 {T[4]}, -{T[0]}, {T[0]}, {T[4]}\nv_max_f32 {T[4]}, 0, {T[4]}\nv_add_f32 {T[4]}, {f32(1e-5)}, {T[4]}')
    e(f'v_rsq_f32 {T[2]}, {T[4]}\ns_nop 0\nv_mul_f32 {T[3]}, -{T[0]}, {T[2]}')
    for i in range(0, 16, 2): e(f'v_pk_fma_f32 {V.sub(i,2)}, {X1.sub(i,2)}, {T.sub(2,2)}, {T.sub(2,2)} op_sel:[0,0,1] op_sel_hi:[1,0,1]')
    for i in range(0, 16, 2): e(f'v_pk_fma_f32 {V.sub(i,2)}, {V.sub(i,2)}, {SC.sub(i,2)}, {SH.sub(i,2)}')
    for k in range(8): e(f'v_cvt_pk_bf16_f32 {PT[k]}, {V[2*k]}, {V[2*k+1]}')
    e(f's_add_u32 s30, {S_ROW}, {WS_H2}')
    for i in range(2): e.vm(f'buffer_store_dwordx4 {PT.sub(4*i,4)}, {fo}, {S_WS}, s30 offen offset:{2048*i} sc1', 'st')
    stampit(e, 7)
    def pre2(e):
        for _ in range(OPT['pre2']): st.issue(e)
    def mid2(e):
        for _ in range(OPT['pre2b']): st.issue(e)
        assert st.n <= 180
        fl_issue(e, 99)
        act_addr(r, e)
    signal_and_poll(e, 1, 'b', fa, pa8, t, S_GRP, S_OWN, pre2, mid2)
    stampit(e, 8)
    e(f's_lshr_b32 s29, s22, 1\ns_xor_b32 s29, s29, {S_WAVE}\ns_lshl_b32 s30, s3, 2\ns_add_u32 s30, s30, s29\ns_lshl_b32 s30, s30, 14\ns_add_u32 s30, s30, {WS_H2}')
    e(f's_lshl_b32 s29, {S_WAVE}, 10')
    if len(e.vq) > 40: e.wait(vm=[e.vq[-41]])
    for ks in range(16):
        e(f's_add_u32 m0, s29, {H2B + ks * 4096}')
        if ks: e('s_add_u32 s30, s30, 1024')
        else: e('s_nop 0')
        e.vm(f'buffer_load_dwordx4 {l16}, {S_WS}, s30 offen sc1 lds', ('h', ks >> 2))
    Bf = lambda kg, k, rb: R('a', 128 + 64 * (kg & 1) + 16 * k + 4 * rb, 4)
    ACC = R('v', 12, 112)
    acc = lambda i, rb: ACC.sub(16 * i + 4 * rb, 4)
    def hreads(kg):
        return [(f'ds_read_b128 {Bf(kg, k, rb)}, {l16} offset:{H2B + (4*kg+k)*4096 + rb*1024}', ('Bh', kg, rb, k)) for rb in range(4) for k in range(4)]
    if OPT.get('sx') == 4: stampit(e, 14)
    e.wait(vm=[('h', 0)])
    e('s_barrier')
    if OPT.get('sx') == 4: stampit(e, 15)
    hq = hreads(0)
    for ins, tag in hq[:12]: e.ds(ins, tag)
    hq = hq[12:]
    TT = r.B1
    def act_fin(i):
        o = []
        for pr in range(2):
            X, Y = acc(i, 2 * pr), acc(i, 2 * pr + 1)
            for k in range(4): o.append(f'v_permlane32_swap_b32 {X[k]}, {Y[k]}')
            for k in range(4): o.append(f'v_max_f32 {X[k]}, 0, {X[k]}')
            for k in range(4): o.append(f'v_mul_f32 {X[k]}, {X[k]}, {Y[k]}')
            d = TT.sub(4 * (i & 1) + 2 * pr, 2)
            for k in range(2): o.append(f'v_cvt_pk_bf16_f32 {d[k]}, {X[2*k]}, {X[2*k+1]}')
            o.append(f'ds_write_b64 v{ACTA[i]}, {d} offset:{2048 * pr}')
        return o
    seq = [(kg, i, rb, k) for kg in range(4) for i in range(7) for rb in range(4) for k in range(4)]
    aidx = lambda kg, i, k: 128 + kg * 28 + i * 4 + k
    last, first = {}, {}
    for n, (kg, i, rb, k) in enumerate(seq):
        last[aidx(kg, i, k)] = n; first.setdefault(aidx(kg, i, k), n)
    pc = Pacer(OPT['gpace'])
    finq = []
    for n, (kg, i, rb, k) in enumerate(seq):
        m = n % 112
        if rb == 0 and k == 0: e.wait(vm=[('A', aidx(kg, i, j)) for j in range(4)], ds=[('A', aidx(kg, i, j)) for j in range(4)])
        if i == 0 and k == 0: e.wait(ds=[('Bh', kg, rb, j) for j in range(4)])
        c = '0' if (kg == 0 and k == 0) else acc(i, rb)
        e(f'{MF} {acc(i, rb)}, {st.regs[aidx(kg, i, k)]}, {Bf(kg, k, rb)}, {c}')
        if m == 56 and kg < 3:
            e.wait(vm=[('h', kg + 1)])
            e('s_barrier')
            hq += hreads(kg + 1)
            continue
        if kg == 3 and m >= 20 and (m - 20) % 16 == 0: finq += act_fin((m - 20) // 16)
        if st.more() and st.is_lds() and last.get(st.n - 52, 1 << 30) <= n:
            assert n < 270 or str(st.lds[st.n][0]) != str(LB1)
            st.issue(e); continue
        if pc.ok(n) and st.more() and not st.is_lds() and (st.n - 52 < 128 or last.get(st.n - 52, 1 << 30) <= n):
            assert first.get(st.n, 1 << 30) - n >= 20
            st.issue(e); pc.use(n); continue
        if hq and (n % 2 == 0 or kg == 0):
            ins, tag = hq.pop(0); e.ds(ins, tag); continue
        kk = 0
        while finq and kk < 2:
            x = finq[0]
            if x.startswith('ds_'):
                if kk: break
                e.ds(x, 'aw'); kk = 1
            else:
                e(x); kk += 1
            finq.pop(0)
    rest = finq + ['s_nop 1'] + act_fin(6)
    for x in rest:
        if x.startswith('ds_'): e.ds(x, 'aw')
        else: e(x)
    e.wait_all(vm=False, ds=True)
    e('s_barrier')
    stampit(e, 9)
    Bd = lambda ks, rb: R('a', 128 + 16 * ks + 4 * rb, 4)
    br = [(f'ds_read_b128 {Bd(ks, rb)}, {ab} offset:{ks*4096 + rb*1024}', ('Bd', ks, rb)) for rb in range(4) for ks in range(7)]
    for ins, tag in br[:10]: e.ds(ins, tag)
    for i in range(4): e(f's_add_u32 s{32+i}, s{32+i}, {WS_PART2 - WS_PART}')
    GBv = R('v', 92, 16)
    br += [(f'ds_read_b128 {GBv.sub(8*i+4*hh,4)}, {vo} offset:{24576 + 256*i + 16*hh}', 'gb') for i in range(2) for hh in range(2)]
    E3 = OPT.get('e3', 215)
    e(f'v_mov_b32 {t[0]}, {S_TAG}')
    def early3(e):
        e.wait(vm=[('st', 'Bd', 1)])
        send_flag(e, 2, 'c', fa, t, S_GRP)
    def a_ahead2(i, n, last_use):
        return (i - 52) < 240 or last_use[i - 52] <= n
    npass_gemm(e, 'Bd', st, 240, 7, Bd, R('v', 12, 64), R('v', 76, 16), [f's{32+i}' for i in range(4)], l16, 7, br[10:], None, a_ahead2, pace=OPT['dpace'], at=({E3: early3} if E3 else None))
    assert not st.more()
    stampit(e, 10)
    PT = R('v', 140, 64); A = R('v', 12, 16)
    own_read(e, PT); own_unpack(e, PT, A)
    e(f's_add_u32 s30, {S_ROW}, {WS_PART2}')
    for g in range(1, 8): e(f's_add_u32 s29, s22, {g}\ns_and_b32 s29, s29, 7\ns_lshl_b32 s29, s29, 21\ns_add_u32 s{72+g}, s29, s30')
    e.wait(vm=['st'])
    send_flag(e, 3, 'd', fa, t, S_GRP)
    for i in range(2):
        if i == 1 or E3: poll_all(e, 2 + i, 'cd'[i])
        if i == 1: stampit(e, 11)
        for ii in ([i] if E3 else ([0, 1] if i else [])):
            for g in range(1, 8):
                e.vm(f'buffer_load_dwordx4 {PT.sub(8*g+4*ii,4)}, {fo}, {S_WS}, s{72+g} offen offset:{2048*ii} sc1', ('pt', g, ii))
    e('s_mov_b32 s28, 0x00003f80\ns_mov_b32 s29, 0x3f800000')
    for i in range(2):
        for g in range(1, 8):
            e.wait(vm=[('pt', g, i)])
            for k in range(4 * i, 4 * i + 4):
                e(f'v_dot2_f32_bf16 {A[2*k]}, {PT[8*g+k]}, s28, {A[2*k]}')
                e(f'v_dot2_f32_bf16 {A[2*k+1]}, {PT[8*g+k]}, s29, {A[2*k+1]}')
        e('s_nop 1')
        for k in range(4 * i, 4 * i + 4): e(f'v_pk_fma_f32 {X1.sub(2*k,2)}, {GBv.sub(2*k,2)}, {A.sub(2*k,2)}, {X1.sub(2*k,2)}')
        for k in range(4 * i, 4 * i + 4): e(f'v_cvt_pk_bf16_f32 {PT[k]}, {X1[2*k]}, {X1[2*k+1]}')
        for u in range(2):
            e.vm(f'buffer_store_dwordx2 {PT.sub(4*i+2*u, 2)}, {xo}, {S_OS}, s39 offen offset:{128*i + 32*u} {OPT.get("osc", "")}', 'st')

def tail_setup(r, p, t):
    lane, wv = R('v', 0), R('v', 1)
    xo, fo, vo, fa, pa8, pa32 = [R('v', 240 + i) for i in range(6)]
    ab = R('v', 248)
    ln_addr(p, lane, wv, xo, fo, vo, t)
    p(f'v_add_u32 {vo}, {MODB}, {vo}')
    p(f'v_and_b32 {t[0]}, 7, {lane}\nv_lshlrev_b32 {fa}, 10, {t[0]}\nv_lshrrev_b32 {t[1]}, 3, {lane}\nv_lshl_add_u32 {fa}, {t[1]}, 26, {fa}')
    p(f'v_sub_u32 {pa8}, s22, {t[0]}\nv_and_b32 {pa8}, 7, {pa8}\nv_lshl_add_u32 {fa}, {pa8}, 7, {fa}')
    p(f'v_xor_b32 {t[1]}, s22, {t[1]}\nv_not_b32 {t[1]}, {t[1]}\nv_and_b32 {t[1]}, 1, {t[1]}\nv_lshl_add_u32 {VST0}, {t[1]}, 30, {r.ba[0]}')
    p(f'v_lshl_add_u32 {OWA}, {wv}, 12, {r.ba[0]}')
    p(f'v_mov_b32 {t[1]}, s22\nv_and_b32 {t[1]}, 1, {t[1]}\nv_lshl_add_u32 {ORA}, {t[1]}, 7, {fo}')
    p(f's_lshl_b32 s36, s3, 13\ns_add_u32 s36, s36, {WS_FLAG}')
    p(f's_lshl_b32 s37, s2, 10\ns_add_u32 s37, s37, {WS_FLAG}\ns_add_u32 s90, s24, s37\ns_addc_u32 s91, s25, 0')
    p('s_lshr_b32 s38, s2, 1\ns_lshl_b32 s38, s38, 14\ns_and_b32 s28, s2, 1\ns_lshl_b32 s28, s28, 7\ns_add_u32 s38, s38, s28')
    p('s_lshl_b32 s39, s2, 13')

def act_addr(r, p):
    lane, wv = R('v', 0), R('v', 1)
    t = r.tmp
    p(f'v_lshrrev_b32 {t[2]}, 5, {lane}\nv_lshlrev_b32 {t[2]}, 10, {t[2]}')
    p(f'v_and_b32 {t[3]}, 31, {lane}\nv_lshl_add_u32 {t[2]}, {t[3]}, 4, {t[2]}')
    p(f'v_add_u32 v248, {ACTB}, {r.ba[0]}')
    p(f's_mul_i32 s70, {S_WAVE}, 7')
    for i in range(7):
        p(f's_add_u32 s28, s70, {i}')
        p('s_lshr_b32 s71, s28, 2\ns_lshl_b32 s71, s71, 12')
        p('s_bfe_u32 s23, s28, 0x10001\ns_lshl_b32 s23, s23, 3\ns_add_u32 s71, s71, s23')
        p('s_and_b32 s23, s28, 1\ns_lshl_b32 s23, s23, 9\ns_add_u32 s71, s71, s23')
        p(f's_add_u32 s71, s71, {ACTB}')
        p(f'v_add_u32 v{ACTA[i]}, s71, {t[2]}')
```
